```python
import torch

def _softmax(x, axis=-1):
    return torch.softmax(x, dim=axis)
def _gelu(x):
    return torch.nn.functional.gelu(x, approximate="tanh")
def _silu(x):
    return torch.nn.functional.silu(x)
def _sigmoid(x):
    return torch.sigmoid(x)
def _layernorm(x, axis=-1, eps=1e-5):
    m = x.mean(dim=axis, keepdim=True)
    v = x.var(dim=axis, keepdim=True, unbiased=False)
    return (x - m) / torch.sqrt(v + eps)
def _scatter_add(tgt, idx, src, axis=0):
    return tgt.clone().index_add_(axis, idx, src)
def _segment_sum(src, seg, n):
    out = torch.zeros((n,) + src.shape[1:], dtype=src.dtype)
    return out.index_add_(0, seg, src)
def _pad(x, pw):
    flat = tuple(v for pair in reversed(pw) for v in pair)
    return torch.nn.functional.pad(x, flat)

kernel_name = 'parallel_sum__spectral_gfnet__dense_activation_gelu__prompt'

def setup_inputs():

    _w = (lambda a: (lambda t: t.to(torch.bfloat16) if t.is_floating_point() else t)(torch.as_tensor(a)))
    def _A_setup():
        B, S, D = 1, 2048, 1024
        Df = D // 2 + 1
        return {
            "x": _w((lambda *s: torch.randn(*s, dtype=torch.bfloat16) * 0.05)(B, S, D)),
            "w_r": _w((lambda *s: torch.randn(*s, dtype=torch.bfloat16) * 0.4)(S, Df) * 0.02),
            "w_i": _w((lambda *s: torch.randn(*s, dtype=torch.bfloat16) * 0.4)(S, Df) * 0.02),
        }
    _A_in = _A_setup()

    def _B_setup():
        B, S, D, F = 1, 2048, 1024, 3584
        return {
            "x": _w((lambda *s: torch.randn(*s, dtype=torch.bfloat16) * 0.05)(B, S, D)),
            "w1": _w((lambda *s: torch.randn(*s, dtype=torch.bfloat16) * 0.4)(D, F) * (D ** -0.5)),
            "b1": _w((lambda *s: torch.randn(*s, dtype=torch.bfloat16) * 12.8)(F) * 0.01),
            "w2": _w((lambda *s: torch.randn(*s, dtype=torch.bfloat16) * 0.1)(F, D) * (F ** -0.5)),
            "b2": _w((lambda *s: torch.randn(*s, dtype=torch.bfloat16) * 1.6)(D) * 0.01),
        }
    _B_in = _B_setup()

    return {
        "A_x": _A_in["x"],
        "A_w_r": _A_in["w_r"],
        "A_w_i": _A_in["w_i"],
        "B_x": _B_in["x"],
        "B_w1": _B_in["w1"],
        "B_b1": _B_in["b1"],
        "B_w2": _B_in["w2"],
        "B_b2": _B_in["b2"],
    }

def reference(A_x, A_w_r, A_w_i, B_x, B_w1, B_b1, B_w2, B_b2):
    def _A_ref(x, w_r, w_i):
        B, S, D = x.shape
        X = (lambda x, axes=(-2,-1): torch.fft.rfft2(x.float(), dim=axes))(x, axes=(-2, -1))
        W = w_r + 1j * w_i
        X = X * W
        y = (lambda x, s, axes=(-2,-1): torch.fft.irfft2(x, s=s, dim=axes).to(torch.bfloat16))(X, (S, D), axes=(-2, -1))
        return y

    def _B_ref(x, w1, b1, w2, b2):
        h = torch.einsum("bsd,df->bsf", x, w1) + b1
        h = _gelu(h)
        return torch.einsum("bsf,fd->bsd", h, w2) + b2

    x = A_x
    xn = _layernorm(x, axis=-1)
    return x + _A_ref(xn, A_w_r, A_w_i) + _B_ref(xn, B_w1, B_b1, B_w2, B_b2)
```

```python
import struct

def f2u(x):
    return struct.unpack("<I", struct.pack("<f", x))[0]

def fhex(x):
    return "0x%08x" % f2u(x)

class Asm:
    def __init__(self):
        self.lines = []
        self.uid = 0
    def __call__(self, s):
        for l in s.strip("\n").split("\n"):
            l = l.strip()
            if not l: continue
            if l.endswith(":") or l.startswith("."):
                self.lines.append(l)
            else:
                self.lines.append("    " + l)
    def ext(self, lst):
        for l in lst: self(l)
    def label(self, base="L"):
        self.uid += 1
        return f"{base}_{self.uid}"
    def text(self):
        return "\n".join(self.lines) + "\n"

def vr(a, n=1):
    return f"v{a}" if n == 1 else f"v[{a}:{a+n-1}]"
def sr(a, n=1):
    return f"s{a}" if n == 1 else f"s[{a}:{a+n-1}]"

def interleave(main, side, start=0, every=1, per=1):
    out = []; side = list(side);
    for i, m in enumerate(main):
        out.append(m)
        if i >= start and (i - start) % every == 0:
            for _ in range(per):
                if side: out.append(side.pop(0))
    out.extend(side)
    return out

def kernel_begin(a, name):
    a(f".text\n.globl {name}\n.p2align 8\n.type {name},@function\n{name}:")

def kernel_desc(name, vgpr, sgpr=102, acc=None):
    if acc is None: acc = (vgpr + 3) // 4 * 4
    return f""".section .rodata,"a"
.p2align 6
.amdhsa_kernel {name}
  .amdhsa_next_free_vgpr {vgpr}
  .amdhsa_next_free_sgpr {sgpr}
  .amdhsa_accum_offset {acc}
  .amdhsa_group_segment_fixed_size 0
  .amdhsa_kernarg_size 88
  .amdhsa_user_sgpr_count 2
  .amdhsa_user_sgpr_kernarg_segment_ptr 1
  .amdhsa_system_sgpr_workgroup_id_x 1
.end_amdhsa_kernel
"""

def srd(a, d, base_lo, base_hi, nbytes, add=None):
    if add is None:
        a(f"s_mov_b32 s{d}, s{base_lo}\ns_mov_b32 s{d+1}, s{base_hi}")
    else:
        a(f"s_add_u32 s{d}, s{base_lo}, {add}\ns_addc_u32 s{d+1}, s{base_hi}, 0")
    a(f"s_mov_b32 s{d+2}, {nbytes}\ns_mov_b32 s{d+3}, 0x20000")
```

```python
from asmlib import *
import math
NAME = "parallel_sum__spectral_gfnet__dense_activation_gelu__prompt"
MB = 1 << 20
XN_OFF = 0
H_OFF = 4 * MB
H_BYTES = 2048 * 3584 * 2
PW_OFF = 20 * MB
PW_PITCH = 257 * 128
PW_BYTES = 256 * PW_PITCH
Q_OFF = 30 * MB
Q_PITCH = 16384 + 256
Q_BYTES = 257 * Q_PITCH
PART_OFF = 36 * MB
KA = dict(x=0, wr=8, wi=16, w1=32, b1=40, w2=48, b2=56, out=64, dbg=72, ws=80)

def mfma16(d, a, b, c=None):
    c = vr(d, 4) if c is None else c
    return f"v_mfma_f32_16x16x32_bf16 {vr(d,4)}, {vr(a,4)}, {vr(b,4)}, {c}"
def mfma32(d, a, b, c=None):
    c = vr(d, 16) if c is None else c
    return f"v_mfma_f32_32x32x16_bf16 {vr(d,16)}, {vr(a,4)}, {vr(b,4)}, {c}"

def srd_off(a, d, base, off_sgpr, off_imm, total):
    if off_imm:
        a(f"s_add_u32 s{d}, s{base}, {off_imm}\ns_addc_u32 s{d+1}, s{base+1}, 0")
        lo, hi = d, d + 1
    else:
        lo, hi = base, base + 1
    if off_sgpr is not None:
        a(f"s_add_u32 s{d}, s{lo}, s{off_sgpr}\ns_addc_u32 s{d+1}, s{hi}, 0")
        a(f"s_sub_u32 s{d+2}, {total}, s{off_sgpr}")
    else:
        if lo != d: a(f"s_mov_b32 s{d}, s{lo}\ns_mov_b32 s{d+1}, s{hi}")
        a(f"s_mov_b32 s{d+2}, {total}")
    a(f"s_mov_b32 s{d+3}, 0x20000")

STAMP_OFF = 200 * MB
STAMPS = False
import os
def opt(k, d=0):
    return int(os.environ.get(k, d))
def stamp(a, i):
    import common
    if not common.STAMPS: return
    a(f"s_memtime s[{60+4*i}:{61+4*i}]\ns_memrealtime s[{62+4*i}:{63+4*i}]")
def stamp_dump(a, kidx, wsreg=8, wave="s3", v=2):
    import common
    if not common.STAMPS: return
    a(f"s_waitcnt lgkmcnt(0)\ns_lshl_b32 s55, s2, 3\ns_add_u32 s55, s55, {wave}\ns_lshl_b32 s55, s55, 6")
    srd_off(a, 56, wsreg, None, STAMP_OFF + kidx * MB, MB)
    for i in range(16): a(f"v_mov_b32 v{v+i}, s{60+2*i}")
    a(f"v_mov_b32 v{v+16}, 0\ns_nop 4")
    for i in range(4):
        a(f"buffer_store_dwordx4 {vr(v+4*i,4)}, v{v+16}, s[56:59], s55 offen offset:{16*i}")
```

```python
from common import *
import common

G1_STAGE = 45056
G1_NST = 3
G1_LDS = G1_STAGE * G1_NST

def gelu_pairs(regs, t, c0v, c1s):
    o = []
    n = len(regs)
    T = [t + 2 * i for i in range(n)]
    for r, x in zip(regs, T): o.append(f"v_pk_mul_f32 {vr(x,2)}, {vr(r,2)}, {vr(r,2)}")
    for r, x in zip(regs, T): o.append(f"v_pk_fma_f32 {vr(x,2)}, {vr(x,2)}, {sr(c1s,2)}, {vr(c0v,2)}")
    for r, x in zip(regs, T): o.append(f"v_pk_mul_f32 {vr(x,2)}, {vr(x,2)}, {vr(r,2)}")
    for r, x in zip(regs, T):
        o.append(f"v_exp_f32 v{x}, v{x}"); o.append(f"v_exp_f32 v{x+1}, v{x+1}")
    for r, x in zip(regs, T): o.append(f"v_pk_add_f32 {vr(x,2)}, {vr(x,2)}, 1.0 op_sel_hi:[1,0]")
    for r, x in zip(regs, T):
        o.append(f"v_rcp_f32 v{x}, v{x}"); o.append(f"v_rcp_f32 v{x+1}, v{x+1}")
    for r, x in zip(regs, T): o.append(f"v_pk_mul_f32 {vr(x,2)}, {vr(x,2)}, {vr(r,2)}")
    return o

def gemm1(a, name, HS=16, xmap="8x4"):
    for Q in range(112): assert (Q * 147) >> 10 == Q // 7
    kernel_begin(a, name)
    END = a.label("g1end"); LOADER = a.label("g1ld"); LOOP = a.label("g1loop"); LL = a.label("g1ll")
    a(f"""
    s_cmp_ge_u32 s2, 256
    s_cbranch_scc1 {END}
    """)
    stamp(a,0)
    a(f"""
    s_load_dwordx2 s[4:5], s[0:1], {KA['w1']}
    s_load_dwordx2 s[6:7], s[0:1], {KA['b1']}
    s_load_dwordx2 s[8:9], s[0:1], {KA['ws']}
    v_lshrrev_b32 v1, 6, v0
    v_and_b32 v0, 63, v0
    s_and_b32 s10, s2, 7
    v_readfirstlane_b32 s3, v1
    s_lshr_b32 s11, s2, 3
    """)
    if xmap == "8x4":
        a("""
        s_lshr_b32 s12, s10, 2
        s_lshl_b32 s12, s12, 3
        s_lshr_b32 s13, s11, 2
        s_add_u32 s12, s12, s13
        s_and_b32 s13, s10, 3
        s_lshl_b32 s13, s13, 2
        s_and_b32 s14, s11, 3
        s_add_u32 s13, s13, s14
        """)
    else:
        a("""
        s_lshr_b32 s12, s10, 1
        s_lshl_b32 s12, s12, 2
        s_lshr_b32 s13, s11, 3
        s_add_u32 s12, s12, s13
        s_and_b32 s13, s10, 1
        s_lshl_b32 s13, s13, 3
        s_and_b32 s14, s11, 7
        s_add_u32 s13, s13, s14
        """)
    a(f"""
    s_cmp_ge_u32 s3, 4
    s_cbranch_scc1 {LOADER}
    """)
    ACC = 0
    F = [112, 156]
    vAe, vAo, vA6, vB0, vB1, vL = 200, 201, 202, 203, 204, 205
    BI = 208
    T0 = 224
    acc = lambda t, u: ACC + 4 * (4 * t + u)
    a(f"""
    s_and_b32 s14, s3, 1
    s_lshr_b32 s15, s3, 1
    v_mov_b32 v{vL}, v0
    v_lshrrev_b32 v{T0}, 4, v0
    v_bfe_u32 v{T0+1}, v0, 2, 2
    v_lshl_add_u32 v{T0+1}, v{T0}, 3, v{T0+1}
    v_mul_u32_u24 v{T0+1}, 448, v{T0+1}
    v_and_b32 v{T0+2}, 3, v0
    v_lshl_add_u32 v{T0+1}, v{T0+2}, 3, v{T0+1}
    v_add_u32 v{T0+1}, 16384, v{T0+1}
    v_and_b32 v{T0+2}, 1, v{T0}
    v_lshlrev_b32 v{T0+3}, 5, v{T0+2}
    s_lshl_b32 s16, s14, 8
    v_add_u32 v{T0+4}, s16, v{T0+1}
    v_add_u32 v{vAe}, v{T0+4}, v{T0+3}
    v_sub_u32 v{vAo}, v{T0+4}, v{T0+3}
    v_xor_b32 v{T0+2}, s14, v{T0+2}
    v_lshl_add_u32 v{vA6}, v{T0+2}, 5, v{T0+1}
    v_add_u32 v{vA6}, 192, v{vA6}
    v_and_b32 v{T0+2}, 15, v0
    v_bfe_u32 v{T0+3}, v0, 1, 3
    v_xor_b32 v{T0+3}, v{T0+3}, v{T0}
    v_lshlrev_b32 v{T0+3}, 4, v{T0+3}
    v_lshl_add_u32 v{vB0}, v{T0+2}, 7, v{T0+3}
    s_lshl_b32 s16, s15, 13
    v_add_u32 v{vB0}, s16, v{vB0}
    v_xor_b32 v{vB1}, 64, v{vB0}
    v_lshlrev_b32 v{T0+5}, 3, v{T0}
    s_mul_i32 s16, s13, 448
    s_waitcnt lgkmcnt(0)
    """)
    srd_off(a, 20, 6, 16, 0, 7168)
    a(f"s_lshl_b32 s17, s14, 8\ns_lshl_b32 s18, s14, 5")
    for t in range(6):
        a(f"buffer_load_dwordx2 {vr(BI+2*t,2)}, v{T0+5}, s[20:23], s17 offen offset:{32*t}")
    a(f"buffer_load_dwordx2 {vr(BI+12,2)}, v{T0+5}, s[20:23], s18 offen offset:192")
    if HS == 16:
        a(f"""
        s_lshr_b32 s16, s12, 1
        s_mul_i32 s16, s16, 112
        s_mul_i32 s17, s13, 7
        s_add_u32 s16, s16, s17
        s_lshl_b32 s16, s16, 14
        s_and_b32 s17, s12, 1
        s_lshl_b32 s17, s17, 13
        s_add_u32 s16, s16, s17
        """)
    else:
        a(f"""
        s_mul_i32 s16, s12, 112
        s_mul_i32 s17, s13, 7
        s_add_u32 s16, s16, s17
        s_lshl_b32 s16, s16, 13
        """)
    a(f"s_lshl_b32 s17, s15, 12\ns_add_u32 s16, s16, s17")
    srd_off(a, 24, 8, 16, H_OFF, H_BYTES)
    KBP = HS * 1024
    a("s_waitcnt vmcnt(0)")
    for t in range(7):
        for u in range(4):
            b = acc(t, u)
            a(f"v_lshlrev_b32 v{b}, 16, v{BI+2*t}\nv_and_b32 v{b+1}, 0xffff0000, v{BI+2*t}")
            a(f"v_lshlrev_b32 v{b+2}, 16, v{BI+2*t+1}\nv_and_b32 v{b+3}, 0xffff0000, v{BI+2*t+1}")
    def reads(f, sub):
        o = []
        vb = vB1 if sub else vB0
        def rdA(t):
            base = vA6 if t == 6 else (vAo if t & 1 else vAe)
            imm = (0 if t == 6 else 32 * t) + sub * 14336
            return [f"ds_read_b64_tr_b16 {vr(f+4*t,2)}, v{base} offset:{imm}",
                    f"ds_read_b64_tr_b16 {vr(f+4*t+2,2)}, v{base} offset:{imm+1792}"]
        rdB = lambda u: f"ds_read_b128 {vr(f+28+4*u,4)}, v{vb} offset:{2048*u}"
        o += rdA(0) + [rdB(u) for u in range(4)]
        for t in range(1, 7): o += rdA(t)
        return o
    def mf(f):
        return [mfma16(acc(t, u), f + 4 * t, f + 28 + 4 * u) for t in range(7) for u in range(4)]
    a(f"s_mov_b32 s33, {G1_STAGE}\ns_mov_b32 s30, 0\ns_mov_b32 s31, 16\ns_barrier")
    stamp(a,1)
    a.ext(reads(F[0], 0))
    if opt("NORD"): a.ext(reads(F[1], 1))
    a(f"{LOOP}:")
    a(f"""
    s_add_u32 s30, s30, {G1_STAGE}
    s_cmp_eq_u32 s30, {G1_LDS}
    s_cselect_b32 s32, {(-(G1_LDS-G1_STAGE)) & 0xffffffff}, s33
    s_cselect_b32 s30, 0, s30
    s_waitcnt lgkmcnt(0)
    """)
    upd = [f"v_add_u32 v{r}, s32, v{r}" for r in (vAe, vAo, vA6, vB0, vB1)]
    a.ext(interleave(mf(F[0]), ([] if opt('NORD') else reads(F[1], 1)) + upd))
    a("s_waitcnt lgkmcnt(0)\ns_barrier")
    a.ext(interleave(mf(F[1]), [] if opt('NORD') else reads(F[0], 0)))
    a(f"s_sub_u32 s31, s31, 1\ns_cmp_lg_u32 s31, 0\ns_cbranch_scc1 {LOOP}")
    stamp(a,2)
    C0V = 206
    a(f"""
    s_mov_b32 s34, {fhex(-0.1029432397)}
    s_mov_b32 s35, {fhex(-0.1029432397)}
    v_mov_b32 v{C0V}, {fhex(-2.302208198)}
    v_mov_b32 v{C0V+1}, {fhex(-2.302208198)}
    v_lshlrev_b32 v{vL}, 4, v{vL}
    s_mul_i32 s36, s14, {4*KBP}
    s_lshl_b32 s37, s14, 3
    s_add_u32 s37, s37, {3*KBP}
    s_waitcnt lgkmcnt(0)
    s_nop 7
    """)
    TT = [112, 128]; PK = [144, 152]
    idx = 0
    for tp in range(3):
        for up in range(2):
            tt = TT[idx & 1]; pk = PK[idx & 1]; idx += 1
            regs = []
            for u in (2 * up, 2 * up + 1):
                regs += [acc(2*tp, u), acc(2*tp, u) + 2, acc(2*tp+1, u), acc(2*tp+1, u) + 2]
            a.ext(gelu_pairs(regs, tt, C0V, 34))
            for i in range(8): a(f"v_cvt_pk_bf16_f32 v{pk+i}, v{tt+2*i}, v{tt+2*i+1}")
            for k in range(2):
                a(f"buffer_store_dwordx4 {vr(pk+4*k,4)}, v{vL}, s[24:27], s36 offen offset:{1024*(2*up+k)}")
        a(f"s_add_u32 s36, s36, {KBP}")
    tt = TT[0]; pk = PK[0]
    regs = []
    for u in range(4): regs += [acc(6, u), acc(6, u) + 2]
    a.ext(gelu_pairs(regs, tt, C0V, 34))
    for i in range(8): a(f"v_cvt_pk_bf16_f32 v{pk+i}, v{tt+2*i}, v{tt+2*i+1}")
    for u in range(4):
        a(f"buffer_store_dwordx2 {vr(pk+2*u,2)}, v{vL}, s[24:27], s37 offen offset:{1024*u}")
    stamp(a,3)
    if common.STAMPS: a("s_waitcnt vmcnt(0)")
    stamp(a,4); stamp_dump(a,1,v=2)
    a("s_endpgm")
    a(f"{LOADER}:")
    VX = 8; VW = 12
    a(f"""
    s_sub_u32 s3, s3, 4
    v_lshrrev_b32 v1, 3, v0
    s_lshl_b32 s16, s3, 5
    v_add_u32 v1, s16, v1
    v_and_b32 v2, 7, v0
    """)
    for n in range(4):
        a(f"""
        v_add_u32 v3, {8*n}, v1
        v_bfe_u32 v4, v3, 1, 3
        v_xor_b32 v4, v4, v2
        v_lshlrev_b32 v4, 4, v4
        v_lshl_add_u32 v{VX+n}, v3, 11, v4
        """)
        if n: a(f"v_subrev_u32 v{VX+n}, {1024*n}, v{VX+n}")
    a(f"v_lshrrev_b32 v1, 2, v0\nv_and_b32 v2, 3, v0\ns_lshl_b32 s16, s3, 4")
    for n in range(7):
        a(f"""
        v_add_u32 v3, {16*n}, v1
        v_mul_u32_u24 v4, 147, v3
        v_lshrrev_b32 v4, 10, v4
        v_mul_u32_u24 v5, 7, v4
        v_sub_u32 v5, v3, v5
        v_bfe_u32 v6, v4, 3, 1
        v_lshlrev_b32 v6, 1, v6
        v_xor_b32 v6, v6, v2
        v_lshlrev_b32 v6, 4, v6
        v_lshl_add_u32 v6, v5, 6, v6
        v_add_u32 v4, s16, v4
        v_mul_u32_u24 v4, 7168, v4
        v_add_u32 v{VW+n}, v4, v6
        """)
        if n % 4: a(f"v_subrev_u32 v{VW+n}, {1024*(n%4)}, v{VW+n}")
    a(f"s_lshl_b32 s16, s12, 18\ns_mul_i32 s17, s13, 448\ns_waitcnt lgkmcnt(0)")
    srd_off(a, 20, 8, 16, XN_OFF, 4 * MB)
    srd_off(a, 24, 4, 17, 0, 1024 * 7168)
    a(f"""
    s_lshl_b32 s30, s3, 12
    s_mul_i32 s31, s3, 7168
    s_add_u32 s31, s31, 16384
    s_mov_b32 s32, 0
    s_mov_b32 s33, 0
    s_mov_b32 s34, 0
    """)
    def issue():
        a(f"s_add_u32 m0, s30, s34\ns_nop 0")
        for n in range(4):
            a(f"buffer_load_dwordx4 v{VX+n}, s[20:23], s32 offen offset:{1024*n} lds")
        a(f"s_add_u32 m0, s31, s34\ns_add_u32 s32, s32, 128")
        for n in range(4):
            a(f"buffer_load_dwordx4 v{VW+n}, s[24:27], s33 offen offset:{1024*n} lds")
        a(f"s_add_u32 m0, m0, 4096\ns_add_u32 s34, s34, {G1_STAGE}")
        for n in range(4, 7):
            a(f"buffer_load_dwordx4 v{VW+n}, s[24:27], s33 offen offset:{1024*(n-4)} lds")
        a(f"""
        s_add_u32 s33, s33, {64*7168}
        s_cmp_eq_u32 s34, {G1_LDS}
        s_cselect_b32 s34, 0, s34
        """)
    for i in range(3): issue()
    a(f"s_waitcnt vmcnt(22)\ns_barrier\ns_mov_b32 s35, 13\n{LL}:\ns_waitcnt vmcnt(11)\ns_barrier")
    if not opt("NODMA"): issue()
    a(f"s_sub_u32 s35, s35, 1\ns_cmp_lg_u32 s35, 0\ns_cbranch_scc1 {LL}")
    a("s_waitcnt vmcnt(11)\ns_barrier\ns_waitcnt vmcnt(0)\ns_barrier\ns_barrier")
    a(f"{END}:\ns_endpgm")
    return f"; @launch kernel={name} grid=(256,1,1) block=(512,1,1) lds={G1_LDS}", kernel_desc(name, 232)
```

```python
from common import *
import common

def gemm2(a, name, NB=8):
    HS = 2 * NB
    HB = 2 * HS * 1024
    STAGE = HB + 16384
    NST = 3 if NB == 8 else 4
    LDS = STAGE * NST
    STEPS = 14 if NB == 8 else 28
    NI = HS // 2 + 4
    kernel_begin(a, name)
    END = a.label("g2end"); LOADER = a.label("g2ld"); LOOP = a.label("g2loop"); LL = a.label("g2ll")
    a(f"""
    s_cmp_ge_u32 s2, 256
    s_cbranch_scc1 {END}
    """)
    stamp(a,0)
    a(f"""
    s_load_dwordx2 s[4:5], s[0:1], {KA['w2']}
    s_load_dwordx2 s[8:9], s[0:1], {KA['ws']}
    v_lshrrev_b32 v1, 6, v0
    v_and_b32 v0, 63, v0
    s_and_b32 s10, s2, 7
    v_readfirstlane_b32 s3, v1
    s_lshr_b32 s11, s2, 3
    s_lshr_b32 s12, s10, {2 if NB == 8 else 1}
    s_lshl_b32 s12, s12, 2
    s_lshr_b32 s13, s11, 3
    s_add_u32 s12, s12, s13
    s_and_b32 s13, s11, 7
    s_and_b32 s19, s10, {3 if NB == 8 else 1}
    s_cmp_ge_u32 s3, 4
    s_cbranch_scc1 {LOADER}
    """)
    NACC = 16 * NB
    FS = 16 + 4 * NB
    F = [NACC, NACC + FS]
    R = NACC + 2 * FS
    vA = [R + t for t in range(4)]; vB = R + 4; vO = R + 5; T0 = R + 6
    acc = lambda t, u: 4 * (NB * t + u)
    a(f"""
    s_and_b32 s14, s3, 1
    s_lshr_b32 s15, s3, 1
    v_lshrrev_b32 v{T0}, 2, v0
    v_and_b32 v{T0+1}, 7, v{T0}
    v_and_b32 v{T0+2}, 3, v0
    v_lshlrev_b32 v{T0+2}, 3, v{T0+2}
    v_lshl_add_u32 v{T0+2}, v{T0}, 8, v{T0+2}
    v_add_u32 v{T0+2}, {HB}, v{T0+2}
    s_lshl_b32 s16, s14, 2
    v_xor_b32 v{T0+1}, s16, v{T0+1}
    """)
    for t in range(4):
        a(f"v_xor_b32 v{T0+3}, {t}, v{T0+1}\nv_lshl_add_u32 v{vA[t]}, v{T0+3}, 5, v{T0+2}")
    a(f"""
    s_mul_i32 s16, s15, {NB*1024}
    v_lshlrev_b32 v{vB}, 4, v0
    v_add_u32 v{vB}, s16, v{vB}
    v_and_b32 v{T0}, 15, v0
    v_bfe_u32 v{T0+1}, v0, 4, 1
    v_lshrrev_b32 v{T0+2}, 5, v0
    v_lshlrev_b32 v{vO}, 11, v{T0}
    v_lshl_add_u32 v{vO}, v{T0+1}, 5, v{vO}
    v_lshl_add_u32 v{vO}, v{T0+2}, 4, v{vO}
    s_lshl_b32 s16, s19, 22
    s_mul_i32 s17, s12, {HS*16*2048}
    s_add_u32 s16, s16, s17
    s_mul_i32 s17, s15, {NB*16*2048}
    s_add_u32 s16, s16, s17
    s_lshl_b32 s17, s13, 8
    s_add_u32 s16, s16, s17
    s_lshl_b32 s17, s14, 7
    s_add_u32 s16, s16, s17
    s_waitcnt lgkmcnt(0)
    """)
    srd_off(a, 24, 8, 16, PART_OFF, (4 if NB == 8 else 2) * 4 * MB)
    for i in range(NACC): a(f"v_mov_b32 v{i}, 0")
    def reads(f, sub):
        rdA = lambda t: [f"ds_read_b64_tr_b16 {vr(f+4*t,2)}, v{vA[t]} offset:{8192*sub}",
                         f"ds_read_b64_tr_b16 {vr(f+4*t+2,2)}, v{vA[t]} offset:{8192*sub+4096}"]
        rdB = lambda u: f"ds_read_b128 {vr(f+16+4*u,4)}, v{vB} offset:{(sub*HS+u)*1024}"
        o = rdA(0) + [rdB(u) for u in range(NB)]
        for t in range(1, 4): o += rdA(t)
        return o
    def mf(f):
        return [mfma16(acc(t, u), f + 4 * t, f + 16 + 4 * u) for t in range(4) for u in range(NB)]
    a(f"s_mov_b32 s33, {STAGE}\ns_mov_b32 s30, 0\ns_mov_b32 s31, {STEPS}\ns_barrier")
    stamp(a,1)
    a.ext(reads(F[0], 0))
    if opt("NORD"): a.ext(reads(F[1], 1))
    a(f"{LOOP}:")
    a(f"""
    s_add_u32 s30, s30, {STAGE}
    s_cmp_eq_u32 s30, {LDS}
    s_cselect_b32 s32, {(-(LDS-STAGE)) & 0xffffffff}, s33
    s_cselect_b32 s30, 0, s30
    s_waitcnt lgkmcnt(0)
    """)
    upd = [f"v_add_u32 v{r}, s32, v{r}" for r in vA + [vB]]
    a.ext(interleave(mf(F[0]), ([] if opt('NORD') else reads(F[1], 1)) + upd, per=1 if NB == 8 else 2))
    a("s_waitcnt lgkmcnt(0)\ns_barrier")
    a.ext(interleave(mf(F[1]), [] if opt('NORD') else reads(F[0], 0)))
    a(f"s_sub_u32 s31, s31, 1\ns_cmp_lg_u32 s31, 0\ns_cbranch_scc1 {LOOP}")
    stamp(a,2)
    a("s_waitcnt lgkmcnt(0)\ns_mov_b32 s36, 0\ns_nop 7")
    PK = [NACC, NACC + 8]
    for u in range(NB):
        pk = PK[u & 1]
        for t in range(4):
            b = acc(t, u)
            a(f"v_cvt_pk_bf16_f32 v{pk+2*t}, v{b}, v{b+1}\nv_cvt_pk_bf16_f32 v{pk+2*t+1}, v{b+2}, v{b+3}")
        a("s_nop 1")
        for T in range(2):
            a(f"v_permlane16_swap_b32 v{pk+4*T}, v{pk+4*T+2}\nv_permlane16_swap_b32 v{pk+4*T+1}, v{pk+4*T+3}")
        for T in range(2):
            a(f"buffer_store_dwordx4 {vr(pk+4*T,4)}, v{vO}, s[24:27], s36 offen offset:{64*T}")
        a(f"s_add_u32 s36, s36, {16*2048}")
    stamp(a,3)
    if common.STAMPS: a("s_waitcnt vmcnt(0)")
    stamp(a,4); stamp_dump(a,3,v=2)
    a("s_endpgm")
    a(f"{LOADER}:")
    VH = 8; VW = 12
    a(f"""
    s_sub_u32 s3, s3, 4
    s_mul_i32 s30, s3, {HS//2*1024}
    v_lshlrev_b32 v{VH}, 4, v0
    v_add_u32 v{VH}, s30, v{VH}
    v_add_u32 v{VH+1}, 4096, v{VH}
    v_lshrrev_b32 v1, 4, v0
    s_lshl_b32 s16, s3, 4
    v_add_u32 v1, s16, v1
    v_bfe_u32 v2, v0, 1, 3
    v_and_b32 v5, 1, v0
    v_lshlrev_b32 v5, 4, v5
    """)
    for n in range(4):
        a(f"""
        v_add_u32 v3, {4*n}, v1
        v_and_b32 v4, 7, v3
        v_xor_b32 v4, v4, v2
        v_lshl_add_u32 v4, v4, 5, v5
        v_lshl_add_u32 v{VW+n}, v3, 11, v4
        """)
        if n: a(f"v_subrev_u32 v{VW+n}, {1024*n}, v{VW+n}")
    a(f"""
    s_mul_i32 s16, s12, 112
    s_mul_i32 s17, s19, {2*STEPS}
    s_add_u32 s16, s16, s17
    s_mul_i32 s16, s16, {HS*1024}
    s_mul_i32 s17, s19, {STEPS*64*2048}
    s_lshl_b32 s18, s13, 8
    s_add_u32 s17, s17, s18
    s_waitcnt lgkmcnt(0)
    """)
    srd_off(a, 20, 8, 16, H_OFF, H_BYTES)
    srd_off(a, 24, 4, 17, 0, 3584 * 2048)
    a(f"""
    s_lshl_b32 s31, s3, 12
    s_add_u32 s31, s31, {HB}
    s_mov_b32 s32, 0
    s_mov_b32 s33, 0
    s_mov_b32 s34, 0
    """)
    def issue():
        a(f"s_add_u32 m0, s31, s34\ns_nop 0")
        for n in range(4):
            a(f"buffer_load_dwordx4 v{VW+n}, s[24:27], s33 offen offset:{1024*n} lds")
        a(f"s_add_u32 m0, s30, s34\ns_add_u32 s33, s33, {64*2048}")
        for n in range(4):
            a(f"buffer_load_dwordx4 v{VH}, s[20:23], s32 offen offset:{1024*n} lds")
        if NB == 8:
            a(f"s_add_u32 m0, m0, 4096\ns_nop 0")
            for n in range(4):
                a(f"buffer_load_dwordx4 v{VH+1}, s[20:23], s32 offen offset:{1024*n} lds")
        a(f"""
        s_add_u32 s34, s34, {STAGE}
        s_add_u32 s32, s32, {HB}
        s_cmp_eq_u32 s34, {LDS}
        s_cselect_b32 s34, 0, s34
        """)
    for i in range(NST): issue()
    a(f"s_waitcnt vmcnt({(NST-1)*NI})\ns_barrier\ns_mov_b32 s35, {STEPS-NST}\n{LL}:\ns_waitcnt vmcnt({(NST-2)*NI})\ns_barrier")
    if not opt("NODMA"): issue()
    a(f"s_sub_u32 s35, s35, 1\ns_cmp_lg_u32 s35, 0\ns_cbranch_scc1 {LL}")
    for j in range(NST - 2, -1, -1):
        a(f"s_waitcnt vmcnt({j*NI})\ns_barrier")
    a("s_barrier")
    a(f"{END}:\ns_endpgm")
    return f"; @launch kernel={name} grid=(256,1,1) block=(512,1,1) lds={LDS}", kernel_desc(name, max(T0 + 4, 24))
```

```python
import re
TRANS = ("v_exp_f32","v_log_f32","v_rcp_f32","v_rsq_f32","v_sqrt_f32","v_sin_f32","v_cos_f32","v_rcp_iflag_f32")
def regs(tok):
    tok = tok.strip().lstrip("-").strip("|")
    m = re.fullmatch(r"([vsa])\[(\d+):(\d+)\]", tok)
    if m: return {(m.group(1), i) for i in range(int(m.group(2)), int(m.group(3)) + 1)}
    m = re.fullmatch(r"([vsa])(\d+)", tok)
    if m: return {(m.group(1), int(m.group(2)))}
    if tok == "vcc": return {("s", 106), ("s", 107)}
    if tok == "exec": return {("s", 126), ("s", 127)}
    if tok == "m0": return {("s", 124)}
    return set()
class I:
    def __init__(self, line):
        self.line = line
        s = line.split(";")[0].strip()
        p = s.split(None, 1)
        self.op = op = p[0]
        rest = p[1] if len(p) > 1 else ""
        ops = [o.strip() for o in re.sub(r"\s+\w+:\[[\d,]+\]", "", rest).split(",")]
        if ops:
            last = ops[-1].split()
            mods = " ".join(last[1:]) if last else ""
            ops[-1] = last[0] if last else ""
        self.mods = rest
        R = [regs(o) for o in ops]
        self.mfma = op.startswith("v_mfma")
        self.valu = op.startswith("v_") and not self.mfma
        self.vmem = op.startswith(("buffer_", "global_"))
        self.ds = op.startswith("ds_")
        self.salu = op.startswith("s_")
        self.trans = op.replace("_e32","").replace("_e64","") in TRANS
        self.dpp = self.valu and bool(re.search(r"row_|quad_perm|wave_", rest))
        self.perml = op.startswith("v_permlane")
        self.rdl = op.startswith(("v_readlane", "v_readfirstlane"))
        self.dot = op.startswith("v_dot")
        self.lds_dma = self.vmem and bool(re.search(r"\blds\b", rest))
        self.passes = (8 if "32x32x16" in op else 4) if self.mfma else 0
        self.states = 1
        if op == "s_nop": self.states = int(ops[0]) + 1
        U = lambda L: set().union(*L) if L else set()
        store = op.startswith(("buffer_store", "global_store", "ds_write", "ds_add", "buffer_atomic", "global_atomic")) or self.lds_dma or op.startswith(("s_cmp", "s_cbranch", "s_waitcnt", "s_nop", "s_barrier", "s_endpgm", "s_branch", "s_setprio", "s_sleep", "buffer_inv", "buffer_wbl2", "s_bitcmp"))
        self.widestore = set()
        if store:
            self.w = set(); self.r = U(R)
            if re.match(r"(buffer|global)_store_dwordx[34]", op):
                self.widestore = R[0] if op.startswith("buffer") else R[1]
            if "atomic" in op and re.search(r"\bsc0\b", rest): self.w = R[0]
        elif self.perml or op.startswith("v_swap"):
            self.w = U(R[:2]); self.r = U(R)
        elif re.match(r"v_(add|sub|subrev|addc|subb)_co", op):
            self.w = U(R[:2]); self.r = U(R[2:])
        else:
            self.w = R[0] if R else set(); self.r = U(R[1:])
            if re.match(r"v_(fmac|pk_fmac|dot2c|mac|writelane)", op) or self.dpp or "d16" in op or "sdwa" in op: self.r |= self.w
            if op.startswith("v_cndmask") and len(ops) == 3: self.r |= regs("vcc")
            if op.startswith("v_cmpx"): self.w |= regs("exec")
            if "saveexec" in op: self.w |= regs("exec")
        self.srcC = R[3] if self.mfma else set()
        self.srcAB = (R[1] | R[2]) if self.mfma else set()
        self.opsel = self.valu and ("sdwa" in op and "dst_sel" in rest and "dst_sel:DWORD" not in rest)
def need(p, c):
    n = 0
    V = lambda S: {x for x in S if x[0] in "va"}
    S = lambda X: {x for x in X if x[0] == "s"}
    if p.valu:
        wv = V(p.w); ws = S(p.w)
        if c.mfma and wv & c.r: n = max(n, 2)
        if (c.dpp or c.perml) and wv & c.r: n = max(n, 2)
        if c.rdl and wv & c.r: n = max(n, 1)
        if p.trans and c.valu and not c.trans and wv & c.r: n = max(n, 1)
        if p.opsel and c.valu and wv & (c.r | c.w): n = max(n, 1)
        if p.dot and (c.valu or c.mfma or c.vmem or c.ds) and wv & (c.r | c.w):
            if not (c.op == p.op and not (wv & (c.r - c.w))): n = max(n, 3)
        if ws:
            if c.vmem and ws & c.r: n = max(n, 5)
            if c.valu and ws & c.r: n = max(n, 4 if c.op.startswith(("v_readlane", "v_writelane")) else 2)
            if ("s", 126) in ws:
                if c.dpp: n = max(n, 5)
                if c.mfma or c.perml or c.rdl: n = max(n, 4)
    if p.mfma:
        big = 8 if p.passes == 4 else 12
        if c.mfma:
            if p.w & c.srcAB: n = max(n, big)
            if p.w & c.srcC and not (p.w == c.srcC and p.passes == c.passes): n = max(n, big - 2)
            if p.w & c.w and not (p.w & c.srcC): n = max(n, big)
        elif (c.valu or c.vmem or c.ds) and p.w & (c.r | c.w): n = max(n, big)
        if c.valu and p.srcC & c.w: n = max(n, 3 if p.passes == 4 else 7)
    if p.widestore and p.widestore & c.w: n = max(n, 2 if c.valu else 1)
    if p.salu and ("s", 124) in p.w and c.lds_dma: n = max(n, 1)
    return n
def is_instr(l):
    s = l.strip()
    return s and not s.endswith(":") and not s.startswith((".", ";"))
W = 14
def deficit(hist, c):
    d = 0; dist = 0
    for p in reversed(hist):
        d = max(d, need(p, c) - dist)
        dist += p.states
        if dist >= W: break
    return d
def fix(lines, verbose=False):
    out = []; hist = []; added = 0
    for l in lines:
        if not is_instr(l):
            out.append(l); continue
        c = I(l)
        d = deficit(hist, c)
        if d > 0:
            nop = f"    s_nop {d-1}"
            out.append(nop); hist.append(I(nop)); added += 1
            if verbose: print("hazard pad", d, "before", l.strip())
        out.append(l); hist.append(c)
        if c.op in ("s_endpgm", "s_branch"): hist = []
        hist = hist[-W:]
    labels = {l.strip()[:-1]: i for i, l in enumerate(out) if l.strip().endswith(":")}
    for i, l in enumerate(out):
        if is_instr(l) and l.split()[0].startswith(("s_cbranch", "s_branch")):
            tgt = labels[l.split()[1]]
            h = [I(x) for x in out[max(0, i - 40):i + 1] if is_instr(x)][-W:]
            for x in out[tgt:tgt + 40]:
                if not is_instr(x): continue
                c = I(x)
                if deficit(h, c) > 0: raise SystemExit(f"hazard across branch {l.strip()} -> {x.strip()}")
                h.append(c)
    return out, added
```

```python
from common import *
import common

def nk(r):
    return 8 * (r // 4) + r % 4

def trig(kf, base, ns, T, sink):
    o = []
    for g0 in range(0, len(ns), 4):
        grp = list(range(g0, min(g0 + 4, len(ns))))
        for x, i in enumerate(grp):
            o.append(f"v_fmamk_f32 v{T+x}, v{kf}, {fhex(float(ns[i]))}, v{base}" if ns[i] else f"v_mov_b32 v{T+x}, v{base}")
        o += sink(grp, T)
    return o
def sink_f32(C, S):
    def f(grp, T):
        o = []
        for x, i in enumerate(grp): o += [f"v_cos_f32 v{C+i}, v{T+x}", f"v_sin_f32 v{S+i}, v{T+x}"]
        return o
    return f
def sink_pack(specs):
    def f(grp, T):
        o = []
        for x, i in enumerate(grp): o += [f"v_cos_f32 v{T+4+x}, v{T+x}", f"v_sin_f32 v{T+8+x}, v{T+x}"]
        for x, i in enumerate(grp):
            for d, lo, hi in specs:
                R = lambda s: ("-" if s[0] == "-" else "") + f"v{T+(4 if s[-1]=='c' else 8)+x}"
                o.append(f"v_cvt_pk_bf16_f32 v{d+i}, {R(lo)}, {R(hi)}")
        return o
    return f
def cmul(RE, IM, C, S, conj, T, DST, swap):
    o = []
    for r0 in range(0, 16, 4):
        for x, r in enumerate((r0, r0 + 2)):
            o.append(f"v_pk_mul_f32 {vr(T+4*x,2)}, {vr(RE+r,2)}, {vr(C+r,2)}")
            o.append(f"v_pk_mul_f32 {vr(T+4*x+2,2)}, {vr(IM+r,2)}, {vr(C+r,2)}")
        neg = " neg_lo:[1,0,0] neg_hi:[1,0,0]"
        for x, r in enumerate((r0, r0 + 2)):
            o.append(f"v_pk_fma_f32 {vr(T+4*x,2)}, {vr(IM+r,2)}, {vr(S+r,2)}, {vr(T+4*x,2)}" + ("" if conj else neg))
            o.append(f"v_pk_fma_f32 {vr(T+4*x+2,2)}, {vr(RE+r,2)}, {vr(S+r,2)}, {vr(T+4*x+2,2)}" + (neg if conj else ""))
        for x, r in enumerate((r0, r0 + 2)):
            for e in range(2):
                re, im = T + 4 * x + e, T + 4 * x + 2 + e
                o.append(f"v_cvt_pk_bf16_f32 v{DST+r+e}, v{im if swap else re}, v{re if swap else im}")
    return o
def rbf(v):
    return [f"v_cvt_pk_bf16_f32 v{v}, v{v}, v{v}", f"v_and_b32 v{v}, 0xffff0000, v{v}"]
def ror_reduce(v):
    return [f"v_add_f32_dpp v{v}, v{v}, v{v} row_ror:{k} row_mask:0xf bank_mask:0xf" for k in (8, 4, 2, 1)]

def kB(a, name):
    kernel_begin(a, name)
    END = a.label("bend")
    X = 2; F = 20; WR = 52; WI = 68; NW = 84
    C1c, C1s, C2a, C2c, TC, TS = 88, 96, 104, 120, 136, 152
    ACC = 168; T = 232; vL16 = 244; vT = 245; vZ = 246; vH = 247; vK = 248
    PB = 16384; PP = 8448
    a(f"""
    s_cmp_ge_u32 s2, 256
    s_cbranch_scc1 {END}
    """)
    stamp(a, 0)
    a(f"""
    s_load_dwordx4 s[4:7], s[0:1], 0
    s_load_dwordx2 s[10:11], s[0:1], 16
    s_load_dwordx2 s[8:9], s[0:1], {KA['ws']}
    v_lshrrev_b32 v1, 6, v0
    v_mov_b32 v{vK}, v0
    v_and_b32 v0, 63, v0
    v_readfirstlane_b32 s3, v1
    s_lshr_b32 s12, s2, 5
    s_and_b32 s13, s2, 31
    s_lshl_b32 s12, s12, 7
    s_add_u32 s12, s12, s13
    s_lshl_b32 s13, s3, 5
    s_add_u32 s12, s12, s13
    s_lshl_b32 s14, s12, 11
    s_add_u32 s15, s14, {2*MB}
    s_mul_i32 s16, s12, 2052
    v_lshlrev_b32 v{vL16}, 4, v0
    v_and_b32 v1, 31, v0
    v_lshrrev_b32 v{vH}, 5, v0
    v_lshlrev_b32 v{T}, 1, v1
    v_lshl_add_u32 v{T}, v{vH}, 7, v{T}
    v_mov_b32 v{vZ}, 0
    s_waitcnt lgkmcnt(0)
    """)
    srd_off(a, 20, 4, None, 0, 4 * MB)
    srd_off(a, 24, 6, None, 0, 2048 * 1026)
    srd_off(a, 28, 10, None, 0, 2048 * 1026)
    for r in range(2):
        for e in range(2):
            a(f"buffer_load_dwordx4 {vr(X+8*r+4*e,4)}, v{vL16}, s[20:23], s{14+r} offen offset:{1024*e}")
    for b in range(4):
        for p in range(2):
            for t in range(2):
                off = 1026 * p + 256 * b + 64 * t
                a(f"buffer_load_ushort v{WR+4*b+t+2*p}, v{T}, s[24:27], s16 offen offset:{off}")
                a(f"buffer_load_ushort v{WI+4*b+t+2*p}, v{T}, s[28:31], s16 offen offset:{off}")
    for p in range(2):
        a(f"buffer_load_ushort v{NW+2*p}, v{vZ}, s[24:27], s16 offen offset:{1026*p+1024}")
        a(f"buffer_load_ushort v{NW+2*p+1}, v{vZ}, s[28:31], s16 offen offset:{1026*p+1024}")
    srd_off(a, 32, 8, None, XN_OFF, 4 * MB)
    a(f"s_mul_i32 s17, s2, {PW_PITCH}")
    srd_off(a, 36, 8, 17, PW_OFF, PW_BYTES)
    a(f"s_mov_b32 s38, {PW_PITCH}")
    kf, bs, hf, ph = ACC, ACC + 1, ACC + 2, 249
    a(f"""
    v_cvt_f32_u32 v{kf}, v1
    v_cvt_f32_u32 v{hf}, v{vH}
    v_cvt_f32_u32 v{ph}, s12
    v_mul_f32 v{kf}, {fhex(1/32)}, v{kf}
    v_mul_f32 v{ph}, {fhex(1/2048)}, v{ph}
    v_mul_f32 v{bs}, 8.0, v{hf}
    v_mul_f32 v{bs}, v{bs}, v{kf}
    """.replace("8.0", fhex(8.0)))
    TT = ACC + 4
    def s1(grp, T_):
        o = []
        for x, i in enumerate(grp): o += [f"v_cos_f32 v{T_+4+x}, v{T_+x}", f"v_sin_f32 v{T_+8+x}, v{T_+x}"]
        for x in (0, 2):
            i = grp[x] // 2
            o.append(f"v_cvt_pk_bf16_f32 v{C1c+i}, v{T_+4+x}, v{T_+5+x}")
            o.append(f"v_cvt_pk_bf16_f32 v{C1s+i}, -v{T_+8+x}, -v{T_+9+x}")
        return o
    a.ext(trig(kf, bs, [16 * (j // 8) + j % 8 for j in range(16)], TT, s1))
    a(f"""
    v_mul_f32 v{kf}, {fhex(1/32)}, v{kf}
    v_mul_f32 v{bs}, 4.0, v{hf}
    v_mul_f32 v{bs}, v{bs}, v{kf}
    """)
    NS = [nk(r) for r in range(16)]
    a.ext(trig(kf, bs, NS, TT, sink_f32(TC, TS)))
    a(f"""
    v_lshrrev_b32 v{kf}, 1, v1
    v_and_b32 v{bs}, 1, v1
    v_cvt_f32_u32 v{kf}, v{kf}
    v_cvt_f32_u32 v{bs}, v{bs}
    v_mul_f32 v{kf}, {fhex(1/32)}, v{kf}
    v_mul_f32 v{bs}, {fhex(0.25)}, v{bs}
    v_mul_f32 v{hf}, 4.0, v{hf}
    v_fmac_f32 v{bs}, v{hf}, v{kf}
    """)
    a.ext(trig(kf, bs, NS, TT, sink_pack([(C2a, "c", "s")])))
    a(f"v_add_f32 v{bs}, v{bs}, v{ph}")
    a.ext(trig(kf, bs, NS, TT, sink_pack([(C2c, "c", "s")])))
    a(f"""
    v_bfe_u32 v{T}, v0, 2, 2
    v_lshl_add_u32 v{T}, v{vH}, 3, v{T}
    v_lshlrev_b32 v{vT}, 6, v{T}
    v_bfe_u32 v{T}, v0, 4, 1
    v_lshl_add_u32 v{vT}, v{T}, 5, v{vT}
    v_and_b32 v{T}, 3, v0
    v_lshl_add_u32 v{vT}, v{T}, 3, v{vT}
    s_lshl_b32 s18, s3, 12
    v_add_u32 v{vT}, s18, v{vT}
    v_add_u32 v{T+11}, s18, v{vL16}
    s_waitcnt vmcnt(36)
    """)
    stamp(a, 1)
    for i in range(16):
        a(f"v_lshlrev_b32 v{F+2*i}, 16, v{X+i}\nv_and_b32 v{F+2*i+1}, 0xffff0000, v{X+i}")
    Q = ACC
    for r in range(2):
        for i in range(4): a(f"v_pk_add_f32 {vr(Q+8*r+2*i,2)}, {vr(F+16*r+4*i,2)}, {vr(F+16*r+4*i+2,2)}")
    for r in range(2):
        for i in range(2): a(f"v_pk_add_f32 {vr(Q+8*r+4*i,2)}, {vr(Q+8*r+4*i,2)}, {vr(Q+8*r+4*i+2,2)}")
    for r in range(2): a(f"v_pk_add_f32 {vr(Q+8*r,2)}, {vr(Q+8*r,2)}, {vr(Q+8*r+4,2)}")
    for r in range(2): a(f"v_add_f32 v{T+2*r}, v{Q+8*r}, v{Q+8*r+1}\nv_sub_f32 v{T+2*r+1}, v{Q+8*r}, v{Q+8*r+1}")
    a(f"""
    v_permlane16_swap_b32 v{T}, v{T+1}
    v_permlane16_swap_b32 v{T+2}, v{T+3}
    v_add_f32 v{T}, v{T}, v{T+1}
    v_add_f32 v{T+2}, v{T+2}, v{T+3}
    v_permlane32_swap_b32 v{T}, v{T+2}
    v_add_f32 v{T}, v{T}, v{T+2}
    """)
    a.ext(ror_reduce(T))
    a(f"v_mul_f32 v{T+1}, {fhex(1/1024)}, v{T}\nv_mov_b32 v{T+2}, v{T+1}")
    a.ext(rbf(T + 2))
    a(f"""
    v_sub_f32 v{T+3}, v{T+1}, v{T+2}
    v_readlane_b32 s40, v{T+2}, 0
    v_readlane_b32 s42, v{T+2}, 32
    v_readlane_b32 s44, v{T}, 16
    v_readlane_b32 s45, v{T}, 48
    """)
    for r in range(2):
        for i in range(8):
            a(f"v_pk_add_f32 {vr(F+16*r+2*i,2)}, {vr(F+16*r+2*i,2)}, s[{40+2*r}:{41+2*r}] op_sel_hi:[1,0] neg_lo:[0,1] neg_hi:[0,1]")
    for i in range(4):
        for r in range(2):
            for c in range(2):
                s = vr(F + 16 * r + 4 * i + 2 * c, 2); d = vr(Q + 4 * r + 2 * c, 2)
                a(f"v_pk_mul_f32 {d}, {s}, {s}" if i == 0 else f"v_pk_fma_f32 {d}, {s}, {s}, {d}")
    for r in range(2): a(f"v_pk_add_f32 {vr(Q+4*r,2)}, {vr(Q+4*r,2)}, {vr(Q+4*r+2,2)}")
    for r in range(2): a(f"v_add_f32 v{T+4+r}, v{Q+4*r}, v{Q+4*r+1}")
    a(f"""
    v_permlane32_swap_b32 v{T+4}, v{T+5}
    v_add_f32 v{T+4}, v{T+4}, v{T+5}
    v_mov_b32 v{T+5}, v{T+4}
    v_permlane16_swap_b32 v{T+4}, v{T+5}
    v_add_f32 v{T+4}, v{T+4}, v{T+5}
    """)
    a.ext(ror_reduce(T + 4))
    a(f"""
    v_mul_f32 v{T+4}, {fhex(1/1024)}, v{T+4}
    v_fma_f32 v{T+4}, -v{T+3}, v{T+3}, v{T+4}
    v_max_f32 v{T+4}, 0, v{T+4}
    """)
    a.ext(rbf(T + 4))
    a(f"v_add_f32 v{T+4}, {fhex(1e-5)}, v{T+4}")
    a.ext(rbf(T + 4))
    a(f"v_sqrt_f32 v{T+4}, v{T+4}")
    a.ext(rbf(T + 4))
    a(f"""
    v_rcp_f32 v{T+4}, v{T+4}
    s_nop 0
    v_readlane_b32 s40, v{T+4}, 0
    v_readlane_b32 s42, v{T+4}, 32
    """)
    for r in range(2):
        for i in range(8):
            a(f"v_pk_mul_f32 {vr(F+16*r+2*i,2)}, {vr(F+16*r+2*i,2)}, s[{40+2*r}:{41+2*r}] op_sel_hi:[1,0]")
    for i in range(16): a(f"v_cvt_pk_bf16_f32 v{X+i}, v{F+2*i}, v{F+2*i+1}")
    for r in range(2):
        for e in range(2):
            a(f"buffer_store_dwordx4 {vr(X+8*r+4*e,4)}, v{vL16}, s[32:35], s{14+r} offen offset:{1024*e}")
    AC = ACC
    for i in range(8):
        a(f"v_pk_add_f32 {vr(AC+2*i,2)}, {vr(F+2*i,2)}, {vr(F+16+2*i,2)}")
        a(f"v_pk_add_f32 {vr(AC+16+2*i,2)}, {vr(F+2*i,2)}, {vr(F+16+2*i,2)} neg_lo:[0,1] neg_hi:[0,1]")
    for i in range(16): a(f"v_cvt_pk_bf16_f32 v{AC+32+i}, v{AC+2*i}, v{AC+2*i+1}")
    for i in range(4): a(f"ds_write_b128 v{T+11}, {vr(AC+32+4*i,4)} offset:{1024*i}")
    a(f"""
    v_mov_b32 v{T}, s40
    v_mov_b32 v{T+1}, s42
    v_mul_f32 v{T}, s44, v{T}
    v_mul_f32 v{T+1}, s45, v{T+1}
    v_cos_f32 v{T+2}, v{ph}
    v_sin_f32 v{T+3}, v{ph}
    v_add_f32 v{T+4}, v{T}, v{T+1}
    v_sub_f32 v{T+5}, v{T}, v{T+1}
    v_mul_f32 v{T+4}, 0.5, v{T+4}
    v_mul_f32 v{T+5}, 0.5, v{T+5}
    v_mul_f32 v{T+2}, v{T+2}, v{T+5}
    v_mul_f32 v{T+3}, v{T+3}, v{T+5}
    v_cvt_pk_bf16_f32 v{T+4}, v{T+4}, 0
    v_mov_b32 v{T+5}, 0
    v_cvt_pk_bf16_f32 v{T+6}, v{T+2}, -v{T+3}
    v_mov_b32 v{T+7}, 0
    s_waitcnt lgkmcnt(0)
    """)
    A1 = F
    for r in range(2):
        for b in range(2):
            for e in range(2):
                a(f"ds_read_b64_tr_b16 {vr(A1+8*r+4*b+2*e,2)}, v{vT} offset:{2048*r+1024*b+256*e}")
    a(f"""
    s_mul_i32 s18, s3, {PP}
    s_add_u32 s18, s18, {PB}
    v_lshl_add_u32 v{T+10}, v0, 5, s18
    v_mov_b32 v{T+9}, s18
    s_waitcnt vmcnt(4)
    """)
    for i in range(16): a(f"v_lshl_or_b32 v{WR+i}, v{WI+i}, 16, v{WR+i}")
    a(f"""
    v_lshl_or_b32 v{NW}, v{NW+1}, 16, v{NW}
    v_lshl_or_b32 v{NW+2}, v{NW+3}, 16, v{NW+2}
    v_mov_b32 v{NW+1}, 0
    v_mov_b32 v{NW+3}, 0
    s_waitcnt lgkmcnt(0)
    """)
    for r in range(2):
        for b in range(2):
            a(mfma32(ACC + 32 * r, A1 + 8 * r + 4 * b, C1c + 4 * b, "0" if b == 0 else None))
            a(mfma32(ACC + 32 * r + 16, A1 + 8 * r + 4 * b, C1s + 4 * b, "0" if b == 0 else None))
    for b in range(4): a(f"ds_write_b128 v{T+10}, {vr(WR+4*b,4)} offset:{2048*b+16}")
    a(f"""
    s_mov_b64 exec, 1
    ds_write_b128 v{T+9}, {vr(T+4,4)} offset:8192
    ds_write_b128 v{T+9}, {vr(NW,4)} offset:8208
    s_mov_b64 exec, -1
    v_cmp_eq_u32 vcc, 0, v0
    v_mov_b32 v{T+8}, 1.0
    v_cndmask_b32 v{T+8}, v{T+8}, 0.5, vcc
    """)
    PV = WI
    for r in range(2):
        a.ext(cmul(ACC + 32 * r, ACC + 32 * r + 16, TC, TS, True, T, X if r == 0 else F + 16, False))
        D = X if r == 0 else F + 16
        for b in range(4):
            a(mfma32(ACC + 32 * r, (C2c if r else C2a) + 4 * b, D + 4 * b, "0" if b == 0 else None))
    for r in range(2):
        P = ACC + 32 * r
        a(f"v_mul_f32 v{P}, v{P}, v{T+8}\nv_mul_f32 v{P+1}, v{P+1}, v{T+8}")
        for b in range(4):
            for t in range(2):
                a(f"v_cvt_pk_bf16_f32 v{PV+4*b+t+2*r}, v{P+4*b+2*t}, v{P+4*b+2*t+1}")
    for b in range(4): a(f"ds_write_b128 v{T+10}, {vr(PV+4*b,4)} offset:{2048*b}")
    a(f"""
    s_bfe_u32 s18, s2, 0x30001
    v_xor_b32 v{T}, s18, v{vK}
    v_lshlrev_b32 v{T}, 2, v{T}
    v_add_u32 v{T}, {PB}, v{T}
    v_lshlrev_b32 v{T+1}, 4, v{vK}
    s_waitcnt lgkmcnt(0)
    s_barrier
    """)
    stamp(a, 2)
    for n in range(9):
        for c in range(2):
            a(f"ds_read2st64_b32 {vr(ACC+4*n+2*c,2)}, v{T} offset0:{66*c+4*n} offset1:{66*c+33+4*n}")
    for n in range(9):
        a(f"s_mov_b32 s18, {4096*n}\ns_waitcnt lgkmcnt({min(15, 2*(8-n))})")
        a(f"buffer_store_dwordx4 {vr(ACC+4*n,4)}, v{T+1}, s[36:39], s18 offen")
    stamp(a, 3)
    if common.STAMPS: a("s_waitcnt vmcnt(0)")
    stamp(a, 4); stamp_dump(a, 0)
    a(f"{END}:\ns_endpgm")
    return f"; @launch kernel={name} grid=(256,1,1) block=(256,1,1) lds={PB+4*PP+1024}", kernel_desc(name, 252)

def kC(a, name):
    kernel_begin(a, name)
    END = a.label("cend")
    FR, FI, TC, TS = 4, 20, 36, 52
    P = 68; W = 84; WR = 100; WI = 116; A0 = 132; A1 = 148; B0 = 164; B1 = 180; T = 196
    vK = 208; vH = 209; vP = 210; vW = 211
    OB = 32768
    a(f"""
    s_cmp_ge_u32 s2, 257
    s_cbranch_scc1 {END}
    """)
    stamp(a, 0)
    a(f"""
    s_load_dwordx2 s[8:9], s[0:1], {KA['ws']}
    v_lshrrev_b32 v1, 6, v0
    v_mov_b32 v{vK}, v0
    v_and_b32 v0, 63, v0
    v_readfirstlane_b32 s3, v1
    v_lshrrev_b32 v2, 3, v0
    v_mul_u32_u24 v2, {PW_PITCH}, v2
    v_and_b32 v3, 7, v0
    v_lshl_add_u32 v2, v3, 4, v2
    s_lshl_b32 s12, s2, 7
    s_mul_i32 s13, s3, {64*PW_PITCH}
    s_lshl_b32 s14, s3, 13
    s_waitcnt lgkmcnt(0)
    """)
    srd_off(a, 20, 8, 12, PW_OFF, PW_BYTES)
    a("s_mov_b32 m0, s14")
    for n in range(8):
        if n: a(f"s_add_u32 m0, m0, 1024\ns_add_u32 s13, s13, {8*PW_PITCH}")
        a(f"buffer_load_dwordx4 v2, s[20:23], s13 offen lds")
    a(f"s_mul_i32 s12, s2, {Q_PITCH}")
    srd_off(a, 24, 8, 12, Q_OFF, Q_BYTES)
    kf, bs = A0, A0 + 1; TT = A0 + 4
    a(f"""
    v_and_b32 v1, 31, v0
    v_lshrrev_b32 v{vH}, 5, v0
    v_cvt_f32_u32 v{kf}, v1
    v_cvt_f32_u32 v{bs}, v{vH}
    v_mul_f32 v{kf}, {fhex(1/32)}, v{kf}
    v_mul_f32 v{bs}, 4.0, v{bs}
    v_mul_f32 v{bs}, v{bs}, v{kf}
    """)
    NS = [nk(r) for r in range(16)]
    a.ext(trig(kf, bs, NS, TT, sink_pack([(FR, "c", "s"), (FI, "-s", "c")])))
    a(f"v_mul_f32 v{kf}, {fhex(1/32)}, v{kf}\nv_mul_f32 v{bs}, {fhex(1/32)}, v{bs}")
    a.ext(trig(kf, bs, NS, TT, sink_f32(TC, TS)))
    a(f"""
    v_bfe_u32 v{vP}, v0, 1, 3
    v_xor_b32 v{vP}, s3, v{vP}
    v_lshlrev_b32 v{vP}, 4, v{vP}
    v_lshl_add_u32 v{vP}, v0, 7, v{vP}
    v_xor_b32 v{vW}, 64, v{vP}
    s_waitcnt vmcnt(0)
    s_barrier
    """)
    stamp(a, 1)
    for b in range(4): a(f"ds_read_b128 {vr(P+4*b,4)}, v{vP} offset:{8192*b}")
    for b in range(4): a(f"ds_read_b128 {vr(W+4*b,4)}, v{vW} offset:{8192*b}")
    def stage(D0, D1, dat, data_is_A):
        o = []
        for b in range(4):
            for D, Fc in ((D0, FR), (D1, FI)):
                x, y = (dat + 4 * b, Fc + 4 * b) if data_is_A else (Fc + 4 * b, dat + 4 * b)
                o.append(mfma32(D, x, y, "0" if b == 0 else None))
        return o
    a("s_waitcnt lgkmcnt(4)")
    a.ext(stage(A0, A1, P, True))
    a("s_waitcnt lgkmcnt(0)")
    for i in range(16): a(f"v_lshlrev_b32 v{WR+i}, 16, v{W+i}\nv_and_b32 v{WI+i}, 0xffff0000, v{W+i}")
    a.ext(cmul(A0, A1, TC, TS, True, T, P, False))
    a.ext(stage(B0, B1, P, False))
    a.ext(cmul(B0, B1, WR, WI, False, T, W, True))
    a.ext(stage(A1, A0, W, True))
    a.ext(cmul(A0, A1, TC, TS, False, T, P, True))
    a.ext(stage(B1, B0, P, False))
    a(f"""
    s_lshl_b32 s14, s3, 12
    s_add_u32 s14, s14, {OB}
    v_lshl_add_u32 v{T}, v0, 4, s14
    s_bfe_u32 s15, s2, 0x20002
    v_xor_b32 v{T+1}, s15, v{vK}
    v_lshlrev_b32 v{T+1}, 2, v{T+1}
    v_add_u32 v{T+1}, {OB}, v{T+1}
    v_lshlrev_b32 v{T+2}, 4, v{vK}
    """)
    for i in range(16): a(f"v_cvt_pk_bf16_f32 v{W+i}, v{B0+i}, v{B1+i}")
    for b in range(4): a(f"ds_write_b128 v{T}, {vr(W+4*b,4)} offset:{1024*b}")
    a("s_waitcnt lgkmcnt(0)\ns_barrier")
    stamp(a, 2)
    for n in range(4):
        for c in range(2):
            a(f"ds_read2st64_b32 {vr(P+4*n+2*c,2)}, v{T+1} offset0:{32*c+4*n} offset1:{32*c+16+4*n}")
    for n in range(4):
        a(f"s_mov_b32 s18, {4096*n}\ns_waitcnt lgkmcnt({2*(3-n)})")
        a(f"buffer_store_dwordx4 {vr(P+4*n,4)}, v{T+2}, s[24:27], s18 offen")
    stamp(a, 3)
    if common.STAMPS: a("s_waitcnt vmcnt(0)")
    stamp(a, 4); stamp_dump(a, 2)
    a(f"{END}:\ns_endpgm")
    return f"; @launch kernel={name} grid=(257,1,1) block=(256,1,1) lds={OB+16384}", kernel_desc(name, 212)

def kD(a, name, NSPLIT=4):
    kernel_begin(a, name)
    END = a.label("dend"); SK = a.label("dsk")
    G = 4
    C2 = 36; TC = 52; TS = 68
    CH = 84
    ACC = 100
    XX = 164
    B2 = 180
    PT = 188
    T = 236; NQ = 248; vO = 252; vC = 253; ph = 254; sg = 255
    a(f"""
    s_cmp_ge_u32 s2, 256
    s_cbranch_scc1 {END}
    """)
    stamp(a, 0)
    a(f"""
    s_load_dwordx2 s[4:5], s[0:1], {KA['x']}
    s_load_dwordx4 s[40:43], s[0:1], {KA['b2']}
    s_load_dwordx2 s[8:9], s[0:1], {KA['ws']}
    v_lshrrev_b32 v1, 6, v0
    v_and_b32 v0, 63, v0
    v_readfirstlane_b32 s3, v1
    v_lshrrev_b32 v2, 2, v0
    v_mul_u32_u24 v2, {Q_PITCH}, v2
    v_and_b32 v3, 3, v0
    v_lshl_add_u32 v2, v3, 4, v2
    s_lshr_b32 s12, s2, 5
    s_and_b32 s13, s2, 31
    s_lshl_b32 s12, s12, 7
    s_add_u32 s12, s12, s13
    s_lshl_b32 s13, s3, 5
    s_add_u32 s12, s12, s13
    s_lshl_b32 s14, s12, 11
    s_add_u32 s15, s14, {2*MB}
    s_lshl_b32 s16, s2, 6
    s_mul_i32 s13, s3, {64*Q_PITCH}
    s_lshl_b32 s17, s3, 12
    v_and_b32 v1, 31, v0
    v_lshrrev_b32 v3, 5, v0
    v_lshlrev_b32 v{vO}, 6, v1
    v_lshl_add_u32 v{vO}, v3, 4, v{vO}
    s_waitcnt lgkmcnt(0)
    """)
    srd_off(a, 20, 8, 16, Q_OFF, Q_BYTES)
    a("s_mov_b32 m0, s17")
    for n in range(4):
        if n: a(f"s_add_u32 m0, m0, 1024\ns_add_u32 s13, s13, {16*Q_PITCH}")
        a(f"buffer_load_dwordx4 v2, s[20:23], s13 offen lds")
    a(f"""
    s_mov_b32 m0, 16384
    s_mov_b32 s13, {256*Q_PITCH}
    s_cmp_lg_u32 s3, 0
    s_cbranch_scc1 {SK}
    buffer_load_dwordx4 v2, s[20:23], s13 offen lds
    {SK}:
    """)
    srd_off(a, 24, 4, None, 0, 4 * MB)
    srd_off(a, 28, 40, None, 0, 2048)
    srd_off(a, 32, 42, None, 0, 4 * MB)
    srd_off(a, 36, 8, None, PART_OFF, NSPLIT * 4 * MB)
    for r in range(2):
        for e in range(2): a(f"buffer_load_dwordx4 {vr(XX+8*r+4*e,4)}, v{vO}, s[24:27], s{14+r} offen offset:{32*e}")
    for e in range(2): a(f"buffer_load_dwordx4 {vr(B2+4*e,4)}, v{vO}, s[28:31], 0 offen offset:{32*e}")
    PR = [PT, PT + 16, PT + 32, CH][:NSPLIT]
    for sp in range(NSPLIT):
        for r in range(2):
            a(f"s_add_u32 s18, s{14+r}, {sp*4*MB}")
            for e in range(2): a(f"buffer_load_dwordx4 {vr(PR[sp]+8*r+4*e,4)}, v{vO}, s[36:39], s18 offen offset:{32*e}")
    kf, bs, hf = ACC, ACC + 1, ACC + 2; TT = ACC + 4
    NS = [nk(r) for r in range(16)]
    a(f"""
    v_cvt_f32_u32 v{kf}, v1
    v_cvt_f32_u32 v{hf}, v3
    v_cvt_f32_u32 v{ph}, s12
    v_mul_f32 v{kf}, {fhex(1/32)}, v{kf}
    v_mul_f32 v{hf}, 4.0, v{hf}
    v_mul_f32 v{ph}, {fhex(1/2048)}, v{ph}
    v_mul_f32 v{bs}, v{hf}, v{kf}
    """)
    a.ext(trig(kf, bs, NS, TT, sink_pack([(C2, "c", "-s")])))
    a(f"""
    v_and_b32 v{kf}, 19, v1
    v_bfe_u32 v{bs}, v1, 2, 1
    v_lshl_or_b32 v{kf}, v{bs}, 3, v{kf}
    v_bfe_u32 v{bs}, v1, 3, 1
    v_lshl_or_b32 v{kf}, v{bs}, 2, v{kf}
    v_cvt_f32_u32 v{kf}, v{kf}
    v_mul_f32 v{kf}, {fhex(1/32)}, v{kf}
    v_mul_f32 v{bs}, v{hf}, v{kf}
    """)
    a.ext(trig(kf, bs, NS[:8], TT, sink_pack([(G, "c", "-s"), (G + 8, "s", "c")])))
    a(f"v_add_f32 v{ACC+3}, v{bs}, v{ph}")
    a.ext(trig(kf, ACC + 3, NS[:8], TT, sink_pack([(G + 16, "c", "-s"), (G + 24, "s", "c")])))
    a(f"v_mul_f32 v{kf}, {fhex(1/32)}, v{kf}\nv_mul_f32 v{bs}, {fhex(1/32)}, v{bs}")
    a.ext(trig(kf, bs, NS, TT, sink_f32(TC, TS)))
    a(f"""
    v_bfe_u32 v{vC}, v0, 2, 2
    v_xor_b32 v{vC}, s3, v{vC}
    v_lshlrev_b32 v{vC}, 4, v{vC}
    v_lshl_add_u32 v{vC}, v1, 6, v{vC}
    v_lshl_add_u32 v{vC}, v3, 12, v{vC}
    v_lshlrev_b32 v{sg}, 31, v0
    v_xor_b32 v{sg}, 1.0, v{sg}
    v_cmp_gt_u32 vcc, 32, v0
    v_cndmask_b32 v{sg}, 0, v{sg}, vcc
    s_lshl_b32 s18, s3, 4
    v_mov_b32 v2, s18
    s_waitcnt vmcnt(0)
    """)
    stamp(a, 1)
    BS = 204
    BSF = ACC + 32
    a("s_barrier")
    def lo(v): return f"v_lshlrev_b32 {{}}, 16, v{v}"
    for r in range(2):
        for i in range(8):
            d = BSF + 16 * r + 2 * i
            a(f"v_lshlrev_b32 v{d}, 16, v{XX+8*r+i}\nv_and_b32 v{d+1}, 0xffff0000, v{XX+8*r+i}")
            srcs = [B2 + i] + [PR[sp] + 8 * r + i for sp in range(NSPLIT)]
            for k, s in enumerate(srcs):
                t = T + 2 * k
                a(f"v_lshlrev_b32 v{t}, 16, v{s}\nv_and_b32 v{t+1}, 0xffff0000, v{s}")
            for k, s in enumerate(srcs):
                t = T + 2 * k
                dd = PT + 16 * r + 2 * i if False else d
                a(f"v_pk_add_f32 {vr(d,2)}, {vr(d,2)}, {vr(t,2)}")
    BS = XX
    for i in range(16): a(f"v_pk_mul_f32 {vr(BS+2*i,2)}, {vr(BSF+2*i,2)}, 1.0 op_sel_hi:[1,0]")
    for b in range(2):
        for e in range(2): a(f"ds_read_b128 {vr(CH+8*b+4*e,4)}, v{vC} offset:{8192*b+2048*e}")
    a(f"ds_read_b128 {vr(NQ,4)}, v2 offset:16384")
    a(f"v_cos_f32 v{T}, v{ph}\nv_sin_f32 v{T+1}, v{ph}\ns_waitcnt lgkmcnt(0)")
    for b in range(2):
        a(f"v_swap_b32 v{CH+8*b+2}, v{CH+8*b+4}\nv_swap_b32 v{CH+8*b+3}, v{CH+8*b+5}")
    for r in range(2):
        for b in range(2):
            for c in range(2):
                a(mfma32(ACC + 32 * r + 16 * c, CH + 8 * b + 4 * r, G + 16 * r + 8 * c + 4 * b, "0" if b == 0 else None))
    a(f"""
    v_lshlrev_b32 v{NQ}, 16, v{NQ}
    v_lshlrev_b32 v{NQ+1}, 16, v{NQ+2}
    v_and_b32 v{NQ+2}, 0xffff0000, v{NQ+2}
    v_mul_f32 v{NQ+1}, v{NQ+1}, v{T}
    v_fma_f32 v{NQ+1}, -v{NQ+2}, v{T+1}, v{NQ+1}
    """)
    PKD = [200, 216]
    for r in range(2):
        a(f"v_fmac_f32 v{ACC+32*r}, v{NQ+r}, v{sg}")
        a.ext(cmul(ACC + 32 * r, ACC + 32 * r + 16, TC, TS, False, T, PKD[r], False))
        for b in range(4):
            a(mfma32(ACC + 32 * r, PKD[r] + 4 * b, C2 + 4 * b, "0" if b == 0 else None))
    a(f"s_mov_b32 s44, {fhex(2.0**-20)}")
    E = ACC; O = ACC + 32
    for i in range(8):
        for r in range(2):
            a(f"v_pk_fma_f32 {vr(BS+16*r+2*i,2)}, {vr(E+2*i,2)}, s[44:45], {vr(BS+16*r+2*i,2)} op_sel_hi:[1,0,1]")
    for i in range(8):
        for r in range(2):
            a(f"v_pk_fma_f32 {vr(BS+16*r+2*i,2)}, {vr(O+2*i,2)}, s[44:45], {vr(BS+16*r+2*i,2)} op_sel_hi:[1,0,1]" + (" neg_lo:[1,0,0] neg_hi:[1,0,0]" if r else ""))
    for i in range(16): a(f"v_cvt_pk_bf16_f32 v{CH+i}, v{BS+2*i}, v{BS+2*i+1}")
    stamp(a, 2)
    for r in range(2):
        for e in range(2): a(f"buffer_store_dwordx4 {vr(CH+8*r+4*e,4)}, v{vO}, s[32:35], s{14+r} offen offset:{32*e}")
    stamp(a, 3)
    if common.STAMPS: a("s_waitcnt vmcnt(0)")
    stamp(a, 4); stamp_dump(a, 4)
    a(f"{END}:\ns_endpgm")
    return f"; @launch kernel={name} grid=(256,1,1) block=(256,1,1) lds={17*1024}", kernel_desc(name, 256)
```

```python
import sys
from common import *
import gemm1, gemm2
def build(cfg):
    a = Asm()
    L = []; D = []
    for fn in cfg:
        l, d = fn(a); L.append(l); D.append(d)
    head = "; generated by dev/gen.py\n" + "\n".join(L) + "\n" + '.amdgcn_target "amdgcn-amd-amdhsa--gfx950"\n'
    import hazard
    a.lines, n = hazard.fix(a.lines, verbose=bool(opt('HZV')))
    print('hazard pads', n)
    return head + a.text() + "".join(D)
if __name__ == "__main__":
    import common, os
    common.STAMPS = bool(os.environ.get("STAMPS"))
    NB = int(sys.argv[2]) if len(sys.argv) > 2 else 8
    import spec
    cfg = [lambda a: spec.kB(a, "sb_kernel"),
           lambda a: gemm1.gemm1(a, "g1_kernel", HS=2*NB, xmap="8x4" if NB == 8 else "4x8"),
           lambda a: spec.kC(a, "sc_kernel"),
           lambda a: gemm2.gemm2(a, "g2_kernel", NB=NB),
           lambda a: spec.kD(a, "sd_kernel", NSPLIT=4 if NB == 8 else 2)]
    open(sys.argv[1], "w").write(build(cfg))
```

```python
from common import *
import common

G1_STAGE = 45056
G1_NST = 3
G1_LDS = G1_STAGE * G1_NST

def gelu_pairs(regs, t, c0v, c1s):
    o = []
    n = len(regs)
    T = [t + 2 * i for i in range(n)]
    for r, x in zip(regs, T): o.append(f"v_pk_mul_f32 {vr(x,2)}, {vr(r,2)}, {vr(r,2)}")
    for r, x in zip(regs, T): o.append(f"v_pk_fma_f32 {vr(x,2)}, {vr(x,2)}, {sr(c1s,2)}, {vr(c0v,2)}")
    for r, x in zip(regs, T): o.append(f"v_pk_mul_f32 {vr(x,2)}, {vr(x,2)}, {vr(r,2)}")
    for r, x in zip(regs, T):
        o.append(f"v_exp_f32 v{x}, v{x}"); o.append(f"v_exp_f32 v{x+1}, v{x+1}")
    for r, x in zip(regs, T): o.append(f"v_pk_add_f32 {vr(x,2)}, {vr(x,2)}, 1.0 op_sel_hi:[1,0]")
    for r, x in zip(regs, T):
        o.append(f"v_rcp_f32 v{x}, v{x}"); o.append(f"v_rcp_f32 v{x+1}, v{x+1}")
    for r, x in zip(regs, T): o.append(f"v_pk_mul_f32 {vr(x,2)}, {vr(x,2)}, {vr(r,2)}")
    return o

def gemm1(a, name, HS=16, xmap="8x4"):
    for Q in range(112): assert (Q * 147) >> 10 == Q // 7
    kernel_begin(a, name)
    END = a.label("g1end"); LOADER = a.label("g1ld"); LOOP = a.label("g1loop"); LL = a.label("g1ll")
    a(f"""
    s_cmp_ge_u32 s2, 256
    s_cbranch_scc1 {END}
    """)
    stamp(a,0)
    a(f"""
    s_load_dwordx2 s[4:5], s[0:1], {KA['w1']}
    s_load_dwordx2 s[6:7], s[0:1], {KA['b1']}
    s_load_dwordx2 s[8:9], s[0:1], {KA['ws']}
    v_lshrrev_b32 v1, 6, v0
    v_and_b32 v0, 63, v0
    s_and_b32 s10, s2, 7
    v_readfirstlane_b32 s3, v1
    s_lshr_b32 s11, s2, 3
    """)
    if xmap == "8x4":
        a("""
        s_lshr_b32 s12, s10, 2
        s_lshl_b32 s12, s12, 3
        s_lshr_b32 s13, s11, 2
        s_add_u32 s12, s12, s13
        s_and_b32 s13, s10, 3
        s_lshl_b32 s13, s13, 2
        s_and_b32 s14, s11, 3
        s_add_u32 s13, s13, s14
        """)
    else:
        a("""
        s_lshr_b32 s12, s10, 1
        s_lshl_b32 s12, s12, 2
        s_lshr_b32 s13, s11, 3
        s_add_u32 s12, s12, s13
        s_and_b32 s13, s10, 1
        s_lshl_b32 s13, s13, 3
        s_and_b32 s14, s11, 7
        s_add_u32 s13, s13, s14
        """)
    a(f"""
    s_cmp_ge_u32 s3, 4
    s_cbranch_scc1 {LOADER}
    """)
    VP = opt("VP"); D = opt("VPD", 7); W2S = opt("W2S", 5); XP = opt("XP")
    npro = D - 3
    def pfsetup(V):
        L1 = a.label("pf1"); L2 = a.label("pf2"); L3 = a.label("pf3")
        a(f"""
        s_load_dwordx2 s[44:45], s[0:1], {KA['w2']}
        s_mov_b32 s43, 0x20000
        s_mov_b32 s42, {1024*7168}
        s_mul_i32 s16, s2, 14
        v_add_u32 v{V}, s16, v0
        v_lshlrev_b32 v{V}, 7, v{V}
        v_cmp_gt_u32 vcc, 14, v0
        s_mov_b32 s47, 458752
        s_mov_b32 s46, {3*458752}
        s_mov_b32 s40, s4
        s_mov_b32 s41, s5
        s_waitcnt lgkmcnt(0)
        s_cmp_eq_u32 s3, 0
        s_cbranch_scc1 {L3}
        s_cmp_eq_u32 s3, 1
        s_cbranch_scc1 {L1}
        s_sub_u32 s16, s3, 2
        s_mul_i32 s16, s16, {8*458752}
        s_add_u32 s40, s44, s16
        s_addc_u32 s41, s45, 0
        s_mov_b32 s42, {8*458752 if VP > 1 else 0}
        s_mov_b32 s46, {(-(npro+W2S)*458752) & 0xffffffff}
        s_branch {L3}
        {L1}:
        s_add_u32 s40, s8, {XN_OFF}
        s_addc_u32 s41, s9, 0
        s_mov_b32 s42, {4*MB}
        s_lshl_b32 s16, s2, 3
        v_add_u32 v{V}, s16, v0
        v_lshlrev_b32 v{V}, 11, v{V}
        v_cmp_gt_u32 vcc, 8, v0
        s_mov_b32 s47, 128
        s_mov_b32 s46, {3*128}
        {L3}:
        s_nop 1
        v_mov_b32 v{V+1}, 0x7ffffff0
        v_cndmask_b32 v{V}, v{V+1}, v{V}, vcc
        """)
    ACC = 0
    F = [112, 156]
    vAe, vAo, vA6, vB0, vB1, vL = 200, 201, 202, 203, 204, 205
    BI = 208
    T0 = 224
    acc = lambda t, u: ACC + 4 * (4 * t + u)
    a(f"""
    s_and_b32 s14, s3, 1
    s_lshr_b32 s15, s3, 1
    v_mov_b32 v{vL}, v0
    v_lshrrev_b32 v{T0}, 4, v0
    v_bfe_u32 v{T0+1}, v0, 2, 2
    v_lshl_add_u32 v{T0+1}, v{T0}, 3, v{T0+1}
    v_mul_u32_u24 v{T0+1}, 448, v{T0+1}
    v_and_b32 v{T0+2}, 3, v0
    v_lshl_add_u32 v{T0+1}, v{T0+2}, 3, v{T0+1}
    v_add_u32 v{T0+1}, 16384, v{T0+1}
    v_and_b32 v{T0+2}, 1, v{T0}
    v_lshlrev_b32 v{T0+3}, 5, v{T0+2}
    s_lshl_b32 s16, s14, 8
    v_add_u32 v{T0+4}, s16, v{T0+1}
    v_add_u32 v{vAe}, v{T0+4}, v{T0+3}
    v_sub_u32 v{vAo}, v{T0+4}, v{T0+3}
    v_xor_b32 v{T0+2}, s14, v{T0+2}
    v_lshl_add_u32 v{vA6}, v{T0+2}, 5, v{T0+1}
    v_add_u32 v{vA6}, 192, v{vA6}
    v_and_b32 v{T0+2}, 15, v0
    v_bfe_u32 v{T0+3}, v0, 1, 3
    v_xor_b32 v{T0+3}, v{T0+3}, v{T0}
    v_lshlrev_b32 v{T0+3}, 4, v{T0+3}
    v_lshl_add_u32 v{vB0}, v{T0+2}, 7, v{T0+3}
    s_lshl_b32 s16, s15, 13
    v_add_u32 v{vB0}, s16, v{vB0}
    v_xor_b32 v{vB1}, 64, v{vB0}
    v_lshlrev_b32 v{T0+5}, 3, v{T0}
    s_mul_i32 s16, s13, 448
    s_waitcnt lgkmcnt(0)
    """)
    srd_off(a, 20, 6, 16, 0, 7168)
    a(f"s_lshl_b32 s17, s14, 8\ns_lshl_b32 s18, s14, 5")
    for t in range(6):
        a(f"buffer_load_dwordx2 {vr(BI+2*t,2)}, v{T0+5}, s[20:23], s17 offen offset:{32*t}")
    a(f"buffer_load_dwordx2 {vr(BI+12,2)}, v{T0+5}, s[20:23], s18 offen offset:192")
    if opt("PF"):
        srd_off(a, 40, 4, None, 0, 1024 * 7168)
        srd_off(a, 44, 8, None, XN_OFF, 4 * MB)
        a(f"""
        s_lshl_b32 s16, s2, 2
        s_add_u32 s16, s16, s3
        s_mul_i32 s17, s16, {14*128}
        v_lshlrev_b32 v{T0+6}, 7, v0
        v_add_u32 v{T0+6}, s17, v{T0+6}
        s_lshl_b32 s17, s16, 12
        v_lshrrev_b32 v{T0+7}, 2, v0
        v_lshlrev_b32 v{T0+7}, 11, v{T0+7}
        v_and_b32 v{T0+2}, 3, v0
        v_lshl_add_u32 v{T0+7}, v{T0+2}, 7, v{T0+7}
        v_add_u32 v{T0+7}, s17, v{T0+7}
        """)
        for c in range(4):
            a(f"s_mov_b64 exec, 0x3fff\ns_mov_b32 s17, {c*4*458752}")
            a(f"buffer_load_dword v{T0+3}, v{T0+6}, s[40:43], s17 offen")
            a(f"s_mov_b64 exec, 0xff")
            a(f"buffer_load_dword v{T0+4}, v{T0+7}, s[44:47], 0 offen offset:{512*c}")
        a("s_mov_b64 exec, -1")
        if opt("PF") > 1:
            a(f"s_load_dwordx2 s[48:49], s[0:1], {KA['w2']}\ns_mul_i32 s17, s16, {56*128}\nv_lshlrev_b32 v{T0+6}, 7, v0\ns_waitcnt lgkmcnt(0)")
            srd_off(a, 40, 48, None, 0, 1024 * 7168)
            a(f"s_mov_b32 exec_hi, 0xffffff\nbuffer_load_dword v{T0+3}, v{T0+6}, s[40:43], s17 offen\ns_mov_b64 exec, -1")
    if XP: pfsetup(T0+6)
    if HS == 16:
        a(f"""
        s_lshr_b32 s16, s12, 1
        s_mul_i32 s16, s16, 112
        s_mul_i32 s17, s13, 7
        s_add_u32 s16, s16, s17
        s_lshl_b32 s16, s16, 14
        s_and_b32 s17, s12, 1
        s_lshl_b32 s17, s17, 13
        s_add_u32 s16, s16, s17
        """)
    else:
        a(f"""
        s_mul_i32 s16, s12, 112
        s_mul_i32 s17, s13, 7
        s_add_u32 s16, s16, s17
        s_lshl_b32 s16, s16, 13
        """)
    a(f"s_lshl_b32 s17, s15, 12\ns_add_u32 s16, s16, s17")
    srd_off(a, 24, 8, 16, H_OFF, H_BYTES)
    KBP = HS * 1024
    a(f"s_waitcnt vmcnt({[0,8,9][opt('PF')]})")
    for t in range(7):
        for u in range(4):
            b = acc(t, u)
            a(f"v_lshlrev_b32 v{b}, 16, v{BI+2*t}\nv_and_b32 v{b+1}, 0xffff0000, v{BI+2*t}")
            a(f"v_lshlrev_b32 v{b+2}, 16, v{BI+2*t+1}\nv_and_b32 v{b+3}, 0xffff0000, v{BI+2*t+1}")
    def reads(f, sub):
        o = []
        vb = vB1 if sub else vB0
        def rdA(t):
            base = vA6 if t == 6 else (vAo if t & 1 else vAe)
            imm = (0 if t == 6 else 32 * t) + sub * 14336
            return [f"ds_read_b64_tr_b16 {vr(f+4*t,2)}, v{base} offset:{imm}",
                    f"ds_read_b64_tr_b16 {vr(f+4*t+2,2)}, v{base} offset:{imm+1792}"]
        rdB = lambda u: f"ds_read_b128 {vr(f+28+4*u,4)}, v{vb} offset:{2048*u}"
        o += rdA(0) + [rdB(u) for u in range(4)]
        for t in range(1, 7): o += rdA(t)
        return o
    def mf(f):
        return [mfma16(acc(t, u), f + 4 * t, f + 28 + 4 * u) for t in range(7) for u in range(4)]
    a(f"s_mov_b32 s33, {G1_STAGE}\ns_mov_b32 s30, 0\ns_mov_b32 s31, 16\ns_barrier")
    stamp(a,1)
    PFI = [f"buffer_load_dword v{T0+5}, v{T0+6}, s[40:43], s46 offen", "s_add_u32 s46, s46, s47"] if XP else []
    for st in range(npro): a.ext(PFI)
    a.ext(reads(F[0], 0))
    if opt("NORD"): a.ext(reads(F[1], 1))
    a(f"{LOOP}:")
    a(f"""
    s_add_u32 s30, s30, {G1_STAGE}
    s_cmp_eq_u32 s30, {G1_LDS}
    s_cselect_b32 s32, {(-(G1_LDS-G1_STAGE)) & 0xffffffff}, s33
    s_cselect_b32 s30, 0, s30
    s_waitcnt lgkmcnt(0)
    """)
    upd = [f"v_add_u32 v{r}, s32, v{r}" for r in (vAe, vAo, vA6, vB0, vB1)]
    a.ext(interleave(mf(F[0]), ([] if opt('NORD') else reads(F[1], 1)) + upd))
    a("s_waitcnt lgkmcnt(0)\ns_barrier")
    a.ext(interleave(mf(F[1]), [] if opt('NORD') else reads(F[0], 0) + PFI))
    a(f"s_sub_u32 s31, s31, 1\ns_cmp_lg_u32 s31, 0\ns_cbranch_scc1 {LOOP}")
    stamp(a,2)
    C0V = 206
    a(f"""
    s_mov_b32 s34, {fhex(-0.1029432397)}
    s_mov_b32 s35, {fhex(-0.1029432397)}
    v_mov_b32 v{C0V}, {fhex(-2.302208198)}
    v_mov_b32 v{C0V+1}, {fhex(-2.302208198)}
    v_lshlrev_b32 v{vL}, 4, v{vL}
    s_mul_i32 s36, s14, {4*KBP}
    s_lshl_b32 s37, s14, 3
    s_add_u32 s37, s37, {3*KBP}
    s_waitcnt lgkmcnt(0)
    s_nop 7
    """)
    TT = [112, 128]; PK = [144, 152]
    idx = 0
    for tp in range(3):
        for up in range(2):
            tt = TT[idx & 1]; pk = PK[idx & 1]; idx += 1
            regs = []
            for u in (2 * up, 2 * up + 1):
                regs += [acc(2*tp, u), acc(2*tp, u) + 2, acc(2*tp+1, u), acc(2*tp+1, u) + 2]
            a.ext(gelu_pairs(regs, tt, C0V, 34))
            for i in range(8): a(f"v_cvt_pk_bf16_f32 v{pk+i}, v{tt+2*i}, v{tt+2*i+1}")
            for k in range(2):
                a(f"buffer_store_dwordx4 {vr(pk+4*k,4)}, v{vL}, s[24:27], s36 offen offset:{1024*(2*up+k)}")
        a(f"s_add_u32 s36, s36, {KBP}")
    tt = TT[0]; pk = PK[0]
    regs = []
    for u in range(4): regs += [acc(6, u), acc(6, u) + 2]
    a.ext(gelu_pairs(regs, tt, C0V, 34))
    for i in range(8): a(f"v_cvt_pk_bf16_f32 v{pk+i}, v{tt+2*i}, v{tt+2*i+1}")
    for u in range(4):
        a(f"buffer_store_dwordx2 {vr(pk+2*u,2)}, v{vL}, s[24:27], s37 offen offset:{1024*u}")
    stamp(a,3)
    if common.STAMPS: a("s_waitcnt vmcnt(0)")
    stamp(a,4); stamp_dump(a,1,v=2)
    a("s_endpgm")
    a(f"{LOADER}:")
    VX = 8; VW = 12
    a(f"""
    s_sub_u32 s3, s3, 4
    v_lshrrev_b32 v1, 3, v0
    s_lshl_b32 s16, s3, 5
    v_add_u32 v1, s16, v1
    v_and_b32 v2, 7, v0
    """)
    for n in range(4):
        a(f"""
        v_add_u32 v3, {8*n}, v1
        v_bfe_u32 v4, v3, 1, 3
        v_xor_b32 v4, v4, v2
        v_lshlrev_b32 v4, 4, v4
        v_lshl_add_u32 v{VX+n}, v3, 11, v4
        """)
        if n: a(f"v_subrev_u32 v{VX+n}, {1024*n}, v{VX+n}")
    a(f"v_lshrrev_b32 v1, 2, v0\nv_and_b32 v2, 3, v0\ns_lshl_b32 s16, s3, 4")
    for n in range(7):
        a(f"""
        v_add_u32 v3, {16*n}, v1
        v_mul_u32_u24 v4, 147, v3
        v_lshrrev_b32 v4, 10, v4
        v_mul_u32_u24 v5, 7, v4
        v_sub_u32 v5, v3, v5
        v_bfe_u32 v6, v4, 3, 1
        v_lshlrev_b32 v6, 1, v6
        v_xor_b32 v6, v6, v2
        v_lshlrev_b32 v6, 4, v6
        v_lshl_add_u32 v6, v5, 6, v6
        v_add_u32 v4, s16, v4
        v_mul_u32_u24 v4, 7168, v4
        v_add_u32 v{VW+n}, v4, v6
        """)
        if n % 4: a(f"v_subrev_u32 v{VW+n}, {1024*(n%4)}, v{VW+n}")
    a(f"s_lshl_b32 s16, s12, 18\ns_mul_i32 s17, s13, 448\ns_waitcnt lgkmcnt(0)")
    srd_off(a, 20, 8, 16, XN_OFF, 4 * MB)
    srd_off(a, 24, 4, 17, 0, 1024 * 7168)
    a(f"""
    s_lshl_b32 s30, s3, 12
    s_mul_i32 s31, s3, 7168
    s_add_u32 s31, s31, 16384
    s_mov_b32 s32, 0
    s_mov_b32 s33, 0
    s_mov_b32 s34, 0
    """)
    def issue():
        a(f"s_add_u32 m0, s30, s34\ns_nop 0")
        for n in range(4):
            a(f"buffer_load_dwordx4 v{VX+n}, s[20:23], s32 offen offset:{1024*n} lds")
        a(f"s_add_u32 m0, s31, s34\ns_add_u32 s32, s32, 128")
        for n in range(4):
            a(f"buffer_load_dwordx4 v{VW+n}, s[24:27], s33 offen offset:{1024*n} lds")
        a(f"s_add_u32 m0, m0, 4096\ns_add_u32 s34, s34, {G1_STAGE}")
        for n in range(4, 7):
            a(f"buffer_load_dwordx4 v{VW+n}, s[24:27], s33 offen offset:{1024*(n-4)} lds")
        a(f"""
        s_add_u32 s33, s33, {64*7168}
        s_cmp_eq_u32 s34, {G1_LDS}
        s_cselect_b32 s34, 0, s34
        """)
    if VP and not XP: pfsetup(20)
    if XP: VP = 0
    def pf():
        a("buffer_load_dword v22, v20, s[40:43], s46 offen\ns_add_u32 s46, s46, s47")
    for i in range(3): issue()
    if VP:
        for st in range(npro): pf()
    e = 1 if VP else 0
    a(f"s_waitcnt vmcnt({22+e*npro})\ns_barrier")
    for i in range(13):
        a(f"s_waitcnt vmcnt({11 + e*(npro if i == 0 else npro + 1 if i == 1 else 2)})\ns_barrier")
        if not opt("NODMA"): issue()
        if VP: pf()
    a("s_waitcnt vmcnt(11)\ns_barrier\ns_waitcnt vmcnt(0)\ns_barrier\ns_barrier")
    a(f"{END}:\ns_endpgm")
    return f"; @launch kernel={name} grid=(256,1,1) block=(512,1,1) lds={G1_LDS}", kernel_desc(name, 232)
```

```python
from common import *
def probe(a, name, ka, i, kb, j, M, wg=0, wave=0):
    kernel_begin(a, name)
    L = a.label("pl"); E = a.label("pe")
    o = (wg * 8 + wave) * 64
    a(f"""
    s_cmp_lg_u32 s2, 0
    s_cbranch_scc1 {E}
    s_load_dwordx2 s[8:9], s[0:1], {KA['ws']}
    s_waitcnt lgkmcnt(0)
    s_add_u32 s8, s8, {STAMP_OFF}
    s_addc_u32 s9, s9, 0
    s_mov_b32 s4, {ka*MB + o + 8*i + 4}
    s_mov_b32 s5, {kb*MB + o + 8*j + 4}
    s_load_dword s10, s[8:9], s4
    s_load_dword s11, s[8:9], s5
    s_memrealtime s[12:13]
    s_waitcnt lgkmcnt(0)
    s_sub_u32 s10, s11, s10
    s_min_u32 s10, s10, 10000
    s_mul_i32 s10, s10, {M}
    s_mov_b32 s20, 0
    {L}:
    s_memrealtime s[14:15]
    s_add_u32 s20, s20, 1
    s_waitcnt lgkmcnt(0)
    s_sub_u32 s16, s14, s12
    s_cmp_ge_u32 s20, 2000000
    s_cbranch_scc1 {E}
    s_cmp_lt_u32 s16, s10
    s_cbranch_scc1 {L}
    {E}:
    s_endpgm
    """)
    return f"; @launch kernel={name} grid=(1,1,1) block=(64,1,1) lds=0", kernel_desc(name, 8)
```

```python
import sys
from common import *
import gemm1, gemm2
def build(cfg):
    a = Asm()
    L = []; D = []
    for fn in cfg:
        l, d = fn(a); L.append(l); D.append(d)
    head = "; generated by dev/gen.py\n" + "\n".join(L) + "\n" + '.amdgcn_target "amdgcn-amd-amdhsa--gfx950"\n'
    import hazard
    a.lines, n = hazard.fix(a.lines, verbose=bool(opt('HZV')))
    print('hazard pads', n)
    return head + a.text() + "".join(D)
if __name__ == "__main__":
    import common, os
    common.STAMPS = bool(os.environ.get("STAMPS"))
    NB = int(sys.argv[2]) if len(sys.argv) > 2 else 8
    import spec
    cfg = [lambda a: spec.kB(a, "sb_kernel"),
           lambda a: gemm1.gemm1(a, "g1_kernel", HS=2*NB, xmap="8x4" if NB == 8 else "4x8"),
           lambda a: spec.kC(a, "sc_kernel"),
           lambda a: gemm2.gemm2(a, "g2_kernel", NB=NB),
           lambda a: spec.kD(a, "sd_kernel", NSPLIT=4 if NB == 8 else 2)]
    if os.environ.get("PROBE"):
        import probe
        pr = [int(x) for x in os.environ["PROBE"].split(",")]
        cfg.append(lambda a: probe.probe(a, "pr_kernel", *pr))
    open(sys.argv[1], "w").write(build(cfg))
```

```python
from asmlib import *
import math
NAME = "parallel_sum__spectral_gfnet__dense_activation_gelu__prompt"
MB = 1 << 20
XN_OFF = 0
H_OFF = 4 * MB
H_BYTES = 2048 * 3584 * 2
PW_OFF = 20 * MB
PW_PITCH = 257 * 128
PW_BYTES = 256 * PW_PITCH
Q_OFF = 30 * MB
Q_PITCH = 16384 + 256
Q_BYTES = 257 * Q_PITCH
PART_OFF = 36 * MB
KA = dict(x=0, wr=8, wi=16, w1=32, b1=40, w2=48, b2=56, out=64, dbg=72, ws=80)

def mfma16(d, a, b, c=None):
    c = vr(d, 4) if c is None else c
    return f"v_mfma_f32_16x16x32_bf16 {vr(d,4)}, {vr(a,4)}, {vr(b,4)}, {c}"
def mfma32(d, a, b, c=None):
    c = vr(d, 16) if c is None else c
    return f"v_mfma_f32_32x32x16_bf16 {vr(d,16)}, {vr(a,4)}, {vr(b,4)}, {c}"

def srd_off(a, d, base, off_sgpr, off_imm, total):
    if off_imm:
        a(f"s_add_u32 s{d}, s{base}, {off_imm}\ns_addc_u32 s{d+1}, s{base+1}, 0")
        lo, hi = d, d + 1
    else:
        lo, hi = base, base + 1
    if off_sgpr is not None:
        a(f"s_add_u32 s{d}, s{lo}, s{off_sgpr}\ns_addc_u32 s{d+1}, s{hi}, 0")
        a(f"s_sub_u32 s{d+2}, {total}, s{off_sgpr}")
    else:
        if lo != d: a(f"s_mov_b32 s{d}, s{lo}\ns_mov_b32 s{d+1}, s{hi}")
        a(f"s_mov_b32 s{d+2}, {total}")
    a(f"s_mov_b32 s{d+3}, 0x20000")

STAMP_OFF = 200 * MB
STAMPS = False
import os
def opt(k, d=0):
    return int(os.environ.get(k, d))
def stamp(a, i):
    import common
    if not common.STAMPS: return
    a(f"s_memtime s[{60+4*i}:{61+4*i}]\ns_memrealtime s[{62+4*i}:{63+4*i}]")
def stamp_dump(a, kidx, wsreg=8, wave="s3", v=2):
    import common
    if not common.STAMPS: return
    a(f"s_waitcnt lgkmcnt(0)\ns_lshl_b32 s55, s2, 3\ns_add_u32 s55, s55, {wave}\ns_lshl_b32 s55, s55, 6")
    srd_off(a, 56, wsreg, None, STAMP_OFF + kidx * MB, MB)
    for i in range(16): a(f"v_mov_b32 v{v+i}, s{60+2*i}")
    a(f"v_mov_b32 v{v+16}, 0\ns_nop 4")
    for i in range(4):
        a(f"buffer_store_dwordx4 {vr(v+4*i,4)}, v{v+16}, s[56:59], s55 offen offset:{16*i}")

def order(nt, nu):
    m = opt("ORD")
    if m == 0: return [(t, u) for t in range(nt) for u in range(nu)]
    if m == 1: return [(t, u) for u in range(nu) for t in range(nt)]
    if m == 2: return [(t, u if t % 2 == 0 else nu - 1 - u) for t in range(nt) for u in range(nu)]
    if m == 3: return [(t if u % 2 == 0 else nt - 1 - t, u) for u in range(nu) for t in range(nt)]
CF = os.environ.get("CF", "")
```

```python
import re
from asmlib import *
TRANS = ("v_exp_f32","v_log_f32","v_rcp_f32","v_rsq_f32","v_sqrt_f32","v_sin_f32","v_cos_f32")
class M:
    def __init__(s, kind, n=0): s.kind = kind; s.n = n
def L(s):
    return [l.strip() for l in s.strip("\n").split("\n") if l.strip()]
def cost(l):
    op = l.split()[0]
    if op.endswith(":") or op == "WAITV": return 0
    if op.startswith("v_mfma"): return 32 if "32x32" in op else 16
    if op in TRANS: return 8
    if op.startswith("v_pk_"): return 6
    if op.startswith("v_"): return 4
    if op.startswith("ds_write"): return 12
    if op.startswith("ds_"): return 6
    if op.startswith("buffer"): return 16
    return 2
def split(side, first, last, budget):
    out = {k: [] for k in range(first, last + 1)}
    k = first; used = 0
    for it in side:
        if isinstance(it, M):
            if it.kind == "sync": k += max(1, it.n); used = 0
            elif it.kind == "at":
                if it.n > k: k = it.n; used = 0
            elif it.kind == "by": assert k <= it.n, f"schedule overflow: slice {k} > {it.n}"
            continue
        while True:
            g = it(k) if callable(it) else ([it] if isinstance(it, str) else list(it))
            c = sum(cost(l) for l in g)
            if used and used + c > budget(k) and k < last: k += 1; used = 0; continue
            break
        assert k <= last
        out[k].append(g); used += c
    return out
def weave(main, items, per):
    out = []; items = list(items); main = list(main)
    blk = lambda g: any(("m0" in l) or l.startswith(("WAITV", "s_waitcnt")) for l in g)
    for g in main:
        out += g
        c = 0
        while items and c < per and not blk(items[0]):
            x = items.pop(0); out += x; c += sum(cost(l) for l in x)
    for x in items: out += x
    return out
def resolve(lines):
    out = []; hist = []
    for l in lines:
        s = l.strip()
        if s == "VMRESET": hist = []; continue
        if s.startswith("WAITV"):
            p = s.split(); tags = [t for t in p[1:] if t != "lgkm"]
            n = 63
            for t in tags:
                idx = [i for i, h in enumerate(hist) if h == t]
                assert idx, f"tag {t} not issued"
                n = min(n, len(hist) - 1 - idx[-1])
            out.append(f"    s_waitcnt vmcnt({n})" + (" lgkmcnt(0)" if "lgkm" in p else "") + f" ; {' '.join(tags)}")
            continue
        if s.startswith(("buffer_", "global_")):
            m = re.search(r";@(\S+)", s)
            t = m.group(1) if m else ""
            if t != "cond": hist.append(t)
        out.append(l)
    return out
def unpk(l):
    m = re.match(r"v_pk_(mul|add|fma)_f32 (.*)", l)
    if not m: return [l]
    op = m.group(1); rest = m.group(2)
    mods = dict((k, [int(x) for x in v.split(",")]) for k, v in re.findall(r"(op_sel_hi|op_sel|neg_lo|neg_hi):\[([\d,]+)\]", rest))
    rest = re.sub(r"\s+(op_sel_hi|op_sel|neg_lo|neg_hi):\[[\d,]+\]", "", rest)
    ops = [o.strip() for o in rest.split(",")]
    n = len(ops) - 1
    def el(o, s):
        mm = re.fullmatch(r"([vs])\[(\d+):(\d+)\]", o)
        return f"{mm.group(1)}{int(mm.group(2)) + s}" if mm else o
    res = []
    for h in range(2):
        sel = mods.get("op_sel_hi" if h else "op_sel", [h] * n); neg = mods.get("neg_hi" if h else "neg_lo", [0] * n)
        src = [("-" if neg[i] else "") + el(ops[i + 1], sel[i]) for i in range(n)]
        d = el(ops[0], h)
        if h: assert el(ops[0], 0) not in [x.lstrip("-") for x in src]
        if op == "fma" and src[2] == d and not any(neg) and src[1][0] == "v": res.append(f"v_fmac_f32 {d}, {src[0]}, {src[1]}")
        elif op == "add" and src[1][0] == "-" and src[0][0] != "-" and src[1][1] == "v": res.append(f"v_sub_f32 {d}, {src[0]}, {src[1][1:]}")
        elif op == "add" and src[1][0] == "-" and src[0][0] == "v": res.append(f"v_subrev_f32 {d}, {src[1][1:]}, {src[0]}")
        elif op != "fma" and src[1][0] == "s" and src[0][0] == "v": res.append(f"v_{op}_f32 {d}, {src[1]}, {src[0]}")
        else: res.append(f"v_{op}_f32 {d}, " + ", ".join(src))
    return res
def unpk_all(side):
    o = []
    for it in side:
        if isinstance(it, str): o += unpk(it)
        elif isinstance(it, list): o.append([y for x in it for y in unpk(x)])
        else: o.append(it)
    return o
```

```python
import sys, os
from common import *
import common
from sched import *
from spec import nk, trig, sink_f32, sink_pack, cmul, rbf, ror_reduce

PITCH = 16640
H_OFF = 0; P_OFF = 16 * MB; WT_OFF = 21 * MB; Q_OFF = 26 * MB; BASE_OFF = 31 * MB; EX_OFF = 35 * MB
CS_OFF = 39 * MB; ST_OFF = CS_OFF + 0x40000; HF_OFF = ST_OFF + 0x2000; CF_OFF = HF_OFF + 0x1000; DF_OFF = CF_OFF + 0x1000
HP = 57344
STG = 45056; S = 3 * STG; WPP = 5376; EPA = S + 4 * WPP; EPS = EPA + 2048
WR_ = 65536
WF_ = 49152
WS, XS, W2S = "s[4:7]", "s[8:11]", "s[12:15]"
SC = "sc1"
BOUND = 20000
NS = [nk(r) for r in range(16)]

def mksrd(d, p, n):
    return L(f"s_mov_b32 s{d}, s{p}\ns_mov_b32 s{d+1}, s{p+1}\ns_mov_b32 s{d+2}, {n}\ns_mov_b32 s{d+3}, 0x20000")

def fused(a, name):
    for Q in range(112): assert (Q * 147) >> 10 == Q // 7
    UN = unpk_all if opt("UNPK", 1) else (lambda x: x)
    def st(role, i):
        if not common.STAMPS: return []
        return [f"s_memtime s[{60+4*i}:{61+4*i}]", f"s_memrealtime s[{62+4*i}:{63+4*i}]"]
    def poll(load, cmp, tag):
        l1 = a.label("pl"); ok = a.label("ok")
        return L(f"""
        WAITV {tag}
        s_mov_b32 s54, {BOUND}
        {l1}:
        {cmp}
        s_cbranch_vccz {ok}
        s_sub_u32 s54, s54, 1
        s_cbranch_scc1 {ok}
        {load} ;@cond
        s_waitcnt vmcnt(0)
        s_branch {l1}
        {ok}:
        """)
    def plane_rd(D, adr, pp):
        o = []
        for n in range(4):
            for c in range(2):
                r, k = (adr[n], 0) if len(adr) == 4 else (adr[0], 4 * n)
                o.append(f"ds_read2st64_b32 {vr(D+4*n+2*c,2)}, v{r} offset0:{2*c*pp+k} offset1:{(2*c+1)*pp+k}")
        return o
    def plane_st(D, vo, off, tag):
        o = [L(f"s_mul_i32 s53, s35, {PITCH}\ns_add_u32 s53, s53, {off}\ns_waitcnt lgkmcnt(0)")]
        for n in range(4):
            o.append([f"buffer_store_dwordx4 {vr(D+4*n,4)}, v{vo}, {WS}, s53 offen {SC} ;@{tag}"] + ([f"s_add_u32 s53, s53, 4096"] if n < 3 else []))
        return o
    def gather(vq, off, lds, tag):
        o = L(f"""
        s_mul_i32 s53, s3, {64*PITCH}
        s_lshl_b32 s52, s35, 6
        s_add_u32 s53, s53, s52
        s_lshl_b32 s52, s3, 12
        s_add_u32 m0, s52, {lds}
        s_add_u32 s53, s53, {off}
        """)
        for n in range(4):
            if n: o += L(f"s_add_u32 m0, m0, 1024\ns_add_u32 s53, s53, {16*PITCH}")
            o.append(f"buffer_load_dwordx4 v{vq}, {WS}, s53 offen {SC} lds ;@{tag}")
        return o
    def w2addr(VW2, ln, t):
        o = L(f"""
        v_lshrrev_b32 v{t}, 4, v{ln}
        v_bfe_u32 v{t+1}, v{ln}, 1, 3
        v_and_b32 v{t+2}, 1, v{ln}
        v_lshlrev_b32 v{t+2}, 4, v{t+2}
        """)
        for n in range(4):
            o += L(f"""
            v_add_u32 v{VW2+n}, {4*n}, v{t}
            v_and_b32 v{t+3}, 7, v{VW2+n}
            v_xor_b32 v{t+3}, v{t+3}, v{t+1}
            v_lshl_add_u32 v{t+3}, v{t+3}, 5, v{t+2}
            v_lshl_add_u32 v{VW2+n}, v{VW2+n}, 11, v{t+3}
            """)
            if n: o.append(f"v_subrev_u32 v{VW2+n}, {1024*n}, v{VW2+n}")
        return o
    def g2bases():
        return L(f"""
        s_lshl_b32 s94, s3, 12
        s_lshl_b32 s50, s32, 1
        s_add_u32 s50, s50, s34
        s_mul_i32 s50, s50, {8*HP}
        s_add_u32 s48, s50, s94
        s_lshr_b32 s51, s3, 1
        s_and_b32 s52, s3, 1
        s_mul_i32 s92, s51, {HP}
        s_add_u32 s92, s92, s50
        s_lshl_b32 s53, s52, 12
        s_add_u32 s92, s92, s53
        s_add_u32 s92, s92, {49152}
        s_mul_i32 s50, s34, {1792*2048}
        s_lshl_b32 s53, s33, 8
        s_add_u32 s50, s50, s53
        s_lshl_b32 s49, s51, 18
        s_add_u32 s49, s49, s50
        s_lshl_b32 s53, s52, 15
        s_add_u32 s49, s49, s53
        s_mul_i32 s93, s51, {224*2048}
        s_add_u32 s93, s93, s50
        s_lshl_b32 s53, s52, 14
        s_add_u32 s93, s93, s53
        s_add_u32 s93, s93, {96*2048}
        """)
    def g2step(i):
        if i < 3: return (i, 0)
        if i < 24: return ((i - 3) // 7, (i - 3) % 7 + 1)
        return (3, i - 24)
    def g2issue(i, VW2, VH, doW=True, doH=True):
        tp, d = g2step(i); slot = i % 4
        if tp < 3:
            pre = L(f"""
            s_add_u32 s95, s33, {d}
            s_and_b32 s95, s95, 7
            s_mul_i32 s96, s95, {8*HP}
            s_mul_i32 s95, s95, {HP}
            s_add_u32 s96, s96, s49
            s_add_u32 s95, s95, s48
            """)
            if tp: pre += L(f"s_add_u32 s96, s96, {65536*tp}\ns_add_u32 s95, s95, {16384*tp}")
        else:
            pre = L(f"""
            s_add_u32 s95, s33, {2*d}
            s_and_b32 s95, s95, 6
            s_mul_i32 s96, s95, {8*HP}
            s_mul_i32 s95, s95, {HP}
            s_add_u32 s96, s96, s93
            s_add_u32 s95, s95, s92
            """)
        G = []
        if doH:
            for n in range(4):
                g = [f"s_add_u32 m0, s94, {16384*slot}"] + pre if n == 0 else []
                G.append(g + [f"buffer_load_dwordx4 v{VH}, {WS}, s95 offen offset:{1024*n} {SC} lds ;@g{i}"])
            pre = []
        if doW:
            for n in range(4):
                g = [f"s_add_u32 m0, s94, {WR_+16384*slot}"] + pre if n == 0 else []
                if n == 2 and tp == 3: g.append("s_add_u32 s96, s96, 16384")
                G.append(g + [f"buffer_load_dwordx4 v{VW2+n}, {W2S}, s96 offen offset:{1024*n} lds ;@g{i}"])
        return G

    kernel_begin(a, name)
    END = a.label("end"); YR = a.label("yrole")
    a(f"s_cmp_ge_u32 s2, 256\ns_cbranch_scc1 {END}")
    a.ext(st("", 0))
    a(f"""
    s_load_dwordx16 s[64:79], s[0:1], 0
    s_load_dwordx4 s[80:83], s[0:1], 64
    s_load_dwordx2 s[84:85], s[0:1], 80
    v_lshrrev_b32 v1, 6, v0
    s_and_b32 s34, s2, 1
    s_bfe_u32 s32, s2, 0x20001
    v_readfirstlane_b32 s38, v1
    s_lshl_b32 s32, s32, 2
    s_lshr_b32 s33, s2, 6
    s_add_u32 s32, s32, s33
    s_bfe_u32 s33, s2, 0x30003
    s_lshl_b32 s36, s34, 3
    s_add_u32 s36, s36, s33
    s_xor_b32 s35, s2, s33
    s_and_b32 s35, s35, 1
    s_mul_i32 s35, s35, 9
    s_xor_b32 s35, s35, s2
    s_and_b32 s3, s38, 3
    s_lshr_b32 s37, s35, 5
    s_lshl_b32 s37, s37, 2
    s_add_u32 s37, s37, s3
    s_lshl_b32 s37, s37, 5
    s_and_b32 s39, s35, 31
    s_add_u32 s37, s37, s39
    s_cmp_ge_u32 s38, 4
    s_cbranch_scc1 {YR}
    """)
    vL16, VW2, vK, vF, vL4, vQ, vO, vC, ph, sg, vBO, vBG, one = 240, 241, 245, 246, 247, 248, 249, 250, 251, 252, 253, 254, 255
    F = [112, 156]
    vAe, vAo, vA6, vB0, vB1, vHW, vHO, vLn = 200, 201, 202, 203, 204, 205, 206, 223
    T0 = 224
    acc = lambda t, u: 4 * (4 * t + u)
    a("VMRESET")
    a(f"""
    v_mov_b32 v{vK}, v0
    v_and_b32 v0, 63, v0
    v_lshlrev_b32 v{vL16}, 4, v0
    s_mul_i32 s50, s37, 2052
    s_and_b32 s43, s3, 1
    s_lshr_b32 s44, s3, 1
    v_mov_b32 v{vLn}, v0
    v_lshrrev_b32 v{T0}, 4, v0
    v_bfe_u32 v{T0+1}, v0, 2, 2
    v_lshl_add_u32 v{T0+1}, v{T0}, 3, v{T0+1}
    v_mul_u32_u24 v{T0+1}, 448, v{T0+1}
    v_and_b32 v{T0+2}, 3, v0
    v_lshl_add_u32 v{T0+1}, v{T0+2}, 3, v{T0+1}
    v_add_u32 v{T0+1}, 16384, v{T0+1}
    v_and_b32 v{T0+2}, 1, v{T0}
    v_lshlrev_b32 v{T0+3}, 5, v{T0+2}
    s_lshl_b32 s51, s43, 8
    v_add_u32 v{T0+4}, s51, v{T0+1}
    v_add_u32 v{vAe}, v{T0+4}, v{T0+3}
    v_sub_u32 v{vAo}, v{T0+4}, v{T0+3}
    v_xor_b32 v{T0+2}, s43, v{T0+2}
    v_lshl_add_u32 v{vA6}, v{T0+2}, 5, v{T0+1}
    v_add_u32 v{vA6}, 192, v{vA6}
    v_and_b32 v{T0+2}, 15, v0
    v_bfe_u32 v{T0+3}, v0, 1, 3
    v_xor_b32 v{T0+3}, v{T0+3}, v{T0}
    v_lshlrev_b32 v{T0+3}, 4, v{T0+3}
    v_lshl_add_u32 v{vB0}, v{T0+2}, 7, v{T0+3}
    s_lshl_b32 s51, s44, 13
    v_add_u32 v{vB0}, s51, v{vB0}
    v_xor_b32 v{vB1}, 64, v{vB0}
    s_waitcnt lgkmcnt(0)
    """)
    a.ext(mksrd(16, 66, 2048 * 1026) + mksrd(20, 68, 2048 * 1026))
    for c in range(2):
        a(f"buffer_load_dwordx4 {vr(112+4*c,4)}, v{vL16}, s[16:19], s50 offen offset:{1024*c} ;@w")
        a(f"buffer_load_dwordx4 {vr(120+4*c,4)}, v{vL16}, s[20:23], s50 offen offset:{1024*c} ;@w")
    a(f"buffer_load_dword v128, off, s[16:19], s50 offset:2048 ;@w\nbuffer_load_dword v129, off, s[20:23], s50 offset:2048 ;@w")
    a.ext(mksrd(4, 84, 256 * MB) + mksrd(8, 64, 4 * MB) + mksrd(12, 76, 3584 * 2048) + mksrd(24, 78, 2048))
    a.ext(w2addr(VW2, vLn, T0))
    a.ext(g2bases())
    a(f"""
    s_lshl_b32 s40, s32, 1
    s_add_u32 s40, s40, s34
    s_lshl_b32 s40, s40, 7
    s_add_u32 s97, s40, {HF_OFF}
    s_lshl_b32 s40, s33, 2
    s_add_u32 s40, s40, s3
    s_lshl_b32 s40, s40, 2
    s_add_u32 s40, s40, s97
    s_lshl_b32 s41, s3, 8
    s_add_u32 s41, s41, s35
    s_lshl_b32 s41, s41, 2
    s_add_u32 s41, s41, {CF_OFF}
    s_lshl_b32 s42, s37, 2
    s_add_u32 s42, s42, {DF_OFF}
    s_lshl_b32 s45, s32, 4
    s_add_u32 s45, s45, s36
    s_mul_i32 s45, s45, {HP}
    s_lshl_b32 s50, s43, 13
    s_lshl_b32 s51, s44, 12
    s_add_u32 s50, s50, s51
    v_add_u32 v{vHW}, s50, v{vL16}
    s_lshl_b32 s50, s43, 9
    s_add_u32 s50, s50, s51
    v_and_b32 v{T0}, 31, v0
    v_lshrrev_b32 v{T0+1}, 5, v0
    v_lshl_add_u32 v{vHO}, v{T0}, 4, s50
    v_lshl_add_u32 v{vHO}, v{T0+1}, 10, v{vHO}
    v_lshlrev_b32 v{vL4}, 2, v{T0}
    v_mov_b32 v{T0+4}, -1
    v_mov_b32 v{T0+5}, -1
    v_mov_b32 v{T0+6}, -1
    v_mov_b32 v{T0+7}, -1
    v_mov_b32 v{T0+8}, 0
    s_lshl_b32 s50, s2, 14
    s_add_u32 s50, s50, s94
    s_add_u32 s50, s50, {EX_OFF}
    v_lshrrev_b32 v{T0}, 2, v0
    v_add_u32 v{T0}, v{T0}, v0
    s_mul_i32 s51, s3, {WPP}
    s_add_u32 s51, s51, {S}
    v_lshl_add_u32 v{T0}, v{T0}, 5, s51
    v_mov_b32 v{T0+1}, s51
    s_mov_b32 s52, 0x05040100
    s_mov_b32 s53, 0x07060302
    WAITV w
    """)
    for i in range(9):
        r, m = (112 + i, 120 + i) if i < 8 else (128, 129)
        a(f"v_perm_b32 v{132+2*i}, v{m}, v{r}, s52\nv_perm_b32 v{133+2*i}, v{m}, v{r}, s53")
    for c in range(2):
        for x in range(2): a(f"ds_write_b128 v{T0}, {vr(132+8*c+4*x,4)} offset:{2624*c+16*x}")
    a(f"ds_write_b64 v{T0+1}, v[148:149] offset:5184")
    for k in range(4): a(f"buffer_store_dwordx4 {vr(T0+4,4)}, v{vL16}, {WS}, s50 offen offset:{1024*k} {SC}")
    a("s_mov_b64 exec, 1")
    for s_ in (40, 41, 42): a(f"buffer_store_dword v{T0+8}, off, {WS}, s{s_} {SC}")
    a("s_mov_b64 exec, -1")
    def reads(f, sub):
        vb = vB1 if sub else vB0
        def rdA(t):
            base = vA6 if t == 6 else (vAo if t & 1 else vAe)
            imm = (0 if t == 6 else 32 * t) + sub * 14336
            return [f"ds_read_b64_tr_b16 {vr(f+4*t,2)}, v{base} offset:{imm}",
                    f"ds_read_b64_tr_b16 {vr(f+4*t+2,2)}, v{base} offset:{imm+1792}"]
        rdB = lambda u: f"ds_read_b128 {vr(f+28+4*u,4)}, v{vb} offset:{2048*u}"
        o = rdA(0) + [rdB(u) for u in range(4)]
        for t in range(1, 7): o += rdA(t)
        return o
    snake = lambda nt, nu: [(t, u if t % 2 == 0 else nu - 1 - u) for t in range(nt) for u in range(nu)]
    def mf(f, z=None):
        return [mfma16(acc(t, u), f + 4 * t, f + 28 + 4 * u, z) for t, u in snake(7, 4)]
    upd = [f"v_add_u32 v{r}, s46, v{r}" for r in (vAe, vAo, vA6, vB0, vB1)]
    adv = L(f"""
    s_add_u32 s50, s50, {STG}
    s_cmp_eq_u32 s50, {S}
    s_cselect_b32 s46, {(-(S-STG)) & 0xffffffff}, s51
    s_cselect_b32 s50, 0, s50
    """)
    LOOP = a.label("g1loop")
    a(f"s_mov_b32 s51, {STG}\ns_mov_b32 s50, {STG}\ns_mov_b32 s46, {STG}\ns_mov_b32 s47, 15\ns_setprio {opt('XP1', 2)}\ns_waitcnt lgkmcnt(0)\ns_barrier")
    a.ext(st("x", 1))
    a.ext(reads(F[0], 0))
    a("s_waitcnt lgkmcnt(0)")
    a.ext(interleave(mf(F[0], "0"), reads(F[1], 1) + upd))
    a(f"{LOOP}:\ns_waitcnt vmcnt(0) lgkmcnt(0)\ns_barrier")
    a.ext(interleave(mf(F[1]), reads(F[0], 0) + adv))
    a("s_waitcnt lgkmcnt(0)")
    a.ext(interleave(mf(F[0]), reads(F[1], 1) + upd + ["s_sub_u32 s47, s47, 1", "s_cmp_lg_u32 s47, 0"]))
    a(f"s_cbranch_scc1 {LOOP}\ns_waitcnt lgkmcnt(0)\ns_barrier\nVMRESET")
    a.ext(st("x", 2))
    EA, STt, BOP, KK, SD = 112, 126, 130, 208, 216
    C0, C1 = -2.302208198, -0.1029432397
    prep = L(f"""
    v_and_b32 v{T0}, 15, v{vLn}
    s_lshl_b32 s50, s43, 10
    s_add_u32 s50, s50, {EPA}
    v_lshl_add_u32 v{T0+1}, v{T0}, 3, s50
    s_lshl_b32 s50, s43, 7
    s_add_u32 s50, s50, {EPA+768}
    v_lshl_add_u32 v{T0+2}, v{T0}, 3, s50
    s_lshl_b32 s50, s44, 8
    s_add_u32 s50, s50, {EPS}
    v_lshl_add_u32 v{T0+3}, v{T0}, 2, s50
    """)
    prep += [f"ds_read_b32 v{STt+u}, v{T0+3} offset:{64*u}" for u in range(4)]
    prep += [f"ds_read_b64 {vr(EA+2*t,2)}, v{T0+1} offset:{128*t}" for t in range(6)] + [f"ds_read_b64 {vr(EA+12,2)}, v{T0+2}"]
    prep += L("s_mov_b64 s[50:51], 0xffff\ns_mov_b32 s52, 0x01000100\ns_waitcnt lgkmcnt(7)")
    for u in range(4): prep += [f"v_cndmask_b32 v{BOP+2*u+1}, 0, v{STt+u}, s[50:51]", f"v_and_b32 v{SD+u}, 0xffff0000, v{STt+u}"]
    for u in range(4): prep += [f"v_perm_b32 v{BOP+2*u}, v{BOP+2*u+1}, v{BOP+2*u+1}, s52", f"v_rcp_f32 v{KK+2*u}, v{SD+u}"]
    for u in range(4): prep += [f"v_mul_f32 v{KK+2*u+1}, {fhex(C0)}, v{KK+2*u}", f"v_mul_f32 v{KK+2*u}, v{KK+2*u}, v{KK+2*u}"]
    for u in range(4): prep += [f"v_mul_f32 v{KK+2*u}, {fhex(C1/C0)}, v{KK+2*u}"]
    for u in range(4): prep += [f"v_mul_f32 v{KK+2*u}, v{KK+2*u}, v{KK+2*u+1}"]
    a.ext(interleave(mf(F[1]), prep, per=2))
    a("s_waitcnt lgkmcnt(0)")
    for t, u in snake(7, 4):
        a(f"v_mfma_f32_16x16x16_bf16 {vr(acc(t,u),4)}, {vr(EA+2*t,2)}, {vr(BOP+2*u,2)}, {vr(acc(t,u),4)}")
    def gelu(regs, tt, pk):
        o = []; T = [tt + 2 * i for i in range(len(regs))]
        Z = list(zip(regs, T))
        for (r, u), x in Z: o.append(f"v_pk_mul_f32 {vr(x,2)}, {vr(r,2)}, {vr(r,2)}")
        for (r, u), x in Z: o.append(f"v_pk_fma_f32 {vr(x,2)}, {vr(x,2)}, {vr(KK+2*u,2)}, {vr(KK+2*u,2)} op_sel:[0,0,1] op_sel_hi:[1,0,1]")
        for (r, u), x in Z: o.append(f"v_pk_mul_f32 {vr(x,2)}, {vr(x,2)}, {vr(r,2)}")
        for (r, u), x in Z: o += [f"v_exp_f32 v{x}, v{x}", f"v_exp_f32 v{x+1}, v{x+1}"]
        for (r, u), x in Z:
            p = vr(SD + (u & 2), 2); s_ = u & 1
            o.append(f"v_pk_fma_f32 {vr(x,2)}, {vr(x,2)}, {p}, {p} op_sel:[0,{s_},{s_}] op_sel_hi:[1,{s_},{s_}]")
        for (r, u), x in Z: o += [f"v_rcp_f32 v{x}, v{x}", f"v_rcp_f32 v{x+1}, v{x+1}"]
        for (r, u), x in Z: o.append(f"v_pk_mul_f32 {vr(x,2)}, {vr(x,2)}, {vr(r,2)}")
        for i in range(8): o.append(f"v_cvt_pk_bf16_f32 v{pk+i}, v{tt+2*i}, v{tt+2*i+1}")
        return o
    def flag(s_, val):
        return L(f"s_mov_b64 exec, 1\nv_mov_b32 v{one}, {val}\nbuffer_store_dword v{one}, off, {WS}, s{s_} {SC}\ns_mov_b64 exec, -1")
    TT = [160, 176]; PK = [138, 146]; idx = 0
    for tp in range(3):
        for up in range(2):
            tt = TT[idx & 1]; pk = PK[idx & 1]; idx += 1
            regs = []
            for u in (2 * up, 2 * up + 1): regs += [(acc(2*tp, u), u), (acc(2*tp, u) + 2, u), (acc(2*tp+1, u), u), (acc(2*tp+1, u) + 2, u)]
            a.ext(gelu(regs, tt, pk))
            for k in range(2):
                u = 2 * up + k
                a(f"buffer_store_dwordx4 {vr(pk+4*k,4)}, v{vHW}, {WS}, s45 offen offset:{1024*u} {SC} ;@h{tp}")
                a(f"ds_write_b128 v{vHW}, {vr(pk+4*k,4)} offset:{16384*tp+1024*u}")
        a(f"s_add_u32 s45, s45, 16384")
    a("WAITV h0"); a.ext(flag(40, 1))
    regs = []
    for u in range(4): regs += [(acc(6, u), u), (acc(6, u) + 2, u)]
    pk = PK[0]
    a.ext(gelu(regs, TT[0], pk))
    for k in range(2):
        a(f"v_permlane32_swap_b32 v{pk+4*k}, v{pk+4*k+2}\nv_permlane32_swap_b32 v{pk+4*k+1}, v{pk+4*k+3}")
    ldH = f"buffer_load_dword v{vF}, v{vL4}, {WS}, s97 offen {SC}"
    a(ldH + " ;@p1")
    for k in range(2): a(f"buffer_store_dwordx4 {vr(pk+4*k,4)}, v{vHO}, {WS}, s45 offen offset:{2048*k} {SC} ;@h3")
    a.ext(st("x", 3))
    a(f"s_waitcnt lgkmcnt(0)\ns_barrier\ns_setprio 0")
    a.ext(poll(ldH, f"v_cmp_gt_u32 vcc, 1, v{vF}", "p1"))
    a.ext(st("x", 4))
    for g in g2issue(3, VW2, vL16, doW=False): a.ext(g)
    G, C2, TC, TS, CH, ACC, BS, XX, T, NQ = 0, 32, 48, 64, 80, 96, 160, 192, 224, 236
    B2 = XX + 16
    sd_ = []
    sd_ += L(f"""
    s_bfe_u32 s50, s35, 0x20002
    v_xor_b32 v{T}, s50, v{vK}
    v_lshlrev_b32 v{T}, 2, v{T}
    v_add_u32 v{T}, {S}, v{T}
    v_lshlrev_b32 v{T+1}, 4, v{vK}
    """)
    sd_ += plane_rd(CH, [T], 16) + plane_st(CH, T + 1, Q_OFF, "q")
    l31, hh = T + 2, T + 3
    sd_ += L(f"""
    v_and_b32 v{l31}, 31, v{vLn}
    v_lshrrev_b32 v{hh}, 5, v{vLn}
    v_lshlrev_b32 v{vO}, 6, v{l31}
    v_lshl_add_u32 v{vO}, v{hh}, 4, v{vO}
    v_lshlrev_b32 v{vBO}, 5, v{l31}
    v_lshl_add_u32 v{vBO}, v{hh}, 4, v{vBO}
    v_lshrrev_b32 v{vQ}, 2, v{vLn}
    v_lshlrev_b32 v{vBG}, 11, v{vQ}
    v_mul_u32_u24 v{vQ}, {PITCH}, v{vQ}
    v_and_b32 v{T+4}, 3, v{vLn}
    v_lshl_add_u32 v{vQ}, v{T+4}, 4, v{vQ}
    v_lshrrev_b32 v{T+5}, 4, v{vLn}
    v_xor_b32 v{T+4}, v{T+4}, v{T+5}
    v_lshl_add_u32 v{vBG}, v{T+4}, 4, v{vBG}
    v_bfe_u32 v{vC}, v{vLn}, 2, 2
    v_xor_b32 v{vC}, s3, v{vC}
    v_lshlrev_b32 v{vC}, 4, v{vC}
    v_lshl_add_u32 v{vC}, v{l31}, 6, v{vC}
    v_lshl_add_u32 v{vC}, v{hh}, 12, v{vC}
    v_add_u32 v{vC}, {S}, v{vC}
    v_lshlrev_b32 v{sg}, 31, v{vLn}
    v_xor_b32 v{sg}, 1.0, v{sg}
    s_lshl_b32 s98, s37, 11
    s_add_u32 s99, s98, {2*MB}
    """)
    sd_.append(L(f"v_cmp_gt_u32 vcc, 32, v{vLn}\nv_cndmask_b32 v{sg}, 0, v{sg}, vcc"))
    sd_.append(M("at", 1))
    sd_.append(["WAITV h3"] + flag(40, 2))
    for r in range(2):
        for e in range(2): sd_.append(f"buffer_load_dwordx4 {vr(XX+8*r+4*e,4)}, v{vO}, {XS}, s{98+r} offen offset:{32*e} ;@xd")
    for e in range(2): sd_.append(f"buffer_load_dwordx4 {vr(B2+4*e,4)}, v{vO}, s[24:27], 0 offen offset:{32*e} ;@xd")
    kf, bs, hf = ACC, ACC + 1, ACC + 2; TTd = ACC + 4
    cst = L(f"""
    v_cvt_f32_u32 v{kf}, v{l31}
    v_cvt_f32_u32 v{hf}, v{hh}
    v_cvt_f32_u32 v{ph}, s37
    v_mul_f32 v{kf}, {fhex(1/32)}, v{kf}
    v_mul_f32 v{hf}, 4.0, v{hf}
    v_mul_f32 v{ph}, {fhex(1/2048)}, v{ph}
    v_mul_f32 v{bs}, v{hf}, v{kf}
    """)
    cst += trig(kf, bs, NS, TTd, sink_pack([(C2, "c", "-s")]))
    cst += L(f"""
    v_and_b32 v{kf}, 19, v{l31}
    v_bfe_u32 v{bs}, v{l31}, 2, 1
    v_lshl_or_b32 v{kf}, v{bs}, 3, v{kf}
    v_bfe_u32 v{bs}, v{l31}, 3, 1
    v_lshl_or_b32 v{kf}, v{bs}, 2, v{kf}
    v_cvt_f32_u32 v{kf}, v{kf}
    v_mul_f32 v{kf}, {fhex(1/32)}, v{kf}
    v_mul_f32 v{bs}, v{hf}, v{kf}
    """)
    cst += trig(kf, bs, NS[:8], TTd, sink_pack([(G, "c", "-s"), (G + 8, "s", "c")]))
    cst.append(f"v_add_f32 v{ACC+3}, v{bs}, v{ph}")
    cst += trig(kf, ACC + 3, NS[:8], TTd, sink_pack([(G + 16, "c", "-s"), (G + 24, "s", "c")]))
    cst += L(f"v_mul_f32 v{kf}, {fhex(1/32)}, v{kf}\nv_mul_f32 v{bs}, {fhex(1/32)}, v{bs}")
    cst += trig(kf, bs, NS, TTd, sink_f32(TC, TS))
    n1 = opt("XC1", 90); n2 = opt("XC2", 150)
    sd_ += cst[:n1]
    sd_.append(M("at", opt("XQF", 4)))
    sd_.append(["WAITV q"] + flag(41, 1))
    sd_ += cst[n1:n2]
    sd_.append(M("at", 5))
    sd_.append(ldH + " ;@p2")
    sd_.append(M("by", 5))
    sd_.append(M("at", 6))
    sd_.append(poll(ldH, f"v_cmp_gt_u32 vcc, 2, v{vF}", "p2"))
    sd_.append(M("by", 6))
    sd_ += cst[n2:]
    ldC = f"buffer_load_dword v{vF}, v{T+4}, {WS}, s100 offen {SC}"
    sd_ += L(f"""
    v_lshlrev_b32 v{T+4}, 2, v{vLn}
    s_bfe_u32 s100, s35, 0x20004
    s_lshl_b32 s100, s100, 2
    s_add_u32 s100, s100, s3
    s_lshl_b32 s100, s100, 8
    s_add_u32 s100, s100, {CF_OFF}
    """)
    sd_.append(M("at", opt("XCP", 8)))
    sd_.append(ldC + " ;@p3")
    sd_.append("WAITV xd")
    for i in range(8):
        sd_ += [f"v_lshlrev_b32 v{T+6}, 16, v{B2+i}", f"v_and_b32 v{T+7}, 0xffff0000, v{B2+i}"]
        for r in range(2):
            d = BS + 16 * r + 2 * i
            sd_ += [f"v_lshlrev_b32 v{d}, 16, v{XX+8*r+i}", f"v_and_b32 v{d+1}, 0xffff0000, v{XX+8*r+i}",
                    f"v_pk_add_f32 {vr(d,2)}, {vr(d,2)}, {vr(T+6,2)}"]
    sd_.append(M("at", opt("XCP", 8) + 1))
    sd_.append(poll(ldC, f"v_cmp_ne_u32 vcc, 1, v{vF}", "p3") + st("x", 5) + gather(vQ, Q_OFF, S, "qd"))
    sd_ += L(f"""
    s_lshl_b32 s50, s3, 4
    s_add_u32 s50, s50, {S}
    v_mov_b32 v{T+4}, s50
    v_cos_f32 v{T}, v{ph}
    v_sin_f32 v{T+1}, v{ph}
    """)
    sd_.append(M("sync", 2))
    sd_.append("WAITV qd")
    sd_.append(M("sync"))
    for b in range(2):
        for e in range(2): sd_.append(f"ds_read_b128 {vr(CH+8*b+4*e,4)}, v{vC} offset:{8192*b+2048*e}")
    sd_.append(f"ds_read_b128 {vr(NQ,4)}, v{T+4}")
    sd_.append("s_waitcnt lgkmcnt(0)")
    sd_ += L(f"v_writelane_b32 v{CH}, 0, 0\nv_writelane_b32 v{CH+2}, 0, 0")
    for b in range(2): sd_ += L(f"v_swap_b32 v{CH+8*b+2}, v{CH+8*b+4}\nv_swap_b32 v{CH+8*b+3}, v{CH+8*b+5}")
    for r in range(2):
        for b in range(2):
            for c in range(2):
                sd_.append(mfma32(ACC + 32 * r + 16 * c, CH + 8 * b + 4 * r, G + 16 * r + 8 * c + 4 * b, "0" if b == 0 else None))
    sd_ += L(f"""
    v_lshlrev_b32 v{NQ}, 16, v{NQ}
    v_lshlrev_b32 v{NQ+1}, 16, v{NQ+2}
    v_and_b32 v{NQ+2}, 0xffff0000, v{NQ+2}
    v_mul_f32 v{NQ+1}, v{NQ+1}, v{T}
    v_fma_f32 v{NQ+1}, -v{NQ+2}, v{T+1}, v{NQ+1}
    """)
    PKD = [192, 208]
    for r in range(2):
        sd_.append(f"v_fmac_f32 v{ACC+32*r}, v{NQ+r}, v{sg}")
        sd_ += cmul(ACC + 32 * r, ACC + 32 * r + 16, TC, TS, False, T, PKD[r], False)
        for b in range(4): sd_.append(mfma32(ACC + 32 * r, PKD[r] + 4 * b, C2 + 4 * b, "0" if b == 0 else None))
    sd_ += L(f"s_mov_b32 s100, {fhex(2.0**-20)}\ns_add_u32 s98, s98, {BASE_OFF}\ns_add_u32 s99, s99, {BASE_OFF}")
    E = ACC; O = ACC + 32
    for i in range(8):
        for r in range(2): sd_.append(f"v_pk_fma_f32 {vr(BS+16*r+2*i,2)}, {vr(E+2*i,2)}, s[100:101], {vr(BS+16*r+2*i,2)} op_sel_hi:[1,0,1]")
    for i in range(8):
        for r in range(2):
            sd_.append(f"v_pk_fma_f32 {vr(BS+16*r+2*i,2)}, {vr(O+2*i,2)}, s[100:101], {vr(BS+16*r+2*i,2)} op_sel_hi:[1,0,1]" + (" neg_lo:[1,0,0] neg_hi:[1,0,0]" if r else ""))
    for i in range(16): sd_.append(f"v_cvt_pk_bf16_f32 v{CH+i}, v{BS+2*i}, v{BS+2*i+1}")
    for r in range(2):
        for e in range(2): sd_.append(f"buffer_store_dwordx4 {vr(CH+8*r+4*e,4)}, v{vBO}, {WS}, s{98+r} offen offset:{1024*e} {SC} ;@bs")
    sd_.append(st("x", 6) + ["s_nop 0"])
    ldD = f"buffer_load_dword v{vF}, v{vL4}, {WS}, s100 offen {SC}"
    sd_ += L(f"""
    s_lshl_b32 s98, s44, 1
    s_add_u32 s98, s98, s34
    s_lshl_b32 s99, s32, 2
    s_add_u32 s98, s98, s99
    s_and_b32 s100, s98, 31
    s_lshl_b32 s100, s100, 7
    s_add_u32 s100, s100, {DF_OFF}
    s_lshl_b32 s98, s98, 16
    s_lshl_b32 s99, s33, 7
    s_add_u32 s98, s98, s99
    s_lshl_b32 s99, s43, 6
    s_add_u32 s98, s98, s99
    s_add_u32 s98, s98, {BASE_OFF}
    """)
    sd_.append(M("sync", opt("XBF", 3)))
    sd_.append(["WAITV bs"] + flag(42, 1))
    sd_.append(M("sync", opt("XBP", 2)))
    sd_.append(ldD + " ;@p4")
    sd_.append(M("sync"))
    g = poll(ldD, f"v_cmp_ne_u32 vcc, 1, v{vF}", "p4") + [f"s_add_u32 m0, s94, {S}"]
    for x in range(2):
        if x: g += L(f"s_add_u32 m0, m0, 2048\ns_add_u32 s98, s98, 32768")
        for e in range(2): g.append(f"buffer_load_dwordx4 v{vBG}, {WS}, s98 offen offset:{1024*e} {SC} lds ;@bg")
    sd_.append(g)
    XB = opt("XB", 260)
    sl = split(UN(sd_), 0, 27, lambda k: XB)
    if opt("SHOW"): print("X slices", {k: sum(cost(l) for g in v for l in g) for k, v in sl.items()})
    for k in range(28):
        main = g2issue(k + 3, VW2, vL16) if 1 <= k <= 24 else []
        a.ext(weave(main, sl[k], opt("XPER", 16)))
        if k < 27:
            if k + 1 >= 3: a(f"WAITV g{k+1}")
            a("s_barrier")
    a("s_waitcnt vmcnt(0)\ns_barrier")
    a.ext(st("x", 7))
    stamp_out(a, 0)
    a("s_endpgm")
    a(f"{YR}:\nVMRESET")
    VX, VW, VW2 = 2, 6, 13
    vL16, vT, vH, vK, ph, vF, vQ, vP, vE = 17, 18, 19, 20, 21, 22, 23, 24, 25
    T = 28; X = 40; Fv = 56
    C1c, C1s, C2a, C2c, TC, TS, ACC = 88, 96, 104, 120, 136, 152, 168
    XT = 232
    a(f"""
    v_and_b32 v{vK}, 255, v0
    v_and_b32 v0, 63, v0
    v_lshrrev_b32 v1, 3, v0
    s_lshl_b32 s50, s3, 5
    v_add_u32 v1, s50, v1
    v_and_b32 v{T}, 7, v0
    """)
    for n in range(4):
        a(f"""
        v_add_u32 v{T+1}, {8*n}, v1
        v_bfe_u32 v{T+2}, v{T+1}, 1, 3
        v_xor_b32 v{T+2}, v{T+2}, v{T}
        v_lshlrev_b32 v{T+2}, 4, v{T+2}
        v_lshl_add_u32 v{VX+n}, v{T+1}, 11, v{T+2}
        """)
        if n: a(f"v_subrev_u32 v{VX+n}, {1024*n}, v{VX+n}")
    a(f"v_lshrrev_b32 v1, 2, v0\nv_and_b32 v{T}, 3, v0\ns_lshl_b32 s50, s3, 4")
    for n in range(7):
        a(f"""
        v_add_u32 v{T+1}, {16*n}, v1
        v_mul_u32_u24 v{T+2}, 147, v{T+1}
        v_lshrrev_b32 v{T+2}, 10, v{T+2}
        v_mul_u32_u24 v{T+3}, 7, v{T+2}
        v_sub_u32 v{T+3}, v{T+1}, v{T+3}
        v_bfe_u32 v{T+4}, v{T+2}, 3, 1
        v_lshlrev_b32 v{T+4}, 1, v{T+4}
        v_xor_b32 v{T+4}, v{T+4}, v{T}
        v_lshlrev_b32 v{T+4}, 4, v{T+4}
        v_lshl_add_u32 v{T+4}, v{T+3}, 6, v{T+4}
        v_add_u32 v{T+2}, s50, v{T+2}
        v_mul_u32_u24 v{T+2}, 7168, v{T+2}
        v_add_u32 v{VW+n}, v{T+2}, v{T+4}
        """)
        if n % 4: a(f"v_subrev_u32 v{VW+n}, {1024*(n%4)}, v{VW+n}")
    nxt = L(f"""
    s_and_b32 s42, s42, 15
    s_lshl_b32 s43, s42, 7
    s_add_u32 s43, s43, s40
    s_mul_i32 s44, s42, {64*7168}
    s_add_u32 s44, s44, s41
    s_add_u32 s42, s42, 1
    """)
    a(f"""
    s_lshl_b32 s40, s32, 18
    s_mul_i32 s41, s36, 448
    s_mov_b32 s42, {'s32' if opt('ROT', 1) else 0}
    s_lshl_b32 s94, s3, 12
    s_mul_i32 s45, s3, 7168
    s_add_u32 s45, s45, 16384
    v_lshlrev_b32 v{vL16}, 4, v0
    s_lshl_b32 s46, s37, 11
    s_add_u32 s47, s46, {2*MB}
    """)
    a.ext(nxt)
    a("s_waitcnt lgkmcnt(0)")
    a.ext(mksrd(8, 64, 4 * MB) + mksrd(16, 72, 1024 * 7168))
    def g1issue(i):
        o = (i % 3) * STG; G = []
        for n in range(4):
            G.append(([f"s_add_u32 m0, s94, {o}"] if n == 0 else []) + [f"buffer_load_dwordx4 v{VX+n}, {XS}, s43 offen offset:{1024*n} lds ;@s{i}"])
        for n in range(7):
            G.append(([f"s_add_u32 m0, s45, {o + 1024*n}"] if n % 4 == 0 else []) + [f"buffer_load_dwordx4 v{VW+n}, s[16:19], s44 offen offset:{1024*(n%4)} lds ;@s{i}"])
        G[-1] += nxt
        return G
    for g in g1issue(0): a.ext(g)
    for r in range(2):
        for e in range(2): a(f"buffer_load_dwordx4 {vr(X+8*r+4*e,4)}, v{vL16}, {XS}, s{46+r} offen offset:{1024*e} ;@xb")
    sd_ = [mksrd(4, 84, 256 * MB), mksrd(12, 76, 3584 * 2048), mksrd(20, 74, 7168), mksrd(24, 80, 4 * MB), mksrd(28, 82, 256)]
    kf, bs, hf = ACC, ACC + 1, ACC + 2; TT = ACC + 4
    sd_ += L(f"""
    v_and_b32 v1, 31, v0
    v_lshrrev_b32 v{vH}, 5, v0
    v_cvt_f32_u32 v{kf}, v1
    v_cvt_f32_u32 v{hf}, v{vH}
    v_cvt_f32_u32 v{ph}, s37
    v_mul_f32 v{kf}, {fhex(1/32)}, v{kf}
    v_mul_f32 v{ph}, {fhex(1/2048)}, v{ph}
    v_mul_f32 v{bs}, {fhex(8.0)}, v{hf}
    v_mul_f32 v{bs}, v{bs}, v{kf}
    """)
    def s1(grp, T_):
        o = []
        for x, i in enumerate(grp): o += [f"v_cos_f32 v{T_+4+x}, v{T_+x}", f"v_sin_f32 v{T_+8+x}, v{T_+x}"]
        for x in (0, 2):
            i = grp[x] // 2
            o.append(f"v_cvt_pk_bf16_f32 v{C1c+i}, v{T_+4+x}, v{T_+5+x}")
            o.append(f"v_cvt_pk_bf16_f32 v{C1s+i}, -v{T_+8+x}, -v{T_+9+x}")
        return o
    sd_ += trig(kf, bs, [16 * (j // 8) + j % 8 for j in range(16)], TT, s1)
    sd_ += L(f"v_mul_f32 v{kf}, {fhex(1/32)}, v{kf}\nv_mul_f32 v{bs}, 4.0, v{hf}\nv_mul_f32 v{bs}, v{bs}, v{kf}")
    sd_ += trig(kf, bs, NS, TT, sink_f32(TC, TS))
    sd_ += L(f"""
    v_lshrrev_b32 v{kf}, 1, v1
    v_and_b32 v{bs}, 1, v1
    v_cvt_f32_u32 v{kf}, v{kf}
    v_cvt_f32_u32 v{bs}, v{bs}
    v_mul_f32 v{kf}, {fhex(1/32)}, v{kf}
    v_mul_f32 v{bs}, {fhex(0.25)}, v{bs}
    v_mul_f32 v{hf}, 4.0, v{hf}
    v_fmac_f32 v{bs}, v{hf}, v{kf}
    """)
    sd_ += trig(kf, bs, NS, TT, sink_pack([(C2a, "c", "s")]))
    sd_.append(f"v_add_f32 v{bs}, v{bs}, v{ph}")
    sd_ += trig(kf, bs, NS, TT, sink_pack([(C2c, "c", "s")]))
    WA = XT + 16
    sd_ += L(f"""
    s_bfe_u32 s50, s35, 0x20002
    v_xor_b32 v{vP}, s50, v{vK}
    v_bfe_u32 v{T}, v{vP}, 1, 1
    v_and_b32 v{T+1}, 1, v{vP}
    v_bfe_u32 v{T+2}, v{vP}, 2, 5
    v_lshrrev_b32 v{T+3}, 7, v{vP}
    v_mul_u32_u24 v{T+4}, 513, v{T}
    v_lshl_add_u32 v{T+2}, v{T+1}, 5, v{T+2}
    v_lshl_add_u32 v{T+2}, v{T+3}, 6, v{T+2}
    v_add_u32 v{T+1}, v{T+2}, v{T+4}
    v_lshrrev_b32 v{T+3}, 5, v{T+1}
    v_lshl_add_u32 v{T+1}, v{T+3}, 3, v{T+1}
    v_lshl_add_u32 v{T+1}, v{T}, 4, v{T+1}
    v_lshlrev_b32 v{T+1}, 2, v{T+1}
    v_add_u32 v{WA+1}, {S+640}, v{T+1}
    v_add_u32 v{WA+2}, {S+1280}, v{T+1}
    v_add_u32 v{WA+3}, {S+1920}, v{T+1}
    v_mul_u32_u24 v{T}, {4*641}, v{T}
    v_add_u32 v{T}, {4*656}, v{T}
    """)
    sd_.append(L(f"v_cmp_eq_u32 vcc, 0, v{T+2}\nv_cndmask_b32 v{T+1}, v{T+1}, v{T}, vcc"))
    sd_ += L(f"""
    v_add_u32 v{WA}, {S}, v{T+1}
    v_lshlrev_b32 v{vP}, 2, v{vP}
    v_add_u32 v{vP}, {S}, v{vP}
    v_lshlrev_b32 v{vK}, 4, v{vK}
    """)
    sd_.append(M("at", 0))
    sd_ += plane_rd(XT, [WA, WA + 1, WA + 2, WA + 3], WPP // 256) + plane_st(XT, vK, WT_OFF, "pub")
    CA = ACC + 16; CC = ACC + 48; ON = XT + 20
    sd_ += L(f"""
    v_lshrrev_b32 v{T}, 4, v0
    v_bfe_u32 v{T+1}, v0, 2, 2
    v_lshl_add_u32 v{T+1}, v{T}, 3, v{T+1}
    v_mul_u32_u24 v{T+1}, 448, v{T+1}
    v_and_b32 v{T+2}, 3, v0
    v_lshl_add_u32 v{T+1}, v{T+2}, 3, v{T+1}
    s_lshl_b32 s50, s3, 7
    v_add_u32 v{T+1}, s50, v{T+1}
    v_lshlrev_b32 v{vE}, 4, v{T}
    v_and_b32 v{T}, 1, v{T}
    v_lshlrev_b32 v{T}, 5, v{T}
    s_lshl_b32 s51, s36, 4
    s_add_u32 s51, s51, s32
    s_lshl_b32 s51, s51, 2
    s_add_u32 s51, s51, s3
    s_lshl_b32 s51, s51, 8
    s_add_u32 s101, s51, {CS_OFF}
    """)
    sd_ += [f"v_mov_b32 v{ON+i}, 0x3f803f80" for i in range(4)]
    sd_.append(M("sync"))
    def csrd(k):
        o = L(f"""
        v_add_u32 v{T+1}, {16384 + (k % 3) * STG}, v{T+1}
        v_add_u32 v{T+2}, v{T+1}, v{T}
        v_sub_u32 v{T+3}, v{T+1}, v{T}
        """)
        for t in range(4):
            for sub in range(2):
                for e in range(2):
                    o.append(f"ds_read_b64_tr_b16 {vr(CA+8*t+4*sub+2*e,2)}, v{T+2+(t&1)} offset:{32*t+14336*sub+1792*e}")
        return o + ["s_waitcnt lgkmcnt(0)"]
    sd_.append(csrd)
    for sub in range(2):
        for t in range(4): sd_.append(mfma16(CC + 4 * t, CA + 8 * t + 4 * sub, ON, "0" if sub == 0 else None))
    sd_ += L(f"""
    v_bfe_u32 v{T}, v0, 2, 2
    v_lshl_add_u32 v{T}, v{vH}, 3, v{T}
    v_lshlrev_b32 v{vT}, 6, v{T}
    v_bfe_u32 v{T}, v0, 4, 1
    v_lshl_add_u32 v{vT}, v{T}, 5, v{vT}
    v_and_b32 v{T}, 3, v0
    v_lshl_add_u32 v{vT}, v{T}, 3, v{vT}
    s_add_u32 s50, s94, {S}
    v_add_u32 v{vT}, s50, v{vT}
    v_add_u32 v{T+11}, s50, v{vL16}
    """)
    sd_.append(["s_mov_b32 exec_lo, 0x10001", "s_mov_b32 exec_hi, 0x10001"] +
               [f"buffer_store_dwordx4 {vr(CC+4*t,4)}, v{vE}, {WS}, s101 offen offset:{64*t} {SC} ;@pub" for t in range(4)] + ["s_mov_b64 exec, -1"])
    sd_.append("WAITV xb")
    F_ = Fv
    for i in range(16): sd_ += [f"v_lshlrev_b32 v{F_+2*i}, 16, v{X+i}", f"v_and_b32 v{F_+2*i+1}, 0xffff0000, v{X+i}"]
    Q = ACC
    for r in range(2):
        for i in range(4): sd_.append(f"v_pk_add_f32 {vr(Q+8*r+2*i,2)}, {vr(F_+16*r+4*i,2)}, {vr(F_+16*r+4*i+2,2)}")
    for r in range(2):
        for i in range(2): sd_.append(f"v_pk_add_f32 {vr(Q+8*r+4*i,2)}, {vr(Q+8*r+4*i,2)}, {vr(Q+8*r+4*i+2,2)}")
    for r in range(2): sd_.append(f"v_pk_add_f32 {vr(Q+8*r,2)}, {vr(Q+8*r,2)}, {vr(Q+8*r+4,2)}")
    for r in range(2): sd_ += [f"v_add_f32 v{T+2*r}, v{Q+8*r}, v{Q+8*r+1}", f"v_sub_f32 v{T+2*r+1}, v{Q+8*r}, v{Q+8*r+1}"]
    sd_ += L(f"""
    v_permlane16_swap_b32 v{T}, v{T+1}
    v_permlane16_swap_b32 v{T+2}, v{T+3}
    v_add_f32 v{T}, v{T}, v{T+1}
    v_add_f32 v{T+2}, v{T+2}, v{T+3}
    v_permlane32_swap_b32 v{T}, v{T+2}
    v_add_f32 v{T}, v{T}, v{T+2}
    """)
    sd_ += ror_reduce(T)
    sd_ += L(f"v_mul_f32 v{T+1}, {fhex(1/1024)}, v{T}\nv_mov_b32 v{T+2}, v{T+1}")
    sd_ += rbf(T + 2)
    sd_ += L(f"""
    v_sub_f32 v{T+3}, v{T+1}, v{T+2}
    v_readlane_b32 s96, v{T+2}, 0
    v_readlane_b32 s98, v{T+2}, 32
    v_readlane_b32 s92, v{T}, 16
    v_readlane_b32 s93, v{T}, 48
    """)
    for r in range(2):
        for i in range(8):
            sd_.append(f"v_pk_add_f32 {vr(F_+16*r+2*i,2)}, {vr(F_+16*r+2*i,2)}, s[{96+2*r}:{97+2*r}] op_sel_hi:[1,0] neg_lo:[0,1] neg_hi:[0,1]")
    for i in range(4):
        for r in range(2):
            for c in range(2):
                s_ = vr(F_ + 16 * r + 4 * i + 2 * c, 2); d = vr(Q + 4 * r + 2 * c, 2)
                sd_.append(f"v_pk_mul_f32 {d}, {s_}, {s_}" if i == 0 else f"v_pk_fma_f32 {d}, {s_}, {s_}, {d}")
    for r in range(2): sd_.append(f"v_pk_add_f32 {vr(Q+4*r,2)}, {vr(Q+4*r,2)}, {vr(Q+4*r+2,2)}")
    for r in range(2): sd_.append(f"v_add_f32 v{T+4+r}, v{Q+4*r}, v{Q+4*r+1}")
    sd_ += L(f"""
    v_permlane32_swap_b32 v{T+4}, v{T+5}
    v_add_f32 v{T+4}, v{T+4}, v{T+5}
    v_mov_b32 v{T+5}, v{T+4}
    v_permlane16_swap_b32 v{T+4}, v{T+5}
    v_add_f32 v{T+4}, v{T+4}, v{T+5}
    """)
    sd_ += ror_reduce(T + 4)
    sd_ += L(f"""
    v_mul_f32 v{T+4}, {fhex(1/1024)}, v{T+4}
    v_fma_f32 v{T+4}, -v{T+3}, v{T+3}, v{T+4}
    v_max_f32 v{T+4}, 0, v{T+4}
    """)
    sd_ += rbf(T + 4) + [f"v_add_f32 v{T+4}, {fhex(1e-5)}, v{T+4}"] + rbf(T + 4) + [f"v_sqrt_f32 v{T+4}, v{T+4}"] + rbf(T + 4)
    sd_ += L(f"""
    v_cvt_pk_bf16_f32 v{T+5}, -v{T+2}, v{T+4}
    v_rcp_f32 v{T+4}, v{T+4}
    v_lshlrev_b32 v{T+6}, 12, v{vH}
    s_lshl_b32 s50, s37, 2
    s_add_u32 s101, s50, {ST_OFF}
    v_readlane_b32 s96, v{T+4}, 0
    v_readlane_b32 s98, v{T+4}, 32
    """)
    sd_.append(L(f"s_mov_b32 exec_lo, 1\ns_mov_b32 exec_hi, 1\nbuffer_store_dword v{T+5}, v{T+6}, {WS}, s101 offen {SC} ;@pub\ns_mov_b64 exec, -1"))
    AC = ACC
    for i in range(8): sd_.append(f"v_pk_mul_f32 {vr(F_+2*i,2)}, {vr(F_+2*i,2)}, s[96:97] op_sel_hi:[1,0]")
    for i in range(8):
        sd_.append(f"v_pk_fma_f32 {vr(AC+2*i,2)}, {vr(F_+16+2*i,2)}, s[98:99], {vr(F_+2*i,2)} op_sel_hi:[1,0,1]")
        sd_.append(f"v_pk_fma_f32 {vr(AC+16+2*i,2)}, {vr(F_+16+2*i,2)}, s[98:99], {vr(F_+2*i,2)} op_sel_hi:[1,0,1] neg_lo:[1,0,0] neg_hi:[1,0,0]")
    for i in range(16): sd_.append(f"v_cvt_pk_bf16_f32 v{AC+32+i}, v{AC+2*i}, v{AC+2*i+1}")
    for i in range(4): sd_.append(f"ds_write_b128 v{T+11}, {vr(AC+32+4*i,4)} offset:{1024*i}")
    NY = XT
    sd_ += L(f"""
    v_mov_b32 v{T}, s96
    v_mov_b32 v{T+1}, s98
    v_mul_f32 v{T}, s92, v{T}
    v_mul_f32 v{T+1}, s93, v{T+1}
    v_cos_f32 v{T+2}, v{ph}
    v_sin_f32 v{T+3}, v{ph}
    v_add_f32 v{T+4}, v{T}, v{T+1}
    v_sub_f32 v{T+5}, v{T}, v{T+1}
    v_mul_f32 v{T+4}, 0.5, v{T+4}
    v_mul_f32 v{T+5}, 0.5, v{T+5}
    v_mul_f32 v{T+2}, v{T+2}, v{T+5}
    v_mul_f32 v{T+3}, v{T+3}, v{T+5}
    v_cvt_pk_bf16_f32 v{NY}, v{T+4}, 0
    v_cvt_pk_bf16_f32 v{NY+1}, v{T+2}, -v{T+3}
    s_waitcnt lgkmcnt(0)
    """)
    A1 = F_
    for r in range(2):
        for b in range(2):
            for e in range(2): sd_.append(f"ds_read_b64_tr_b16 {vr(A1+8*r+4*b+2*e,2)}, v{vT} offset:{2048*r+1024*b+256*e}")
    sd_.append("s_waitcnt lgkmcnt(0)")
    for r in range(2):
        for b in range(2):
            sd_.append(mfma32(ACC + 32 * r, A1 + 8 * r + 4 * b, C1c + 4 * b, "0" if b == 0 else None))
            sd_.append(mfma32(ACC + 32 * r + 16, A1 + 8 * r + 4 * b, C1s + 4 * b, "0" if b == 0 else None))
    PV = F_
    for r in range(2):
        D = X if r == 0 else F_ + 16
        sd_ += cmul(ACC + 32 * r, ACC + 32 * r + 16, TC, TS, True, T, D, False)
        for b in range(4): sd_.append(mfma32(ACC + 32 * r, (C2c if r else C2a) + 4 * b, D + 4 * b, "0" if b == 0 else None))
    for r in range(2):
        P = ACC + 32 * r
        for b in range(4):
            for t in range(2): sd_.append(f"v_cvt_pk_bf16_f32 v{PV+4*b+t+2*r}, v{P+4*b+2*t}, v{P+4*b+2*t+1}")
    sd_.append(L(f"s_mov_b64 exec, 1\nv_mov_b32 v{PV}, v{NY}\nv_mov_b32 v{PV+2}, v{NY+1}\ns_mov_b64 exec, -1"))
    for b in range(4): sd_.append(f"ds_write_b128 v{T+11}, {vr(PV+4*b,4)} offset:{1024*b}")
    sd_.append("s_waitcnt lgkmcnt(0)")
    sd_.append(M("sync"))
    sd_ += plane_rd(XT, [vP], 16) + plane_st(XT, vK, P_OFF, "pub")
    sd_.append(st("y", 2) + ["s_nop 0"])
    FR, FI = C1c, C2a
    kf, bs = ACC, ACC + 1
    cst = L(f"""
    v_cvt_f32_u32 v{kf}, v1
    v_cvt_f32_u32 v{bs}, v{vH}
    v_mul_f32 v{kf}, {fhex(1/32)}, v{kf}
    v_mul_f32 v{bs}, 4.0, v{bs}
    v_mul_f32 v{bs}, v{bs}, v{kf}
    """)
    cst += trig(kf, bs, NS, TT, sink_pack([(FR, "c", "s"), (FI, "-s", "c")]))
    sd_ += cst
    if opt("YW"): sd_.append(M("sync"))
    sd_.append("WAITV pub")
    sd_.append(M("sync"))
    SK = a.label("sk")
    sd_.append(L(f"""
    s_cmp_lg_u32 s3, 0
    s_cbranch_scc1 {SK}
    s_and_b32 s50, s2, 63
    s_lshl_b32 s50, s50, 2
    s_mov_b64 exec, 1
    v_mov_b32 v{vF}, 1
    buffer_atomic_add v{vF}, off, s[28:31], s50 {SC} ;@cond
    s_mov_b64 exec, -1
    {SK}:
    """) + st("y", 3))
    sd_ += w2addr(VW2, 0, T) + g2bases()
    sd_ += L(f"""
    v_lshrrev_b32 v{vQ}, 2, v0
    v_mul_u32_u24 v{vQ}, {PITCH}, v{vQ}
    v_and_b32 v{T}, 3, v0
    v_lshl_add_u32 v{vQ}, v{T}, 4, v{vQ}
    v_bfe_u32 v{vP}, v0, 2, 2
    v_xor_b32 v{vP}, s3, v{vP}
    v_lshlrev_b32 v{vP}, 4, v{vP}
    v_lshl_add_u32 v{vP}, v0, 6, v{vP}
    v_lshlrev_b32 v{vT}, 2, v0
    v_and_b32 v{T}, 15, v0
    v_lshrrev_b32 v{T+1}, 4, v0
    v_lshlrev_b32 v{T+2}, 4, v{T}
    v_lshl_add_u32 v{T+2}, v{T+1}, 12, v{T+2}
    v_lshl_add_u32 v{T+3}, v{T}, 2, v{T+1}
    s_lshl_b32 s50, s3, 6
    v_add_u32 v{T+3}, s50, v{T+3}
    v_lshlrev_b32 v{vE}, 3, v{T+3}
    v_add_u32 v{vE}, {EPA}, v{vE}
    v_lshlrev_b32 v{T+3}, 1, v{T+3}
    buffer_load_ushort v{XT+16}, v{T+3}, s[20:23], s41 offen ;@b1
    """)
    ldS = f"buffer_load_dword v{vF}, v{vT}, s[28:31], 0 offen {SC}"
    YP = opt("YP", 12)
    sd_.append(M("at", YP))
    sd_.append(ldS + " ;@p0")
    sd_.append(M("sync"))
    g = poll(ldS, f"v_cmp_gt_u32 vcc, 4, v{vF}", "p0") + st("y", 4) + gather(vQ, P_OFF, S, "pd")
    g += L(f"""
    s_and_b32 s50, s3, 1
    s_lshl_b32 s50, s50, 8
    s_add_u32 m0, s50, {EPS}
    s_lshl_b32 s51, s32, 9
    s_add_u32 s50, s50, s51
    s_add_u32 s50, s50, {ST_OFF}
    buffer_load_dword v{vT}, {WS}, s50 offen {SC} lds ;@pd
    s_lshl_b32 s50, s36, 14
    s_lshl_b32 s51, s3, 8
    s_add_u32 s50, s50, s51
    s_add_u32 s50, s50, {CS_OFF}
    """)
    g += [f"buffer_load_dwordx4 {vr(XT+4*n,4)}, v{T+2}, {WS}, s50 offen offset:{1024*n} {SC} ;@pd" for n in range(4)]
    sd_.append(g)
    sd_.append(M("at", 14))
    sd_.append(gather(vQ, WT_OFF, WF_, "wd"))
    sd_.append("WAITV pd")
    for c in range(2): sd_ += [f"v_pk_add_f32 {vr(XT+2*c,2)}, {vr(XT+2*c,2)}, {vr(XT+4+2*c,2)}", f"v_pk_add_f32 {vr(XT+8+2*c,2)}, {vr(XT+8+2*c,2)}, {vr(XT+12+2*c,2)}"]
    for c in range(2): sd_.append(f"v_pk_add_f32 {vr(XT+2*c,2)}, {vr(XT+2*c,2)}, {vr(XT+8+2*c,2)}")
    sd_ += L(f"""
    v_permlane16_swap_b32 v{XT}, v{XT+1}
    v_permlane16_swap_b32 v{XT+2}, v{XT+3}
    v_add_f32 v{XT}, v{XT}, v{XT+1}
    v_add_f32 v{XT+2}, v{XT+2}, v{XT+3}
    s_mov_b32 s101, 0x07060302
    v_permlane32_swap_b32 v{XT}, v{XT+2}
    v_add_f32 v{XT}, v{XT}, v{XT+2}
    v_and_b32 v{XT+1}, 0xffff0000, v{XT}
    v_sub_f32 v{XT+1}, v{XT}, v{XT+1}
    v_and_b32 v{XT+2}, 0xffff0000, v{XT+1}
    v_perm_b32 v{XT+4}, v{XT+1}, v{XT}, s101
    v_sub_f32 v{XT+2}, v{XT+1}, v{XT+2}
    v_alignbit_b32 v{XT+5}, v{XT+16}, v{XT+2}, 16
    ds_write_b64 v{vE}, {vr(XT+4,2)}
    s_waitcnt lgkmcnt(0)
    """)
    sd_.append(M("by", 14))
    sd_.append(M("at", 15))
    P = X; W = C2c; WRr = Fv; WI = Fv + 16; A0 = ACC; A1 = ACC + 16; B0 = ACC + 32; B1 = ACC + 48
    sd_.append(f"v_add_u32 v{T}, {S}, v{vP}")
    for b in range(4): sd_.append(f"ds_read_b128 {vr(P+4*b,4)}, v{T} offset:{4096*b}")
    sd_.append("WAITV wd lgkm")
    YB = opt("YB", 500); YB0 = opt("YB0", 2000)
    sl = split(UN(sd_), -1, 15, lambda k: YB0 if k < 0 else (YB // 2 if k == 0 else YB))
    if opt("SHOW"): print("Y slices", {k: sum(cost(l) for g in v for l in g) for k, v in sl.items()})
    for k in range(-1, 16):
        if k == -1: main = g1issue(1) + g1issue(2)
        elif 1 <= k <= 13: main = g1issue(k + 2)
        elif k == 14: main = g2issue(0, VW2, None, doH=False)
        elif k == 15: main = sum([g2issue(i, VW2, None, doH=False) for i in (1, 2, 3)], [])
        else: main = []
        a.ext(weave(main, sl[k], opt("YPER", 24) if k >= 0 else opt("YPER0", 40)))
        if k < 15: a(f"WAITV s{k+1}")
        a("s_barrier")
        if k == -1: a.ext(st("y", 1))
    def stage(D0, D1, dat, data_is_A):
        o = []
        for b in range(4):
            for D, Fc in ((D0, FR), (D1, FI)):
                x, y = (dat + 4 * b, Fc + 4 * b) if data_is_A else (Fc + 4 * b, dat + 4 * b)
                o.append(mfma32(D, x, y, "0" if b == 0 else None))
        return o
    c_ = []
    for b in range(4): c_.append(f"ds_read_b128 {vr(W+4*b,4)}, v{vP} offset:{WF_+4096*b}")
    c_ += stage(A0, A1, P, True)
    c_.append("s_waitcnt lgkmcnt(0)")
    for i in range(16): c_ += [f"v_lshlrev_b32 v{WRr+i}, 16, v{W+i}", f"v_and_b32 v{WI+i}, 0xffff0000, v{W+i}"]
    c_ += cmul(A0, A1, TC, TS, True, T, P, False)
    c_ += stage(B0, B1, P, False)
    vA = [2, 3, 4, 5]; vBa, vBb, vO, vX0, vX1 = 6, 7, 8, 9, 10
    c_ += L(f"""
    s_and_b32 s43, s3, 1
    s_lshr_b32 s44, s3, 1
    v_lshrrev_b32 v{XT}, 2, v0
    v_and_b32 v{XT+1}, 7, v{XT}
    v_and_b32 v{XT+2}, 3, v0
    v_lshlrev_b32 v{XT+2}, 3, v{XT+2}
    v_lshl_add_u32 v{XT+2}, v{XT}, 8, v{XT+2}
    v_add_u32 v{XT+2}, {WR_}, v{XT+2}
    s_lshl_b32 s50, s43, 2
    v_xor_b32 v{XT+1}, s50, v{XT+1}
    """)
    for t in range(4): c_ += [f"v_xor_b32 v{XT+3}, {t}, v{XT+1}", f"v_lshl_add_u32 v{vA[t]}, v{XT+3}, 5, v{XT+2}"]
    c_ += cmul(B0, B1, WRr, WI, False, T, W, True)
    c_ += stage(A1, A0, W, True)
    c_ += L(f"""
    s_lshl_b32 s50, s44, 12
    s_lshl_b32 s51, s34, 11
    s_add_u32 s52, s50, s51
    v_add_u32 v{vBa}, s52, v{vL16}
    s_xor_b32 s52, s52, 2048
    v_add_u32 v{vBb}, s52, v{vL16}
    v_and_b32 v{XT}, 15, v0
    v_bfe_u32 v{XT+1}, v0, 4, 1
    v_lshlrev_b32 v{vO}, 11, v{XT}
    v_lshl_add_u32 v{vO}, v{XT+1}, 5, v{vO}
    v_lshl_add_u32 v{vO}, v{vH}, 4, v{vO}
    v_lshrrev_b32 v{XT+2}, 2, v{XT}
    v_xor_b32 v{XT+2}, v{XT+2}, v{vH}
    v_lshlrev_b32 v{vX0}, 6, v{XT}
    v_lshl_add_u32 v{vX0}, v{XT+2}, 4, v{vX0}
    v_lshl_add_u32 v{vX0}, v{XT+1}, 3, v{vX0}
    s_add_u32 s50, s94, {S}
    v_add_u32 v{vX0}, s50, v{vX0}
    v_xor_b32 v{vX1}, 32, v{vX0}
    """)
    c_ += cmul(A0, A1, TC, TS, False, T, P, True)
    c_ += stage(B1, B0, P, False)
    c_ += L(f"""
    s_lshl_b32 s40, s2, 14
    s_add_u32 s40, s40, s94
    s_add_u32 s40, s40, {EX_OFF}
    s_xor_b32 s41, s40, 16384
    s_lshl_b32 s42, s44, 1
    s_add_u32 s42, s42, s34
    s_lshl_b32 s50, s32, 2
    s_add_u32 s42, s42, s50
    s_lshl_b32 s42, s42, 16
    s_lshl_b32 s50, s33, 8
    s_add_u32 s42, s42, s50
    s_lshl_b32 s50, s43, 7
    s_add_u32 s42, s42, s50
    s_mov_b32 s47, 6
    """)
    for i in range(16): c_.append(f"v_cvt_pk_bf16_f32 v{W+i}, v{B0+i}, v{B1+i}")
    for b in range(4): c_.append(f"ds_write_b128 v{T+11}, {vr(W+4*b,4)} offset:{1024*b}")
    a.ext(unpk_all(c_) if opt("UNPKC", 0) else c_)
    a.ext(st("y", 5))
    a(f"s_waitcnt vmcnt(0) lgkmcnt(0)\ns_setprio {opt('YP2', 2)}\ns_barrier\nVMRESET")
    A2 = 64; F2 = [128, 160]
    ac2 = lambda t, u: A2 + 4 * (4 * u + t)
    def rd2(f, slot, sub):
        rdA = lambda t: [f"ds_read_b64_tr_b16 {vr(f+4*t,2)}, v{vA[t]} offset:{16384*slot+8192*sub}",
                         f"ds_read_b64_tr_b16 {vr(f+4*t+2,2)}, v{vA[t]} offset:{16384*slot+8192*sub+4096}"]
        rdB = lambda u: f"ds_read_b128 {vr(f+16+4*u,4)}, v{vBa if u < 2 else vBb} offset:{16384*slot+8192*sub+1024*(u&1)}"
        o = rdA(0) + [rdB(u) for u in range(4)]
        for t in range(1, 4): o += rdA(t)
        return o
    mf2 = lambda f, z=None: [mfma16(ac2(t, u), f + 4 * t, f + 16 + 4 * u, z) for t, u in snake(4, 4)]
    a.ext(rd2(F2[0], 0, 0))
    a("s_waitcnt lgkmcnt(0)")
    a.ext(interleave(mf2(F2[0], "0"), rd2(F2[1], 0, 1)))
    def body(i, extra=[]):
        a("s_waitcnt lgkmcnt(0)\ns_barrier")
        a.ext(interleave(mf2(F2[1]), rd2(F2[0], (i + 1) % 4, 0)))
        a("s_waitcnt lgkmcnt(0)")
        a.ext(interleave(mf2(F2[0]), rd2(F2[1], (i + 1) % 4, 1) + extra))
    LP = a.label("g2loop")
    a(f"{LP}:")
    for i in range(4): body(i, ["s_sub_u32 s47, s47, 1", "s_cmp_lg_u32 s47, 0"] if i == 3 else [])
    a(f"s_cbranch_scc1 {LP}")
    for i in range(24, 27): body(i)
    a("s_waitcnt lgkmcnt(0)")
    a.ext([mfma16(ac2(t, u), F2[1] + 4 * t, F2[1] + 16 + 4 * u) for u in (2, 3, 0, 1) for t in range(4)])
    a.ext(st("y", 6))
    PKx = 128; BV = 144; EXR = 192; TU = 208
    for i in range(16): a(f"v_cvt_pk_bf16_f32 v{PKx+i}, v{A2+32+2*i}, v{A2+33+2*i}")
    for k in range(4): a(f"buffer_store_dwordx4 {vr(PKx+4*k,4)}, v{vL16}, {WS}, s41 offen offset:{1024*k} {SC}")
    ldE = [f"buffer_load_dwordx4 {vr(EXR+4*k,4)}, v{vL16}, {WS}, s40 offen offset:{1024*k} {SC}" for k in range(4)]
    a.ext(ldE)
    a("s_barrier")
    for x in range(2):
        for t in range(4): a(f"ds_read_b64 {vr(BV+8*x+2*t,2)}, v{vX1 if t >> 1 else vX0} offset:{2048*x+1024*(t&1)}")
    def addp(src):
        for i in range(16):
            t = TU + 2 * (i & 3)
            a(f"v_lshlrev_b32 v{t}, 16, v{src+i}\nv_and_b32 v{t+1}, 0xffff0000, v{src+i}\nv_pk_add_f32 {vr(A2+2*i,2)}, {vr(A2+2*i,2)}, {vr(t,2)}")
    a("s_waitcnt lgkmcnt(0)")
    addp(BV)
    l1 = a.label("pe"); ok = a.label("oke")
    a(f"s_mov_b32 s54, {BOUND}\n{l1}:\ns_waitcnt vmcnt(0)")
    for i in range(5): a(f"v_max3_u32 v{TU+i}, v{EXR+3*i}, v{EXR+3*i+1}, v{EXR+3*i+2}")
    a(f"""
    v_max3_u32 v{TU}, v{TU}, v{TU+1}, v{TU+2}
    v_max3_u32 v{TU+3}, v{TU+3}, v{TU+4}, v{EXR+15}
    v_max_u32 v{TU}, v{TU}, v{TU+3}
    v_cmp_eq_u32 vcc, -1, v{TU}
    s_cbranch_vccz {ok}
    s_sub_u32 s54, s54, 1
    s_cbranch_scc1 {ok}
    """)
    a.ext(ldE)
    a(f"s_branch {l1}\n{ok}:")
    addp(EXR)
    for i in range(16): a(f"v_cvt_pk_bf16_f32 v{PKx+i}, v{A2+2*i}, v{A2+1+2*i}")
    for k in range(4): a(f"v_permlane16_swap_b32 v{PKx+4*k}, v{PKx+4*k+2}\nv_permlane16_swap_b32 v{PKx+4*k+1}, v{PKx+4*k+3}")
    for k in range(4):
        if k == 2: a("s_add_u32 s42, s42, 32768")
        a(f"buffer_store_dwordx4 {vr(PKx+4*k,4)}, v{vO}, s[24:27], s42 offen offset:{64*(k&1)}")
    if common.STAMPS: a("s_waitcnt vmcnt(0)")
    a.ext(st("y", 7))
    stamp_out(a, 4)
    a(f"{END}:\ns_endpgm")

def stamp_out(a, wadd):
    if not common.STAMPS: return
    a(f"s_waitcnt lgkmcnt(0)\ns_lshl_b32 s55, s2, 3\ns_add_u32 s55, s55, s3\ns_add_u32 s55, s55, {wadd}\ns_lshl_b32 s55, s55, 6\ns_add_u32 s55, s55, {STAMP_OFF}")
    for i in range(16): a(f"v_mov_b32 v{2+i}, s{60+2*i}")
    for i in range(4): a(f"buffer_store_dwordx4 {vr(2+4*i,4)}, off, {WS}, s55 offset:{16*i}")

def build(aslist=False, extra=None):
    import hazard
    a = Asm()
    name = "f_kernel" if aslist else NAME + "_kernel"
    fused(a, name)
    Ls = [f"; @launch {'kernel='+name+' ' if aslist else ''}grid=(256,1,1) block=(512,1,1) lds=163840"]; D = [kernel_desc(name, 256)]
    if extra:
        l, d = extra(a); Ls.append(l); D.append(d)
    a.lines = resolve(a.lines)
    a.lines, n = hazard.fix(a.lines, verbose=bool(opt('HZV')))
    print("hazard pads", n, "lines", len(a.lines))
    head = "; generated by dev/fused.py\n" + "\n".join(Ls) + "\n" + '.amdgcn_target "amdgcn-amd-amdhsa--gfx950"\n'
    return head + a.text() + "".join(D)

if __name__ == "__main__":
    common.STAMPS = bool(os.environ.get("STAMPS"))
    ex = None
    if os.environ.get("PROBE"):
        import probe
        pr = [int(x) for x in os.environ["PROBE"].split(",")]
        ex = lambda a: probe.probe(a, "pr_kernel", *pr)
    open(sys.argv[1], "w").write(build(aslist=bool(opt("LIST")) or ex is not None, extra=ex))
```

```python
from common import *
def probe(a, name, ka, i, kb, j, M, wg=0, wave=0):
    kernel_begin(a, name)
    L = a.label("pl"); E = a.label("pe")
    o = (wg * 8 + wave) * 64
    a(f"""
    s_cmp_lg_u32 s2, 0
    s_cbranch_scc1 {E}
    s_load_dwordx2 s[8:9], s[0:1], {KA['ws']}
    s_waitcnt lgkmcnt(0)
    s_add_u32 s8, s8, {STAMP_OFF}
    s_addc_u32 s9, s9, 0
    s_mov_b32 s4, {ka*MB + o + 8*i + 4}
    s_mov_b32 s5, {kb*MB + o + 8*j + 4}
    s_load_dword s10, s[8:9], s4
    s_load_dword s11, s[8:9], s5
    s_memrealtime s[12:13]
    s_waitcnt lgkmcnt(0)
    s_sub_u32 s10, s11, s10
    s_min_u32 s10, s10, 10000
    s_mul_i32 s10, s10, {M}
    s_mov_b32 s20, 0
    {L}:
    s_memrealtime s[14:15]
    s_add_u32 s20, s20, 1
    s_waitcnt lgkmcnt(0)
    s_sub_u32 s16, s14, s12
    s_cmp_ge_u32 s20, 2000000
    s_cbranch_scc1 {E}
    s_cmp_lt_u32 s16, s10
    s_cbranch_scc1 {L}
    {E}:
    s_endpgm
    """)
    return f"; @launch kernel={name} grid=(1,1,1) block=(64,1,1) lds=0", kernel_desc(name, 8)

def probe2(a, name, wave, i, j, M, wg=77):
    o = MB + (wg * 8 + wave) * 512
    l, d = probe(a, name, 0, 0, 0, 0, M)
    for n, x in enumerate(a.lines):
        if x.strip() == "s_mov_b32 s4, 4": a.lines[n] = f"    s_mov_b32 s4, {o + 4*i}"
        if x.strip() == "s_mov_b32 s5, 4": a.lines[n] = f"    s_mov_b32 s5, {o + 4*j}"
    return l, d
```

```python
import re, os
from asmlib import *
TRANS = ("v_exp_f32","v_log_f32","v_rcp_f32","v_rsq_f32","v_sqrt_f32","v_sin_f32","v_cos_f32")
class M:
    def __init__(s, kind, n=0): s.kind = kind; s.n = n
def L(s):
    return [l.strip() for l in s.strip("\n").split("\n") if l.strip()]
def cost(l):
    op = l.split()[0]
    if op.endswith(":") or op in ("WAITV", "TRACE"): return 0
    if op.startswith("v_mfma"): return 24 if "32x32" in op else 12
    if op in TRANS: return 8
    if op.startswith("v_pk_"): return 6
    if op.startswith("v_"): return 4
    if op.startswith("ds_write"): return 6
    if op.startswith("ds_"): return 2
    if op.startswith("buffer"): return 8
    if op == "s_waitcnt": return 16
    return 1
def split(side, first, last, budget, xf=lambda k, g: g):
    out = {k: [] for k in range(first, last + 1)}
    k = first; used = 0
    for it in side:
        if isinstance(it, M):
            if it.kind == "sync": k += max(1, it.n); used = 0
            elif it.kind == "at":
                if it.n > k: k = it.n; used = 0
            elif it.kind == "by": assert k <= it.n, f"schedule overflow: slice {k} > {it.n}"
            elif it.kind == "mark": it.n = k
            elif it.kind == "after":
                if it.n.n >= k: k = it.n.n + 1; used = 0
            elif it.kind == "tail": out[k].append(it)
            continue
        while True:
            g = it(k) if callable(it) else ([it] if isinstance(it, str) else list(it))
            g = xf(k, g)
            c = sum(cost(l) for l in g)
            if used and used + c > budget(k) and k < last: k += 1; used = 0; continue
            break
        assert k <= last
        out[k].append(g); used += c
    return out
def weave(main, items, frac=0.85):
    out = []; items = list(items); main = list(main); tail = []
    for j, g in enumerate(items):
        if isinstance(g, M): tail = [x for x in items[j + 1:] if not isinstance(x, M)]; items = items[:j]; break
    tot = sum(cost(l) for g in items for l in g) * frac
    c = 0
    for j, g in enumerate(main):
        out += g
        while items and c < tot * (j + 1) / len(main):
            x = items.pop(0); out += x; c += sum(cost(l) for l in x)
    for x in items + tail: out += x
    res = []; last = None
    for l in out:
        if re.match(r"s_\w+ m0,", l):
            if l == last and " m0, m0" not in l: continue
            last = l
        res.append(l)
    return res
def resolve(lines):
    out = []; hist = []
    for l in lines:
        s = l.strip()
        if s == "VMRESET": hist = []; continue
        if s.startswith("WAITV"):
            p = s.split(); tags = [t for t in p[1:] if t != "lgkm"]
            n = 63
            for t in tags:
                idx = [i for i, h in enumerate(hist) if h == t]
                if not idx and os.environ.get("KILL"): continue
                assert idx, f"tag {t} not issued"
                n = min(n, len(hist) - 1 - idx[-1])
            out.append(f"    s_waitcnt vmcnt({n})" + (" lgkmcnt(0)" if "lgkm" in p else "") + f" ; {' '.join(tags)}")
            continue
        if s.startswith(("buffer_", "global_")):
            m = re.search(r";@(\S+)", s)
            t = m.group(1) if m else ""
            if t != "cond": hist.append(t)
        out.append(l)
    return out
def unpk(l):
    m = re.match(r"v_pk_(mul|add|fma)_f32 (.*)", l)
    if not m: return [l]
    op = m.group(1); rest = m.group(2)
    mods = dict((k, [int(x) for x in v.split(",")]) for k, v in re.findall(r"(op_sel_hi|op_sel|neg_lo|neg_hi):\[([\d,]+)\]", rest))
    rest = re.sub(r"\s+(op_sel_hi|op_sel|neg_lo|neg_hi):\[[\d,]+\]", "", rest)
    ops = [o.strip() for o in rest.split(",")]
    n = len(ops) - 1
    def el(o, s):
        mm = re.fullmatch(r"([vs])\[(\d+):(\d+)\]", o)
        return f"{mm.group(1)}{int(mm.group(2)) + s}" if mm else o
    res = []
    for h in range(2):
        sel = mods.get("op_sel_hi" if h else "op_sel", [h] * n); neg = mods.get("neg_hi" if h else "neg_lo", [0] * n)
        src = [("-" if neg[i] else "") + el(ops[i + 1], sel[i]) for i in range(n)]
        d = el(ops[0], h)
        if h: assert el(ops[0], 0) not in [x.lstrip("-") for x in src]
        if op == "fma" and src[2] == d and not any(neg) and src[1][0] == "v": res.append(f"v_fmac_f32 {d}, {src[0]}, {src[1]}")
        elif op == "add" and src[1][0] == "-" and src[0][0] != "-" and src[1][1] == "v": res.append(f"v_sub_f32 {d}, {src[0]}, {src[1][1:]}")
        elif op == "add" and src[1][0] == "-" and src[0][0] == "v": res.append(f"v_subrev_f32 {d}, {src[1][1:]}, {src[0]}")
        elif op != "fma" and src[1][0] == "s" and src[0][0] == "v": res.append(f"v_{op}_f32 {d}, {src[1]}, {src[0]}")
        else: res.append(f"v_{op}_f32 {d}, " + ", ".join(src))
    return res
def unpk_all(side):
    o = []
    for it in side:
        if isinstance(it, str): o += unpk(it)
        elif isinstance(it, list): o.append([y for x in it for y in unpk(x)])
        else: o.append(it)
    return o
```

```python
import sys, os, re
from common import *
import common
from sched import *
from spec import nk, trig, sink_f32, sink_pack, cmul, rbf, ror_reduce

PITCH = 16640
H_OFF = 0; P_OFF = 16 * MB; WT_OFF = 21 * MB; Q_OFF = 26 * MB; BASE_OFF = 31 * MB; EX_OFF = 35 * MB
CS_OFF = 39 * MB; ST_OFF = CS_OFF + 0x40000; HF_OFF = ST_OFF + 0x2000; CF_OFF = HF_OFF + 0x1000; DF_OFF = CF_OFF + 0x1000
HP = 57344
STG = 45056; S = 3 * STG; PL = 4352; TFR = S + 4 * PL; TFI = TFR + 4096; EPA = TFI + 4096; EPS = EPA + 2048
TB = 2 * STG
TD = 49152
WR_ = 65536
WS, XS, W2S = "s[4:7]", "s[8:11]", "s[12:15]"
SC = "sc1"
BOUND = 20000
NS = [nk(r) for r in range(16)]

def mksrd(d, p, n):
    return L(f"s_mov_b32 s{d}, s{p}\ns_mov_b32 s{d+1}, s{p+1}\ns_mov_b32 s{d+2}, {n}\ns_mov_b32 s{d+3}, 0x20000")

def fused(a, name):
    for Q in range(112): assert (Q * 147) >> 10 == Q // 7
    UN = (lambda k, g: [y for x in g for y in unpk(x)]) if opt("UNPK", 1) else (lambda k, g: g)
    TR = {"x": [], "y": []}
    global TRN; TRN = TR
    def tr(role, nm):
        sel = os.environ.get("TRSEL")
        if sel and nm != "END" and nm not in sel.split(","): return []
        return [f"TRACE {role} {nm}"] if opt("TRACE") else []
    def poll(load, cmp, tag):
        l1 = a.label("pl"); ok = a.label("ok")
        return L(f"""
        WAITV {tag}
        s_mov_b32 s54, {BOUND}
        {l1}:
        {cmp}
        s_cbranch_vccz {ok}
        s_sub_u32 s54, s54, 1
        s_cbranch_scc1 {ok}
        {load} ;@cond
        s_waitcnt vmcnt(0)
        s_branch {l1}
        {ok}:
        """)
    def plane_rd(D, adr, step=4):
        o = []; pp = PL // 256
        for n in range(4):
            for c in range(2):
                r, k = adr[min(n, len(adr) - 1)], step * n
                o.append(f"ds_read2st64_b32 {vr(D+4*n+2*c,2)}, v{r} offset0:{2*c*pp+k} offset1:{(2*c+1)*pp+k}")
        return o
    def plane_st(D, vo, off, tag):
        o = [L(f"s_mul_i32 s53, s35, {PITCH}\ns_add_u32 s53, s53, {off}\ns_waitcnt lgkmcnt(0)")]
        for n in range(4):
            o.append([f"buffer_store_dwordx4 {vr(D+4*n,4)}, v{vo}, {WS}, s53 offen {SC} ;@{tag}"] + ([f"s_add_u32 s53, s53, 4096"] if n < 3 else []))
        return o
    def gather(vq, off, lds, tag):
        o = [L(f"""
        s_mul_i32 s55, s3, {64*PITCH}
        s_lshl_b32 s52, s35, 6
        s_add_u32 s55, s55, s52
        s_add_u32 s55, s55, {off}
        """)]
        for n in range(4):
            o.append([f"s_add_u32 m0, s94, {lds+1024*n}"] + ([f"s_add_u32 s55, s55, {16*PITCH}"] if n else []) +
                     [f"buffer_load_dwordx4 v{vq}, {WS}, s55 offen {SC} lds ;@{tag}"])
        return o
    def w2addr(VW2, ln, t):
        o = L(f"""
        v_lshrrev_b32 v{t}, 4, v{ln}
        v_bfe_u32 v{t+1}, v{ln}, 1, 3
        v_and_b32 v{t+2}, 1, v{ln}
        v_lshlrev_b32 v{t+2}, 4, v{t+2}
        """)
        for n in range(4):
            o += L(f"""
            v_add_u32 v{VW2+n}, {4*n}, v{t}
            v_and_b32 v{t+3}, 7, v{VW2+n}
            v_xor_b32 v{t+3}, v{t+3}, v{t+1}
            v_lshl_add_u32 v{t+3}, v{t+3}, 5, v{t+2}
            v_lshl_add_u32 v{VW2+n}, v{VW2+n}, 11, v{t+3}
            """)
            if n: o.append(f"v_subrev_u32 v{VW2+n}, {1024*n}, v{VW2+n}")
        return o
    def g2bases():
        return L(f"""
        s_lshl_b32 s94, s3, 12
        s_lshl_b32 s50, s32, 1
        s_add_u32 s50, s50, s34
        s_mul_i32 s50, s50, {8*HP}
        s_add_u32 s48, s50, s94
        s_lshr_b32 s51, s3, 1
        s_and_b32 s52, s3, 1
        s_mul_i32 s92, s51, {HP}
        s_add_u32 s92, s92, s50
        s_lshl_b32 s53, s52, 12
        s_add_u32 s92, s92, s53
        s_add_u32 s92, s92, {49152}
        s_mul_i32 s50, s34, {1792*2048}
        s_lshl_b32 s53, s33, 8
        s_add_u32 s50, s50, s53
        s_lshl_b32 s49, s51, 18
        s_add_u32 s49, s49, s50
        s_lshl_b32 s53, s52, 15
        s_add_u32 s49, s49, s53
        s_mul_i32 s93, s51, {224*2048}
        s_add_u32 s93, s93, s50
        s_lshl_b32 s53, s52, 14
        s_add_u32 s93, s93, s53
        s_add_u32 s93, s93, {96*2048}
        """)
    def g2step(i):
        if i < 3: return (i, 0)
        if i < 24: return ((i - 3) // 7, (i - 3) % 7 + 1)
        return (3, i - 24)
    def g2issue(i, VW2, VH, doW=True, doH=True):
        tp, d = g2step(i); slot = i % 4
        if tp < 3:
            pre = L(f"""
            s_add_u32 s95, s33, {d}
            s_and_b32 s95, s95, 7
            s_mul_i32 s96, s95, {8*HP}
            s_mul_i32 s95, s95, {HP}
            s_add_u32 s96, s96, s49
            s_add_u32 s95, s95, s48
            """)
            if tp: pre += L(f"s_add_u32 s96, s96, {65536*tp}\ns_add_u32 s95, s95, {16384*tp}")
        else:
            pre = L(f"""
            s_add_u32 s95, s33, {2*d}
            s_and_b32 s95, s95, 6
            s_mul_i32 s96, s95, {8*HP}
            s_mul_i32 s95, s95, {HP}
            s_add_u32 s96, s96, s93
            s_add_u32 s95, s95, s92
            """)
        G = []
        if doH:
            for n in range(4):
                g = [f"s_add_u32 m0, s94, {16384*slot}"] + (pre if n == 0 else [])
                G.append(g + [f"buffer_load_dwordx4 v{VH}, {WS}, s95 offen offset:{1024*n} {SC} lds ;@g{i}"])
            pre = []
        if doW:
            for n in range(4):
                g = [f"s_add_u32 m0, s94, {WR_+16384*slot}"] + (pre if n == 0 else [])
                if n == 2 and tp == 3: g.append("s_add_u32 s96, s96, 16384")
                G.append(g + [f"buffer_load_dwordx4 v{VW2+n}, {W2S}, s96 offen offset:{1024*n} lds ;@g{i}"])
        return G

    VX, VW = 2, 6
    def g1addr(T):
        ax = L(f"""
        v_lshrrev_b32 v{T+5}, 3, v0
        s_lshl_b32 s50, s3, 5
        v_add_u32 v{T+5}, s50, v{T+5}
        v_and_b32 v{T}, 7, v0
        """)
        for n in range(4):
            ax += L(f"""
            v_add_u32 v{T+1}, {8*n}, v{T+5}
            v_bfe_u32 v{T+2}, v{T+1}, 1, 3
            v_xor_b32 v{T+2}, v{T+2}, v{T}
            v_lshlrev_b32 v{T+2}, 4, v{T+2}
            v_lshl_add_u32 v{VX+n}, v{T+1}, 11, v{T+2}
            """)
            if n: ax.append(f"v_subrev_u32 v{VX+n}, {1024*n}, v{VX+n}")
        ax += L(f"v_lshrrev_b32 v{T+5}, 2, v0\nv_and_b32 v{T}, 3, v0\nv_lshlrev_b32 v{T}, 4, v{T}\ns_movk_i32 s51, {7168-448}")
        aw = []
        for n in range(7):
            aw.append(L(f"""
            v_add_u32 v{T+1}, {16*n}, v{T+5}
            v_mul_u32_u24 v{T+2}, 147, v{T+1}
            v_lshrrev_b32 v{T+2}, 10, v{T+2}
            v_and_b32 v{T+4}, 8, v{T+2}
            v_lshlrev_b32 v{T+4}, 2, v{T+4}
            v_xor_b32 v{T+4}, v{T+4}, v{T}
            v_mad_u32_u24 v{T+4}, v{T+2}, s51, v{T+4}
            v_lshl_add_u32 v{VW+n}, v{T+5}, 6, v{T+4}
            """) + ([f"v_add_u32 v{VW+n}, 4096, v{VW+n}"] if n >= 4 else []))
        return ax, aw
    nxt = L(f"""
    s_and_b32 s42, s42, 15
    s_lshl_b32 s43, s42, 7
    s_add_u32 s43, s43, s40
    s_mul_i32 s44, s42, {64*7168}
    s_add_u32 s44, s44, s41
    s_add_u32 s42, s42, 1
    """)
    def g1scal(first):
        return L(f"""
        s_lshl_b32 s40, s32, 18
        s_mul_i32 s41, s36, 448
        s_mul_i32 s45, s3, {16*7168}
        s_add_u32 s41, s41, s45
        s_and_b32 s42, s32, 12
        s_add_u32 s42, s42, {first}
        s_lshl_b32 s94, s3, 12
        s_mul_i32 s45, s3, 7168
        s_add_u32 s45, s45, 16384
        """) + nxt
    def g1issue(i):
        o = (i % 3) * STG; G = []
        for n in range(4):
            G.append([f"s_add_u32 m0, s94, {o}", f"buffer_load_dwordx4 v{VX+n}, {XS}, s43 offen offset:{1024*n} lds ;@s{i}"])
        for n in range(7):
            G.append([f"s_add_u32 m0, s45, {o + 4096*(n//4)}", f"buffer_load_dwordx4 v{VW+n}, s[16:19], s44 offen offset:{1024*(n%4)} lds ;@s{i}"])
        G[-1] += nxt
        return G
    def flagaddr(h, c, d):
        return L(f"""
        s_lshl_b32 s97, s32, 1
        s_add_u32 s97, s97, s34
        s_lshl_b32 s97, s97, 7
        s_add_u32 s97, s97, {HF_OFF}
        s_lshl_b32 s{h}, s33, 2
        s_add_u32 s{h}, s{h}, s3
        s_lshl_b32 s{h}, s{h}, 2
        s_add_u32 s{h}, s{h}, s97
        s_lshl_b32 s{c}, s3, 8
        s_add_u32 s{c}, s{c}, s35
        s_lshl_b32 s{c}, s{c}, 2
        s_add_u32 s{c}, s{c}, {CF_OFF}
        s_lshl_b32 s{d}, s37, 2
        s_add_u32 s{d}, s{d}, {DF_OFF}
        """)

    kernel_begin(a, name)
    END = a.label("end"); YR = a.label("yrole")
    a(f"s_cmp_ge_u32 s2, 256\ns_cbranch_scc1 {END}")
    if opt("TRACE"): a(f"s_mem{'real' if opt('TRACE') == 2 else ''}time s[58:59]")
    a(f"""
    s_load_dwordx16 s[64:79], s[0:1], 0
    s_load_dwordx4 s[80:83], s[0:1], 64
    s_load_dwordx2 s[84:85], s[0:1], 80
    v_lshrrev_b32 v1, 6, v0
    s_and_b32 s34, s2, 1
    s_bfe_u32 s32, s2, 0x20001
    v_readfirstlane_b32 s38, v1
    s_lshl_b32 s32, s32, 2
    s_lshr_b32 s33, s2, 6
    s_add_u32 s32, s32, s33
    s_bfe_u32 s33, s2, 0x30003
    s_lshl_b32 s36, s34, 3
    s_add_u32 s36, s36, s33
    s_xor_b32 s35, s2, s33
    s_and_b32 s35, s35, 1
    s_mul_i32 s35, s35, 9
    s_xor_b32 s35, s35, s2
    s_and_b32 s3, s38, 3
    s_lshr_b32 s37, s35, 5
    s_lshl_b32 s37, s37, 2
    s_add_u32 s37, s37, s3
    s_lshl_b32 s37, s37, 5
    s_and_b32 s39, s35, 31
    s_add_u32 s37, s37, s39
    s_cmp_ge_u32 s38, 4
    s_cbranch_scc1 {YR}
    """)
    vL16, VW2, vPm, vF, vL4, vQ, vO, vC, ph, sg, vBO, vBG, one = 240, 241, 245, 246, 247, 248, 249, 250, 251, 252, 253, 254, 255
    F = [112, 156]
    vAe, vAo, vA6, vB0, vB1, vHW, vHO, vLn = 200, 201, 202, 203, 204, 205, 206, 223
    GO = 224; T0 = 40
    acc = lambda t, u: 4 * (4 * t + u)
    a("VMRESET")
    ax, aw = g1addr(28)
    a("v_and_b32 v0, 63, v0")
    l31, hh, kf, bs, TT_, Q0 = 60, 61, 62, 63, 64, 80
    tb = L(f"""
    v_and_b32 v{l31}, 31, v0
    v_lshrrev_b32 v{hh}, 5, v0
    s_lshl_b32 s52, s3, 3
    v_cvt_f32_u32 v{kf}, v{l31}
    v_lshl_add_u32 v{bs}, v{hh}, 2, s52
    v_cvt_f32_u32 v{bs}, v{bs}
    v_mul_f32 v{kf}, {fhex(1/32)}, v{kf}
    v_lshlrev_b32 v{vL16}, 4, v0
    v_mul_f32 v{bs}, v{bs}, v{kf}
    s_lshl_b32 s52, s3, 10
    s_add_u32 s53, s52, {TFR}
    s_add_u32 s52, s52, {TB}
    """)
    tb += trig(kf, bs, [0, 1, 2, 3], TT_, sink_pack([(Q0, "c", "s"), (Q0 + 4, "-s", "c")]))
    tb += L(f"""
    v_add_u32 v{Q0+20}, s53, v{vL16}
    v_add_u32 v{Q0+21}, s52, v{vL16}
    v_mul_f32 v{Q0+22}, {fhex(1/32)}, v{kf}
    v_mul_f32 v{Q0+23}, {fhex(1/32)}, v{bs}
    ds_write_b128 v{Q0+20}, {vr(Q0,4)}
    ds_write_b128 v{Q0+20}, {vr(Q0+4,4)} offset:4096
    """)
    tb += trig(Q0 + 22, Q0 + 23, [0, 1, 2, 3], TT_, sink_f32(Q0 + 8, Q0 + 12))
    tb += L(f"""
    s_lshr_b32 s52, s3, 1
    s_and_b32 s53, s3, 1
    s_lshl_b32 s54, s52, 2
    s_add_u32 s54, s54, s53
    s_lshl_b32 s54, s54, 2
    v_lshl_add_u32 v{bs}, v{hh}, 3, s54
    v_cvt_f32_u32 v{bs}, v{bs}
    s_lshl_b32 s52, s52, 7
    s_add_u32 s52, s52, s53
    s_lshl_b32 s52, s52, 3
    s_add_u32 s52, s52, {TB + 8192}
    v_mul_f32 v{bs}, v{bs}, v{kf}
    ds_write_b128 v{Q0+21}, {vr(Q0+8,4)}
    ds_write_b128 v{Q0+21}, {vr(Q0+12,4)} offset:4096
    v_add_u32 v{Q0+20}, s52, v{vL16}
    """)
    def s1(grp, T_):
        o = []
        for x in range(4): o += [f"v_cos_f32 v{T_+4+x}, v{T_+x}", f"v_sin_f32 v{T_+8+x}, v{T_+x}"]
        for x in (0, 2):
            o.append(f"v_cvt_pk_bf16_f32 v{Q0+16+x//2}, v{T_+4+x}, v{T_+5+x}")
            o.append(f"v_cvt_pk_bf16_f32 v{Q0+18+x//2}, -v{T_+8+x}, -v{T_+9+x}")
        return o
    tb += trig(kf, bs, [0, 1, 2, 3], TT_, s1)
    tb += L(f"ds_write_b64 v{Q0+20}, {vr(Q0+16,2)}\nds_write_b64 v{Q0+20}, {vr(Q0+18,2)} offset:2048")
    n0 = opt("XT0", 0)
    a.ext(ax + g1scal(0) + sum(aw, []) + tb[:n0])
    a("s_waitcnt lgkmcnt(0)")
    a.ext(tr("x", "karg"))
    a.ext(mksrd(8, 64, 4 * MB) + mksrd(16, 72, 1024 * 7168))
    a.ext(weave(g1issue(0) + g1issue(1), [[l] for l in tb[n0:]], 1.0))
    a.ext(tr("x", "iss1"))
    a("s_waitcnt lgkmcnt(0)\ns_barrier")
    a.ext(tr("x", "t"))
    a(f"""
    s_and_b32 s43, s3, 1
    s_lshr_b32 s44, s3, 1
    v_mov_b32 v{vLn}, v0
    v_lshrrev_b32 v{T0}, 4, v0
    v_bfe_u32 v{T0+1}, v0, 2, 2
    v_lshl_add_u32 v{T0+1}, v{T0}, 3, v{T0+1}
    v_mul_u32_u24 v{T0+1}, 448, v{T0+1}
    v_and_b32 v{T0+2}, 3, v0
    v_lshl_add_u32 v{T0+1}, v{T0+2}, 3, v{T0+1}
    v_add_u32 v{T0+1}, 16384, v{T0+1}
    v_and_b32 v{T0+2}, 1, v{T0}
    v_lshlrev_b32 v{T0+3}, 5, v{T0+2}
    s_lshl_b32 s51, s43, 8
    v_add_u32 v{T0+4}, s51, v{T0+1}
    v_add_u32 v{vAe}, v{T0+4}, v{T0+3}
    v_sub_u32 v{vAo}, v{T0+4}, v{T0+3}
    v_xor_b32 v{T0+2}, s43, v{T0+2}
    v_lshl_add_u32 v{vA6}, v{T0+2}, 5, v{T0+1}
    v_add_u32 v{vA6}, 192, v{vA6}
    v_and_b32 v{T0+2}, 15, v0
    v_bfe_u32 v{T0+3}, v0, 1, 3
    v_xor_b32 v{T0+3}, v{T0+3}, v{T0}
    v_lshlrev_b32 v{T0+3}, 4, v{T0+3}
    v_lshl_add_u32 v{vB0}, v{T0+2}, 7, v{T0+3}
    s_lshl_b32 s51, s44, 13
    v_add_u32 v{vB0}, s51, v{vB0}
    v_xor_b32 v{vB1}, 64, v{vB0}
    s_lshl_b32 s50, s43, 13
    s_lshl_b32 s51, s44, 12
    s_add_u32 s50, s50, s51
    v_add_u32 v{vHW}, s50, v{vL16}
    s_lshl_b32 s50, s43, 9
    s_add_u32 s50, s50, s51
    v_lshl_add_u32 v{vHO}, v{l31}, 4, s50
    v_lshl_add_u32 v{vHO}, v{hh}, 10, v{vHO}
    v_lshlrev_b32 v{vL4}, 2, v{l31}
    """)
    a.ext(mksrd(4, 84, 256 * MB) + mksrd(12, 76, 3584 * 2048) + mksrd(24, 78, 2048) + w2addr(VW2, vLn, T0) + g2bases())
    a.ext(flagaddr(40, 41, 42))
    a(f"""
    s_lshl_b32 s45, s32, 4
    s_add_u32 s45, s45, s36
    s_mul_i32 s45, s45, {HP}
    v_lshlrev_b32 v{vO}, 6, v{l31}
    v_lshl_add_u32 v{vO}, v{hh}, 4, v{vO}
    v_lshlrev_b32 v{vBO}, 5, v{l31}
    v_lshl_add_u32 v{vBO}, v{hh}, 4, v{vBO}
    v_lshrrev_b32 v{vQ}, 2, v0
    v_lshlrev_b32 v{vBG}, 11, v{vQ}
    v_mul_u32_u24 v{vQ}, {PITCH}, v{vQ}
    v_and_b32 v{T0+4}, 3, v0
    v_lshl_add_u32 v{vQ}, v{T0+4}, 4, v{vQ}
    v_lshrrev_b32 v{T0+5}, 4, v0
    v_xor_b32 v{T0+4}, v{T0+4}, v{T0+5}
    v_lshl_add_u32 v{vBG}, v{T0+4}, 4, v{vBG}
    v_bfe_u32 v{vC}, v0, 2, 2
    v_xor_b32 v{vC}, s3, v{vC}
    v_lshlrev_b32 v{vC}, 4, v{vC}
    v_lshl_add_u32 v{vC}, v{l31}, 6, v{vC}
    v_lshl_add_u32 v{vC}, v{hh}, 12, v{vC}
    v_add_u32 v{vC}, {S}, v{vC}
    v_lshlrev_b32 v{sg}, 31, v0
    v_xor_b32 v{sg}, 1.0, v{sg}
    s_lshl_b32 s98, s37, 11
    s_add_u32 s99, s98, {2*MB}
    v_cmp_gt_u32 vcc, 32, v0
    v_and_b32 v{kf}, 19, v{l31}
    v_bfe_u32 v{bs}, v{l31}, 2, 1
    v_cndmask_b32 v{sg}, 0, v{sg}, vcc
    v_lshl_or_b32 v{kf}, v{bs}, 3, v{kf}
    v_bfe_u32 v{bs}, v{l31}, 3, 1
    v_lshl_or_b32 v{kf}, v{bs}, 2, v{kf}
    v_lshlrev_b32 v{vPm}, 4, v{kf}
    v_lshl_or_b32 v{vPm}, v{hh}, 9, v{vPm}
    v_cvt_f32_u32 v{kf}, v{kf}
    v_cvt_f32_u32 v{bs}, v{hh}
    v_cvt_f32_u32 v{ph}, s37
    v_mul_f32 v{kf}, {fhex(1/32)}, v{kf}
    v_mul_f32 v{bs}, 4.0, v{bs}
    v_mul_f32 v{ph}, {fhex(1/2048)}, v{ph}
    v_fma_f32 v{bs}, v{bs}, v{kf}, v{ph}
    s_bfe_u32 s100, s35, 0x20004
    s_lshl_b32 s100, s100, 2
    s_add_u32 s100, s100, s3
    s_lshl_b32 s100, s100, 8
    s_add_u32 s100, s100, {CF_OFF}
    """)
    a.ext(trig(kf, bs, NS[:8], TT_, sink_pack([(GO, "-s", "c"), (GO + 8, "c", "s")])))
    def reads(f, sub):
        vb = vB1 if sub else vB0
        def rdA(t):
            base = vA6 if t == 6 else (vAo if t & 1 else vAe)
            imm = (0 if t == 6 else 32 * t) + sub * 14336
            return [f"ds_read_b64_tr_b16 {vr(f+4*t,2)}, v{base} offset:{imm}",
                    f"ds_read_b64_tr_b16 {vr(f+4*t+2,2)}, v{base} offset:{imm+1792}"]
        rdB = lambda u: f"ds_read_b128 {vr(f+28+4*u,4)}, v{vb} offset:{2048*u}"
        o = rdA(0) + [rdB(u) for u in range(4)]
        for t in range(1, 7): o += rdA(t)
        return o
    snake = lambda nt, nu: [(t, u if t % 2 == 0 else nu - 1 - u) for t in range(nt) for u in range(nu)]
    def mf(f, z=None):
        return [mfma16(acc(t, u), f + 4 * t, f + 28 + 4 * u, z) for t, u in snake(7, 4)]
    upd = [f"v_add_u32 v{r}, s46, v{r}" for r in (vAe, vAo, vA6, vB0, vB1)]
    adv = L(f"""
    s_add_u32 s50, s50, {STG}
    s_cmp_eq_u32 s50, {S}
    s_cselect_b32 s46, {(-(S-STG)) & 0xffffffff}, s51
    s_cselect_b32 s50, 0, s50
    """)
    LOOP = a.label("g1loop")
    a(f"s_mov_b32 s51, {STG}\ns_mov_b32 s50, {STG}\ns_mov_b32 s46, {STG}\ns_mov_b32 s47, 15\ns_setprio {opt('XP1', 2)}")
    a.ext(tr("x", "setup")); a("WAITV s0"); a.ext(tr("x", "pre_b0")); a("s_barrier"); a.ext(tr("x", "b0"))
    a.ext(reads(F[0], 0))
    a("s_waitcnt lgkmcnt(0)")
    a.ext(interleave(mf(F[0], "0"), reads(F[1], 1) + upd))
    a(f"{LOOP}:\ns_waitcnt vmcnt(0) lgkmcnt(0)\ns_barrier")
    a.ext(interleave(mf(F[1]), reads(F[0], 0) + adv))
    a("s_waitcnt lgkmcnt(0)")
    a.ext(interleave(mf(F[0]), reads(F[1], 1) + upd + ["s_sub_u32 s47, s47, 1", "s_cmp_lg_u32 s47, 0"]))
    a(f"s_cbranch_scc1 {LOOP}\ns_waitcnt lgkmcnt(0)\ns_barrier\nVMRESET")
    a.ext(tr("x", "b16"))
    EA, STt, BOP, KA_, KB_, SD = 112, 126, 130, 138, 208, [216, 218, 146, 148]
    T0 = 150
    C0, C1 = -2.302208198, -0.1029432397
    prep = L(f"""
    v_and_b32 v{T0}, 15, v{vLn}
    s_lshl_b32 s50, s44, 8
    s_add_u32 s50, s50, {EPS}
    v_lshl_add_u32 v{T0+3}, v{T0}, 2, s50
    s_lshl_b32 s50, s43, 10
    s_add_u32 s50, s50, {EPA}
    v_lshl_add_u32 v{T0+1}, v{T0}, 3, s50
    s_lshl_b32 s50, s43, 7
    s_add_u32 s50, s50, {EPA+768}
    v_lshl_add_u32 v{T0+2}, v{T0}, 3, s50
    """)
    prep += [f"ds_read_b32 v{STt+u}, v{T0+3} offset:{64*u}" for u in range(4)]
    prep += [f"ds_read_b64 {vr(EA+2*t,2)}, v{T0+1} offset:{128*t}" for t in range(6)] + [f"ds_read_b64 {vr(EA+12,2)}, v{T0+2}"]
    prep += L("s_mov_b64 s[50:51], 0xffff\ns_mov_b32 s52, 0x01000100")
    pr2 = ["s_waitcnt lgkmcnt(7)"]
    for u in range(4): pr2 += [f"v_cndmask_b32 v{BOP+2*u+1}, 0, v{STt+u}, s[50:51]", f"v_and_b32 v{SD[u]}, 0xffff0000, v{STt+u}"]
    for u in range(4): pr2 += [f"v_perm_b32 v{BOP+2*u}, v{BOP+2*u+1}, v{BOP+2*u+1}, s52", f"v_rcp_f32 v{KA_+2*u}, v{SD[u]}"]
    for u in range(4): pr2 += [f"v_mul_f32 v{KB_+2*u}, {fhex(C0)}, v{KA_+2*u}", f"v_mul_f32 v{KA_+2*u}, v{KA_+2*u}, v{KA_+2*u}"]
    for u in range(4): pr2 += [f"v_mul_f32 v{KA_+2*u}, {fhex(C1/C0)}, v{KA_+2*u}", f"v_mov_b32 v{KB_+2*u+1}, v{KB_+2*u}"]
    for u in range(4): pr2 += [f"v_mul_f32 v{KA_+2*u}, v{KA_+2*u}, v{KB_+2*u}", f"v_mov_b32 v{SD[u]+1}, v{SD[u]}"]
    for u in range(4): pr2 += [f"v_mov_b32 v{KA_+2*u+1}, v{KA_+2*u}"]
    m_ = mf(F[1])
    a.ext(interleave(m_[:6], prep, per=4) + interleave(m_[6:], pr2, start=1, per=2))
    a("s_waitcnt lgkmcnt(0)")
    for t, u in snake(7, 4):
        a(f"v_mfma_f32_16x16x16_bf16 {vr(acc(t,u),4)}, {vr(EA+2*t,2)}, {vr(BOP+2*u,2)}, {vr(acc(t,u),4)}")
    a.ext(tr("x", "corr"))
    def gelu(regs, tt, pk):
        o = []; T = [tt + 2 * i for i in range(len(regs))]
        Z = list(zip(regs, T))
        for (r, u), x in Z: o.append(f"v_pk_mul_f32 {vr(x,2)}, {vr(r,2)}, {vr(r,2)}")
        for (r, u), x in Z: o.append(f"v_pk_fma_f32 {vr(x,2)}, {vr(x,2)}, {vr(KA_+2*u,2)}, {vr(KB_+2*u,2)}")
        for (r, u), x in Z: o.append(f"v_pk_mul_f32 {vr(x,2)}, {vr(x,2)}, {vr(r,2)}")
        for (r, u), x in Z: o += [f"v_exp_f32 v{x}, v{x}", f"v_exp_f32 v{x+1}, v{x+1}"]
        for (r, u), x in Z: o.append(f"v_pk_fma_f32 {vr(x,2)}, {vr(x,2)}, {vr(SD[u],2)}, {vr(SD[u],2)}")
        for (r, u), x in Z: o += [f"v_rcp_f32 v{x}, v{x}", f"v_rcp_f32 v{x+1}, v{x+1}"]
        for (r, u), x in Z: o.append(f"v_pk_mul_f32 {vr(x,2)}, {vr(x,2)}, {vr(r,2)}")
        for i in range(8): o.append(f"v_cvt_pk_bf16_f32 v{pk+i}, v{tt+2*i}, v{tt+2*i+1}")
        return o
    def flag(s_, val):
        return L(f"s_mov_b64 exec, 1\nv_mov_b32 v{one}, {val}\nbuffer_store_dword v{one}, off, {WS}, s{s_} {SC}\ns_mov_b64 exec, -1")
    TT = [160, 176]; PK = [112, 120]; idx = 0
    TC, TS, GE, C2, CH, T, NQ, ACC, BS, XX = 0, 16, 32, 48, 64, 80, 92, 96, 160, 192
    for tp in range(3):
        if tp == 1: a.ext([f"ds_read_b128 {vr(TC+4*b,4)}, v{vPm} offset:{TD+1024*b}" for b in range(8)])
        for up in range(2):
            tt = TT[idx & 1]; pk = PK[idx & 1]; idx += 1
            regs = []
            for u in (2 * up, 2 * up + 1): regs += [(acc(2*tp, u), u), (acc(2*tp, u) + 2, u), (acc(2*tp+1, u), u), (acc(2*tp+1, u) + 2, u)]
            a.ext(gelu(regs, tt, pk))
            if idx == opt("XF1", 5): a("WAITV h0"); a.ext(flag(40, 1)); a.ext(tr("x", "fl1"))
            for k in range(2):
                u = 2 * up + k
                a(f"buffer_store_dwordx4 {vr(pk+4*k,4)}, v{vHW}, {WS}, s45 offen offset:{1024*u} {SC} ;@h{tp}")
                a(f"ds_write_b128 v{vHW}, {vr(pk+4*k,4)} offset:{16384*tp+1024*u}")
        a(f"s_add_u32 s45, s45, 16384"); a.ext(tr("x", f"tp{tp}"))
        a("s_waitcnt lgkmcnt(0)\ns_barrier"); a.ext(tr("x", f"d{tp}"))
    regs = []
    for u in range(4): regs += [(acc(6, u), u), (acc(6, u) + 2, u)]
    pk = PK[0]
    a(f"s_setprio 0")
    a.ext(gelu(regs, TT[0], pk))
    for k in range(2):
        a(f"v_permlane32_swap_b32 v{pk+4*k}, v{pk+4*k+2}\nv_permlane32_swap_b32 v{pk+4*k+1}, v{pk+4*k+3}")
    ldH = f"buffer_load_dword v{vF}, v{vL4}, {WS}, s97 offen {SC}"
    for k in range(2): a(f"buffer_store_dwordx4 {vr(pk+4*k,4)}, v{vHO}, {WS}, s45 offen offset:{2048*k} {SC} ;@h3")
    a.ext(tr("x", "odd"))
    B2 = XX + 16
    sd_ = []
    for r in range(2):
        for e in range(2): sd_.append(f"buffer_load_dwordx4 {vr(XX+8*r+4*e,4)}, v{vO}, {XS}, s{98+r} offen offset:{32*e} ;@xd")
    for e in range(2): sd_.append(f"buffer_load_dwordx4 {vr(B2+4*e,4)}, v{vO}, s[24:27], 0 offen offset:{32*e} ;@xd")
    sd_ += L(f"v_add_u32 v{T}, {TFR}, v{vPm}\nv_add_u32 v{T+1}, {TFR}, v{vL16}\nv_lshlrev_b32 v{vPm}, 2, v{vLn}")
    for c in range(2):
        for b in range(2): sd_.append(f"ds_read_b128 {vr(GE+8*c+4*b,4)}, v{T} offset:{4096*(1-c)+1024*b}")
    for b in range(4): sd_.append(f"ds_read_b128 {vr(C2+4*b,4)}, v{T+1} offset:{1024*b}")
    sd_.append(M("at", opt("XF2", 3)))
    sd_.append(["WAITV h3"] + flag(40, 2))
    sd_.append("WAITV xd")
    for i in range(8):
        sd_ += [f"v_lshlrev_b32 v{T+6}, 16, v{B2+i}", f"v_and_b32 v{T+7}, 0xffff0000, v{B2+i}"]
        for r in range(2):
            d = BS + 16 * r + 2 * i
            sd_ += [f"v_lshlrev_b32 v{d}, 16, v{XX+8*r+i}", f"v_and_b32 v{d+1}, 0xffff0000, v{XX+8*r+i}",
                    f"v_pk_add_f32 {vr(d,2)}, {vr(d,2)}, {vr(T+6,2)}"]
    sd_.append(M("at", 5))
    sd_.append(ldH + " ;@p2")
    sd_.append(M("by", 5))
    sd_.append(M("at", 6))
    sd_.append(poll(ldH, f"v_cmp_gt_u32 vcc, 2, v{vF}", "p2"))
    sd_.append(M("by", 6))
    ldC = f"buffer_load_dword v{vF}, v{vPm}, {WS}, s100 offen {SC}"
    sd_.append(M("at", opt("XCP", 6)))
    sd_.append(ldC + " ;@p3")
    sd_.append(M("sync"))
    sd_.append(poll(ldC, f"v_cmp_ne_u32 vcc, 1, v{vF}", "p3"))
    sd_ += gather(vQ, Q_OFF, S, "qd")
    sd_ += L(f"""
    s_lshl_b32 s50, s3, 4
    s_add_u32 s50, s50, {S}
    v_mov_b32 v{T+4}, s50
    v_cos_f32 v{T}, v{ph}
    v_sin_f32 v{T+1}, v{ph}
    """)
    sd_.append(M("sync", 2))
    sd_.append("WAITV qd")
    sd_.append(M("sync"))
    for b in range(2):
        for e in range(2): sd_.append(f"ds_read_b128 {vr(CH+8*b+4*e,4)}, v{vC} offset:{8192*b+2048*e}")
    sd_.append(f"ds_read_b128 {vr(NQ,4)}, v{T+4}")
    sd_.append("s_waitcnt lgkmcnt(0)")
    sd_ += L(f"v_writelane_b32 v{CH}, 0, 0\nv_writelane_b32 v{CH+2}, 0, 0")
    for b in range(2): sd_ += L(f"v_swap_b32 v{CH+8*b+2}, v{CH+8*b+4}\nv_swap_b32 v{CH+8*b+3}, v{CH+8*b+5}")
    for r in range(2):
        for b in range(2):
            for c in range(2):
                sd_.append(mfma32(ACC + 32 * r + 16 * c, CH + 8 * b + 4 * r, (GO if r else GE) + 8 * c + 4 * b, "0" if b == 0 else None))
    sd_ += L(f"""
    v_and_b32 v{NQ}, 0xffff0000, v{NQ}
    v_and_b32 v{NQ+1}, 0xffff0000, v{NQ+2}
    v_lshlrev_b32 v{NQ+2}, 16, v{NQ+2}
    v_mul_f32 v{NQ+1}, v{NQ+1}, v{T}
    v_fma_f32 v{NQ+1}, -v{NQ+2}, v{T+1}, v{NQ+1}
    """)
    PKD = [192, CH]
    negim = lambda o: [re.sub(r", (v\d+)$", r", -\1", l) if l.startswith("v_cvt_pk") else l for l in o]
    for r in range(2):
        sd_.append(f"v_fmac_f32 v{ACC+32*r}, v{NQ+r}, v{sg}")
        sd_ += negim(cmul(ACC + 32 * r, ACC + 32 * r + 16, TC, TS, False, T, PKD[r], False))
        for b in range(4): sd_.append(mfma32(ACC + 32 * r, PKD[r] + 4 * b, C2 + 4 * b, "0" if b == 0 else None))
    sd_ += L(f"s_mov_b32 s100, {fhex(2.0**-20)}\ns_add_u32 s98, s98, {BASE_OFF}\ns_add_u32 s99, s99, {BASE_OFF}")
    E = ACC; O = ACC + 32
    for i in range(8):
        for r in range(2): sd_.append(f"v_pk_fma_f32 {vr(BS+16*r+2*i,2)}, {vr(E+2*i,2)}, s[100:101], {vr(BS+16*r+2*i,2)} op_sel_hi:[1,0,1]")
    for i in range(8):
        for r in range(2):
            sd_.append(f"v_pk_fma_f32 {vr(BS+16*r+2*i,2)}, {vr(O+2*i,2)}, s[100:101], {vr(BS+16*r+2*i,2)} op_sel_hi:[1,0,1]" + (" neg_lo:[1,0,0] neg_hi:[1,0,0]" if r else ""))
    for i in range(16): sd_.append(f"v_cvt_pk_bf16_f32 v{CH+i}, v{BS+2*i}, v{BS+2*i+1}")
    for r in range(2):
        for e in range(2): sd_.append(f"buffer_store_dwordx4 {vr(CH+8*r+4*e,4)}, v{vBO}, {WS}, s{98+r} offen offset:{1024*e} {SC} ;@bs")
    ldD = f"buffer_load_dword v{vF}, v{vL4}, {WS}, s100 offen {SC}"
    sd_ += L(f"""
    s_lshl_b32 s98, s44, 1
    s_add_u32 s98, s98, s34
    s_lshl_b32 s99, s32, 2
    s_add_u32 s98, s98, s99
    s_and_b32 s100, s98, 31
    s_lshl_b32 s100, s100, 7
    s_add_u32 s100, s100, {DF_OFF}
    s_lshl_b32 s98, s98, 16
    s_lshl_b32 s99, s33, 7
    s_add_u32 s98, s98, s99
    s_lshl_b32 s99, s43, 6
    s_add_u32 s98, s98, s99
    s_add_u32 s98, s98, {BASE_OFF}
    s_add_u32 s99, s98, 32768
    """)
    sd_.append(M("sync", opt("XBF", 3)))
    sd_.append(["WAITV bs"] + flag(42, 1))
    sd_.append(M("sync", opt("XBP", 3)))
    sd_.append(M("at", opt("XDP", 0)))
    sd_.append(ldD + " ;@p4")
    sd_.append(M("sync"))
    sd_.append(poll(ldD, f"v_cmp_ne_u32 vcc, 1, v{vF}", "p4"))
    for x in range(2):
        for e in range(2): sd_.append([f"s_add_u32 m0, s94, {S+2048*x}", f"buffer_load_dwordx4 v{vBG}, {WS}, s{98+x} offen offset:{1024*e} {SC} lds ;@bg"])
    XB = opt("XB", 200)
    sl = split(sd_, 2, 27, lambda k: XB, UN)
    if opt("SHOW"): print("X slices", {k: sum(cost(l) for g in v for l in g) for k, v in sl.items()})
    for k in range(2, 28):
        main = g2issue(k + 3, VW2, vL16) if 3 <= k <= 24 else []
        a.ext(weave(main, sl[k], opt("XFR", 85) / 100))
        if k < 27:
            a.ext(tr("x", f"A{k}"))
            if k + 1 >= 6: a(f"WAITV g{k+1}")
            a.ext(tr("x", f"B{k}"))
            a("s_barrier")
            a.ext(tr("x", f"d{k+1}"))
    a("s_waitcnt vmcnt(0)"); a.ext(tr("x", "pre_e")); a("s_barrier"); a.ext(tr("x", "e") + tr("x", "END"))
    a("s_endpgm")
    a(f"{YR}:\nVMRESET")
    VW2 = 13
    vL16, vT, vH, vK, ph, vF, vQ, vP, vE = 17, 18, 19, 20, 21, 22, 23, 24, 25
    T = 28; X = 40; Fv = 56
    C1c, C1s, C2a, C2c, TC, TS, ACC = 88, 96, 104, 120, 136, 152, 168
    XT = 232; RX = ACC + 48
    a(f"""
    v_and_b32 v{vK}, 255, v0
    v_and_b32 v0, 63, v0
    s_lshl_b32 s46, s37, 11
    v_lshlrev_b32 v{vL16}, 4, v0
    s_add_u32 s47, s46, {2*MB}
    """)
    kf, bs, hf = ACC, ACC + 1, ACC + 2; TT = ACC + 4
    ax, aw = g1addr(T)
    pre = L(f"""
    v_and_b32 v1, 31, v0
    v_lshrrev_b32 v{vH}, 5, v0
    v_cvt_f32_u32 v{hf}, v{vH}
    v_cvt_f32_u32 v{ph}, s37
    v_lshrrev_b32 v{X}, 1, v1
    v_and_b32 v{X+1}, 1, v1
    v_cvt_f32_u32 v{kf}, v{X}
    v_cvt_f32_u32 v{bs}, v{X+1}
    v_mul_f32 v{ph}, {fhex(1/2048)}, v{ph}
    v_mul_f32 v{kf}, {fhex(1/32)}, v{kf}
    v_fmamk_f32 v{bs}, v{bs}, {fhex(0.25)}, v{ph}
    v_mul_f32 v{hf}, 4.0, v{hf}
    v_fmac_f32 v{bs}, v{hf}, v{kf}
    v_lshlrev_b32 v{X}, 4, v{X}
    v_lshl_add_u32 v{X}, v{vH}, 9, v{X}
    v_lshl_add_u32 v{X}, v{X+1}, 12, v{X}
    v_add_u32 v{X}, {TFR}, v{X}
    v_add_u32 v{X+1}, {TB}, v{vL16}
    """)
    pre += trig(kf, bs, NS, TT, sink_pack([(C2c, "c", "s")]))
    pre += ax + g1scal(2) + sum(aw, [])
    pre += L(f"""
    s_bfe_u32 s50, s35, 0x20002
    v_xor_b32 v{vP}, s50, v{vK}
    v_bfe_u32 v{T}, v{vP}, 1, 1
    v_and_b32 v{T+1}, 1, v{vP}
    v_bfe_u32 v{T+2}, v{vP}, 2, 5
    v_lshrrev_b32 v{T+3}, 7, v{vP}
    v_mul_u32_u24 v{T+4}, 513, v{T}
    v_lshl_add_u32 v{T+2}, v{T+1}, 5, v{T+2}
    v_lshl_add_u32 v{T+2}, v{T+3}, 6, v{T+2}
    v_add_u32 v{T+1}, v{T+2}, v{T+4}
    v_lshrrev_b32 v{T+3}, 2, v{T+1}
    v_and_b32 v{T+3}, 8, v{T+3}
    v_lshl_or_b32 v{T+3}, v{T}, 4, v{T+3}
    v_xor_b32 v{T+1}, v{T+1}, v{T+3}
    v_add_u32 v{T+4}, 528, v{T+4}
    v_cmp_eq_u32 vcc, 0, v{T+2}
    s_mov_b32 s50, {S}
    v_lshl_add_u32 v{vQ}, v{T+1}, 2, s50
    v_cndmask_b32 v{T+1}, v{T+1}, v{T+4}, vcc
    v_lshl_add_u32 v{vP}, v{vP}, 2, s50
    v_lshl_add_u32 v{vF}, v{T+1}, 2, s50
    v_lshlrev_b32 v{vK}, 4, v{vK}
    v_bfe_u32 v{T}, v0, 2, 2
    v_lshl_add_u32 v{T}, v{vH}, 3, v{T}
    v_lshlrev_b32 v{vT}, 6, v{T}
    v_bfe_u32 v{T}, v0, 4, 1
    v_lshl_add_u32 v{vT}, v{T}, 5, v{vT}
    v_and_b32 v{T}, 3, v0
    v_lshl_add_u32 v{vT}, v{T}, 3, v{vT}
    s_mul_i32 s50, s3, {PL}
    s_add_u32 s50, s50, {S}
    v_add_u32 v{vT}, s50, v{vT}
    v_add_u32 v{T+11}, s50, v{vL16}
    v_bfe_u32 v{T}, v0, 2, 1
    v_xor_b32 v{T}, v{T}, v0
    v_lshl_add_u32 v{T+8}, v{T}, 5, s50
    v_lshrrev_b32 v{T}, 4, v0
    v_bfe_u32 v{T+1}, v0, 2, 2
    v_lshl_add_u32 v{T+1}, v{T}, 3, v{T+1}
    v_mul_u32_u24 v{T+1}, 448, v{T+1}
    v_and_b32 v{T+2}, 3, v0
    v_lshl_add_u32 v{T+1}, v{T+2}, 3, v{T+1}
    s_lshr_b32 s50, s2, 6
    s_lshl_b32 s50, s50, 2
    s_add_u32 s50, s50, s3
    v_and_b32 v{T}, 1, v{T}
    v_xor_b32 v{T}, s50, v{T}
    v_lshl_add_u32 v{vE}, v{T}, 5, v{T+1}
    s_lshl_b32 s51, s36, 4
    s_and_b32 s52, s32, 12
    s_add_u32 s51, s51, s52
    s_lshl_b32 s51, s51, 2
    s_add_u32 s51, s51, s50
    s_lshl_b32 s51, s51, 6
    s_add_u32 s100, s51, {CS_OFF}
    s_mul_i32 s57, s37, 2052
    """)
    n0 = opt("YT0", 0)
    a.ext(pre[:n0])
    a("s_waitcnt lgkmcnt(0)")
    a.ext(tr("y", "karg"))
    a.ext(mksrd(8, 64, 4 * MB))
    for r in range(2):
        for e in range(2): a(f"buffer_load_dwordx4 {vr(RX+8*r+4*e,4)}, v{vL16}, {XS}, s{46+r} offen offset:{1024*e} ;@xb")
    a.ext(tr("y", "iss0"))
    a.ext(mksrd(16, 72, 1024 * 7168) + mksrd(4, 84, 256 * MB) + mksrd(12, 76, 3584 * 2048) + mksrd(20, 74, 7168) + mksrd(24, 80, 4 * MB) +
          mksrd(28, 82, 256) + mksrd(60, 66, 2048 * 1026) + mksrd(88, 68, 2048 * 1026))
    a.ext(pre[n0:])
    a.ext(tr("y", "pre_t")); a("s_barrier"); a.ext(tr("y", "t"))
    for b in range(4): a(f"ds_read_b128 {vr(C1c+4*b,4)}, v{X+1} offset:{8192+1024*b}")
    for b in range(8): a(f"ds_read_b128 {vr(TC+4*b,4)}, v{X+1} offset:{1024*b}")
    for b in range(4): a(f"ds_read_b128 {vr(C2a+4*b,4)}, v{X} offset:{1024*b}")
    wld = []
    for c in range(2):
        wld.append(f"buffer_load_dwordx4 {vr(XT+4*c,4)}, v{vL16}, s[60:63], s57 offen offset:{1024*c} ;@w")
        wld.append(f"buffer_load_dwordx4 {vr(XT+8+4*c,4)}, v{vL16}, s[88:91], s57 offen offset:{1024*c} ;@w")
    wld += [f"buffer_load_dword v{XT+16}, off, s[60:63], s57 offset:2048 ;@w", f"buffer_load_dword v{XT+17}, off, s[88:91], s57 offset:2048 ;@w"]
    sd_ = []
    if opt("YWL", 0) == 0: sd_ += wld
    sd_.append("WAITV xb")
    F_ = Fv
    if opt("YWL", 0) == 1: sd_ += wld
    for i in range(16): sd_ += [f"v_lshlrev_b32 v{F_+2*i}, 16, v{RX+i}", f"v_and_b32 v{F_+2*i+1}, 0xffff0000, v{RX+i}"]
    Q = ACC
    for r in range(2):
        for i in range(4): sd_.append(f"v_pk_add_f32 {vr(Q+8*r+2*i,2)}, {vr(F_+16*r+4*i,2)}, {vr(F_+16*r+4*i+2,2)}")
    for r in range(2):
        for i in range(2): sd_.append(f"v_pk_add_f32 {vr(Q+8*r+4*i,2)}, {vr(Q+8*r+4*i,2)}, {vr(Q+8*r+4*i+2,2)}")
    for r in range(2): sd_.append(f"v_pk_add_f32 {vr(Q+8*r,2)}, {vr(Q+8*r,2)}, {vr(Q+8*r+4,2)}")
    for r in range(2): sd_ += [f"v_add_f32 v{T+2*r}, v{Q+8*r}, v{Q+8*r+1}", f"v_sub_f32 v{T+2*r+1}, v{Q+8*r}, v{Q+8*r+1}"]
    sd_ += L(f"""
    v_permlane16_swap_b32 v{T}, v{T+1}
    v_permlane16_swap_b32 v{T+2}, v{T+3}
    v_add_f32 v{T}, v{T}, v{T+1}
    v_add_f32 v{T+2}, v{T+2}, v{T+3}
    v_permlane32_swap_b32 v{T}, v{T+2}
    v_add_f32 v{T}, v{T}, v{T+2}
    """)
    sd_ += ror_reduce(T)
    sd_ += L(f"v_mul_f32 v{T+1}, {fhex(1/1024)}, v{T}\nv_mov_b32 v{T+2}, v{T+1}")
    sd_ += rbf(T + 2)
    sd_ += L(f"""
    v_sub_f32 v{T+3}, v{T+1}, v{T+2}
    v_readlane_b32 s96, v{T+2}, 0
    v_readlane_b32 s98, v{T+2}, 32
    v_readlane_b32 s92, v{T}, 16
    v_readlane_b32 s93, v{T}, 48
    """)
    for r in range(2):
        for i in range(8):
            sd_.append(f"v_pk_add_f32 {vr(F_+16*r+2*i,2)}, {vr(F_+16*r+2*i,2)}, s[{96+2*r}:{97+2*r}] op_sel_hi:[1,0] neg_lo:[0,1] neg_hi:[0,1]")
    for i in range(4):
        for r in range(2):
            for c in range(2):
                s_ = vr(F_ + 16 * r + 4 * i + 2 * c, 2); d = vr(Q + 4 * r + 2 * c, 2)
                sd_.append(f"v_pk_mul_f32 {d}, {s_}, {s_}" if i == 0 else f"v_pk_fma_f32 {d}, {s_}, {s_}, {d}")
    for r in range(2): sd_.append(f"v_pk_add_f32 {vr(Q+4*r,2)}, {vr(Q+4*r,2)}, {vr(Q+4*r+2,2)}")
    for r in range(2): sd_.append(f"v_add_f32 v{T+4+r}, v{Q+4*r}, v{Q+4*r+1}")
    sd_ += L(f"""
    v_permlane32_swap_b32 v{T+4}, v{T+5}
    v_add_f32 v{T+4}, v{T+4}, v{T+5}
    v_mov_b32 v{T+5}, v{T+4}
    v_permlane16_swap_b32 v{T+4}, v{T+5}
    v_add_f32 v{T+4}, v{T+4}, v{T+5}
    """)
    sd_ += ror_reduce(T + 4)
    sd_ += L(f"""
    v_mul_f32 v{T+4}, {fhex(1/1024)}, v{T+4}
    v_fma_f32 v{T+4}, -v{T+3}, v{T+3}, v{T+4}
    v_max_f32 v{T+4}, 0, v{T+4}
    """)
    sd_ += rbf(T + 4) + [f"v_add_f32 v{T+4}, {fhex(1e-5)}, v{T+4}"] + rbf(T + 4) + [f"v_sqrt_f32 v{T+4}, v{T+4}"] + rbf(T + 4)
    sd_ += L(f"""
    v_cvt_pk_bf16_f32 v{T+5}, -v{T+2}, v{T+4}
    v_rcp_f32 v{T+4}, v{T+4}
    v_lshlrev_b32 v{T+6}, 12, v{vH}
    s_lshl_b32 s50, s37, 2
    s_add_u32 s101, s50, {ST_OFF}
    v_readlane_b32 s96, v{T+4}, 0
    v_readlane_b32 s98, v{T+4}, 32
    """)
    sd_.append(L(f"s_mov_b32 exec_lo, 1\ns_mov_b32 exec_hi, 1\nbuffer_store_dword v{T+5}, v{T+6}, {WS}, s101 offen {SC} ;@pub\ns_mov_b64 exec, -1"))
    AC = ACC
    for i in range(8): sd_.append(f"v_pk_mul_f32 {vr(F_+2*i,2)}, {vr(F_+2*i,2)}, s[96:97] op_sel_hi:[1,0]")
    for i in range(8):
        sd_.append(f"v_pk_fma_f32 {vr(AC+2*i,2)}, {vr(F_+16+2*i,2)}, s[98:99], {vr(F_+2*i,2)} op_sel_hi:[1,0,1]")
        sd_.append(f"v_pk_fma_f32 {vr(AC+16+2*i,2)}, {vr(F_+16+2*i,2)}, s[98:99], {vr(F_+2*i,2)} op_sel_hi:[1,0,1] neg_lo:[1,0,0] neg_hi:[1,0,0]")
    CK = opt("YCK", 1)
    sd_.append(M("by", CK - 1))
    for i in range(16): sd_.append(f"v_cvt_pk_bf16_f32 v{AC+32+i}, v{AC+2*i}, v{AC+2*i+1}")
    for i in range(4): sd_.append(f"ds_write_b128 v{T+11}, {vr(AC+32+4*i,4)} offset:{1024*i}")
    NY = T + 9
    sd_ += L(f"""
    v_mov_b32 v{T}, s96
    v_mov_b32 v{T+1}, s98
    v_mul_f32 v{T}, s92, v{T}
    v_mul_f32 v{T+1}, s93, v{T+1}
    v_cos_f32 v{T+2}, v{ph}
    v_sin_f32 v{T+3}, v{ph}
    v_add_f32 v{T+4}, v{T}, v{T+1}
    v_sub_f32 v{T+5}, v{T}, v{T+1}
    v_mul_f32 v{T+4}, 0.5, v{T+4}
    v_mul_f32 v{T+5}, 0.5, v{T+5}
    v_mul_f32 v{T+2}, v{T+2}, v{T+5}
    v_mul_f32 v{T+3}, v{T+3}, v{T+5}
    v_cvt_pk_bf16_f32 v{NY}, v{T+4}, 0
    v_cvt_pk_bf16_f32 v{NY+1}, v{T+2}, -v{T+3}
    s_waitcnt lgkmcnt(0)
    """)
    A1 = F_
    for r in range(2):
        for b in range(2):
            for e in range(2): sd_.append(f"ds_read_b64_tr_b16 {vr(A1+8*r+4*b+2*e,2)}, v{vT} offset:{2048*r+1024*b+256*e}")
    if opt("YWL", 0) == 2: sd_ += wld
    sd_ += flagaddr(46, 47, 56)
    sd_.append(L(f"s_mov_b64 exec, 1\nv_mov_b32 v{T}, 0\nbuffer_store_dword v{T}, off, {WS}, s46 {SC} ;@pub\nbuffer_store_dword v{T}, off, {WS}, s47 {SC} ;@pub\ns_mov_b64 exec, -1"))
    sd_.append("s_waitcnt lgkmcnt(0)")
    for r in range(2):
        for b in range(2):
            sd_.append(mfma32(ACC + 32 * r, A1 + 8 * r + 4 * b, C1c + 4 * b, "0" if b == 0 else None))
            sd_.append(mfma32(ACC + 32 * r + 16, A1 + 8 * r + 4 * b, C1s + 4 * b, "0" if b == 0 else None))
    wp = L(f"s_mov_b32 s52, 0x05040100\ns_mov_b32 s53, 0x07060302\nv_xor_b32 v{T+1}, 64, v{T+8}\nWAITV w")
    for i in range(9):
        r, m, d = (XT + i, XT + 8 + i, X + 2 * i) if i < 8 else (XT + 16, XT + 17, XT + 18)
        wp += [f"v_perm_b32 v{d}, v{m}, v{r}, s52", f"v_perm_b32 v{d+1}, v{m}, v{r}, s53"]
    for c in range(2):
        for x in range(2): wp.append(f"ds_write_b128 v{T+1 if c else T+8}, {vr(X+8*c+4*x,4)} offset:{2048*c+16*x}")
    wp.append(L(f"s_mov_b64 exec, 1\nds_write_b64 v{T+8}, {vr(XT+18,2)} offset:4160\ns_mov_b64 exec, -1"))
    wp.append("s_waitcnt lgkmcnt(0)")
    PV = F_
    def bst2(r):
        D = X if r == 0 else C1c
        return cmul(ACC + 32 * r, ACC + 32 * r + 16, TC, TS, True, T, D, False) + \
               [mfma32(ACC + 32 * r, (C2c if r else C2a) + 4 * b, D + 4 * b, "0" if b == 0 else None) for b in range(4)]
    if opt("YWP", 1): sd_ += bst2(1)
    sd_ += wp
    sd_.append(M("sync"))
    sd_ += plane_rd(XT, [vF, vQ], 2)
    if not opt("YWP", 1): sd_ += bst2(1)
    b0_ = bst2(0)
    sd_ += b0_[:8] + plane_st(XT, vK, WT_OFF, "pub")
    k_ = M("mark"); sd_.append(k_)
    sd_ += b0_[8:]
    for r in (1, 0):
        P = ACC + 32 * r
        for b in range(4):
            for t in range(2): sd_.append(f"v_cvt_pk_bf16_f32 v{PV+4*b+t+2*r}, v{P+4*b+2*t}, v{P+4*b+2*t+1}")
    sd_.append(L(f"s_mov_b64 exec, 1\nv_mov_b32 v{PV}, v{NY}\nv_mov_b32 v{PV+2}, v{NY+1}\ns_mov_b64 exec, -1"))
    sd_.append(M("after", k_))
    for b in range(4): sd_.append(f"ds_write_b128 v{T+11}, {vr(PV+4*b,4)} offset:{1024*b}")
    sd_.append("s_waitcnt lgkmcnt(0)")
    sd_.append(M("sync"))
    sd_ += plane_rd(XT, [vP]) + plane_st(XT, vK, P_OFF, "pub")
    FR, FI = C1c, C2a
    vG = T + 8
    sd_.append(f"v_add_u32 v{T}, {TFR}, v{vL16}")
    for b in range(8): sd_.append(f"ds_read_b128 {vr(FR+4*b,4)}, v{T} offset:{1024*b}")
    sd_ += w2addr(VW2, 0, T) + g2bases()
    sd_ += L(f"""
    v_lshrrev_b32 v{vQ}, 2, v0
    v_mul_u32_u24 v{vQ}, {PITCH}, v{vQ}
    v_and_b32 v{T}, 3, v0
    v_lshl_add_u32 v{vQ}, v{T}, 4, v{vQ}
    v_bfe_u32 v{vG}, v0, 2, 2
    v_xor_b32 v{vG}, s3, v{vG}
    v_lshlrev_b32 v{vG}, 4, v{vG}
    v_lshl_add_u32 v{vG}, v0, 6, v{vG}
    v_add_u32 v{vG}, {S}, v{vG}
    v_lshlrev_b32 v{vT}, 2, v0
    """)
    sd_.append(M("sync", opt("YW", 1)))
    sd_.append(M("at", CK + 4))
    sd_.append("WAITV pub cs")
    sd_.append(M("sync"))
    SK = a.label("sk")
    sd_.append(L(f"""
    s_cmp_lg_u32 s3, 0
    s_cbranch_scc1 {SK}
    s_and_b32 s50, s2, 63
    s_lshl_b32 s50, s50, 2
    s_mov_b64 exec, 1
    v_mov_b32 v{vF}, 1
    buffer_atomic_add v{vF}, off, s[28:31], s50 {SC} ;@cond
    s_mov_b64 exec, -1
    {SK}:
    """))
    sd_ += L(f"""
    v_lshrrev_b32 v{T}, 3, v{vK}
    s_mul_i32 s50, s36, 448
    buffer_load_ushort v{XT+16}, v{T}, s[20:23], s50 offen ;@b1
    v_lshrrev_b32 v{vE}, 1, v{vK}
    v_add_u32 v{vE}, {EPA}, v{vE}
    v_mov_b32 v{T}, -1
    v_mov_b32 v{T+1}, -1
    v_mov_b32 v{T+2}, -1
    v_mov_b32 v{T+3}, -1
    s_lshl_b32 s57, s2, 14
    s_add_u32 s57, s57, s94
    s_add_u32 s57, s57, {EX_OFF}
    """)
    for k in range(4): sd_.append(f"buffer_store_dwordx4 {vr(T,4)}, v{vL16}, {WS}, s57 offen offset:{1024*k} {SC}")
    sd_.append(L(f"s_mov_b64 exec, 1\nv_mov_b32 v{T+4}, 0\nbuffer_store_dword v{T+4}, off, {WS}, s56 {SC}\ns_mov_b64 exec, -1"))
    ldS = f"buffer_load_dword v{vF}, v{vT}, s[28:31], 0 offen {SC}"
    sd_.append(M("sync", opt("YP", 1)))
    sd_.append(ldS + " ;@p0")
    sd_.append(M("sync"))
    sd_.append(poll(ldS, f"v_cmp_gt_u32 vcc, 4, v{vF}", "p0"))
    sd_ += gather(vQ, P_OFF, S, "pd")
    sd_.append(L(f"""
    s_and_b32 s50, s3, 1
    s_lshl_b32 s50, s50, 8
    s_add_u32 m0, s50, {EPS}
    s_lshl_b32 s51, s32, 9
    s_add_u32 s50, s50, s51
    s_add_u32 s50, s50, {ST_OFF}
    buffer_load_dword v{vT}, {WS}, s50 offen {SC} lds ;@pd
    s_lshl_b32 s50, s36, 12
    s_lshl_b32 s51, s3, 8
    s_add_u32 s50, s50, s51
    s_add_u32 s50, s50, {CS_OFF}
    """))
    sd_ += [f"buffer_load_dword v{XT+n}, v{vT}, {WS}, s50 offen offset:{1024*n} {SC} ;@pd" for n in range(4)]
    sd_.append(M("sync"))
    sd_.append(M("tail"))
    sd_.append("WAITV pd")
    sd_.append(M("sync"))
    P = X; W = C2c; WRr = Fv; WI = Fv + 16; A0 = ACC; A1 = ACC + 16; B0 = ACC + 32; B1 = ACC + 48
    for b in range(4): sd_.append(f"ds_read_b128 {vr(P+4*b,4)}, v{vG} offset:{4096*b}")
    sd_ += L(f"""
    v_add_f32 v{XT}, v{XT}, v{XT+1}
    v_add_f32 v{XT+2}, v{XT+2}, v{XT+3}
    s_mov_b32 s101, 0x07060302
    v_add_f32 v{XT}, v{XT}, v{XT+2}
    v_and_b32 v{XT+1}, 0xffff0000, v{XT}
    v_sub_f32 v{XT+1}, v{XT}, v{XT+1}
    v_and_b32 v{XT+2}, 0xffff0000, v{XT+1}
    v_perm_b32 v{XT+4}, v{XT+1}, v{XT}, s101
    v_sub_f32 v{XT+2}, v{XT+1}, v{XT+2}
    v_alignbit_b32 v{XT+5}, v{XT+16}, v{XT+2}, 16
    ds_write_b64 v{vE}, {vr(XT+4,2)}
    s_waitcnt lgkmcnt(0)
    """)
    sd_.append(M("by", 15))
    k_ = M("mark"); sd_.append(k_)
    def stage(D0, D1, dat, data_is_A):
        o = []
        for b in range(4):
            for D, Fc in ((D0, FR), (D1, FI)):
                x, y = (dat + 4 * b, Fc + 4 * b) if data_is_A else (Fc + 4 * b, dat + 4 * b)
                o.append(mfma32(D, x, y, "0" if b == 0 else None))
        return o
    sd_ += stage(A0, A1, P, True)
    c1 = cmul(A0, A1, TC, TS, True, T, P, False)
    n1 = opt("YC1", 12)
    sd_ += c1[:n1]
    sd_.append(M("after", k_))
    sd_ += gather(vQ, WT_OFF, S, "wd")
    k_ = M("mark"); sd_.append(k_)
    sd_ += c1[n1:]
    sd_ += stage(B0, B1, P, False)
    sd_.append(M("after", k_))
    sd_.append(M("tail"))
    sd_.append("WAITV wd")
    sd_.append(M("sync"))
    for b in range(4): sd_.append(f"ds_read_b128 {vr(W+4*b,4)}, v{vG} offset:{4096*b}")
    sd_.append("s_waitcnt lgkmcnt(0)")
    k_ = M("mark"); sd_.append(k_)
    for i in range(16): sd_ += [f"v_lshlrev_b32 v{WRr+i}, 16, v{W+i}", f"v_and_b32 v{WI+i}, 0xffff0000, v{W+i}"]
    sd_ += cmul(B0, B1, WRr, WI, False, T, W, True)
    sd_ += stage(A1, A0, W, True)
    sd_ += cmul(A0, A1, TC, TS, False, T, P, True)
    sd_ += stage(B1, B0, P, False)
    for i in range(16): sd_.append(f"v_cvt_pk_bf16_f32 v{W+i}, v{B1+i}, v{B0+i}")
    sd_.append(M("after", k_))
    for b in range(4): sd_.append(f"ds_write_b128 v{T+11}, {vr(W+4*b,4)} offset:{1024*b}")
    sd_.append("s_waitcnt lgkmcnt(0)")
    sd_.append(M("by", 16))
    sd_.append(M("sync"))
    sd_ += plane_rd(XT, [vP]) + plane_st(XT, vK, Q_OFF, "q")
    sd_.append(M("by", 17))
    CA = Fv + 16; CC = Fv + 24; ON = Fv + 28
    fx0 = {k: [] for k in range(-1, 19)}; fx1 = {k: [] for k in range(-1, 19)}
    for k in range(CK, CK + 4):
        d = 16384 + (k % 3) * STG if k == CK else ((k % 3) - ((k - 1) % 3)) * STG
        fx0[k] = [[f"v_add_u32 v{vE}, {d & 0xffffffff}, v{vE}"]] + \
                 [[f"ds_read_b64_tr_b16 {vr(CA+4*sub+2*e,2)}, v{vE} offset:{14336*sub+1792*e}"] for sub in range(2) for e in range(2)]
        if k == CK: fx0[k] += [[f"v_mov_b32 v{ON+i}, 0x3f803f80"] for i in range(4)]
        fx1[k] = [["s_waitcnt lgkmcnt(0)"]] + [[mfma16(CC, ON, CA + 4 * sub, "0" if (k == CK and sub == 0) else None)] for sub in range(2)]
    fx0[CK + 4] = [L(f"v_lshlrev_b32 v{CC+1}, 2, v0\ns_mov_b64 exec, 0xffff\nbuffer_store_dword v{CC}, v{CC+1}, {WS}, s100 offen {SC} ;@cs\ns_mov_b64 exec, -1")]
    fx1[14] = [L("s_lshl_b32 s39, s3, 4\ns_lshl_b64 exec, 0xffff, s39") +
               [f"ds_write_b128 v{vL16}, {vr(TC+4*b,4)} offset:{TD+1024*b}" for b in range(8)] + ["s_mov_b64 exec, -1"]]
    vA = [2, 3, 4, 5]; vBa, vBb, vO, vX0, vX1, vL4 = 6, 7, 8, 9, 10, 11
    g2a = L(f"""
    s_and_b32 s43, s3, 1
    s_lshr_b32 s44, s3, 1
    v_lshrrev_b32 v6, 2, v0
    v_and_b32 v7, 7, v6
    v_and_b32 v8, 3, v0
    v_lshlrev_b32 v8, 3, v8
    v_lshl_add_u32 v8, v6, 8, v8
    v_add_u32 v8, {WR_}, v8
    s_lshl_b32 s40, s43, 2
    v_xor_b32 v7, s40, v7
    """)
    for t in range(4): g2a += [f"v_xor_b32 v9, {t}, v7", f"v_lshl_add_u32 v{vA[t]}, v9, 5, v8"]
    g2a += L(f"""
    s_lshl_b32 s40, s44, 12
    s_lshl_b32 s41, s34, 11
    s_add_u32 s42, s40, s41
    v_add_u32 v{vBa}, s42, v{vL16}
    s_xor_b32 s42, s42, 2048
    v_add_u32 v{vBb}, s42, v{vL16}
    v_and_b32 v11, 15, v0
    v_bfe_u32 v12, v0, 4, 1
    v_lshlrev_b32 v{vO}, 11, v11
    v_lshl_add_u32 v{vO}, v12, 5, v{vO}
    v_lshl_add_u32 v{vO}, v{vH}, 4, v{vO}
    v_lshrrev_b32 v10, 2, v11
    v_xor_b32 v10, v10, v{vH}
    v_lshlrev_b32 v{vX0}, 6, v11
    v_lshl_add_u32 v{vX0}, v10, 4, v{vX0}
    v_lshl_add_u32 v{vX0}, v12, 3, v{vX0}
    s_add_u32 s40, s94, {S}
    v_add_u32 v{vX0}, s40, v{vX0}
    v_xor_b32 v{vX1}, 32, v{vX0}
    v_lshlrev_b32 v{vL4}, 2, v1
    s_xor_b32 s41, s57, 16384
    s_lshl_b32 s42, s44, 1
    s_add_u32 s42, s42, s34
    s_lshl_b32 s40, s32, 2
    s_add_u32 s42, s42, s40
    s_lshl_b32 s42, s42, 16
    s_lshl_b32 s40, s33, 8
    s_add_u32 s42, s42, s40
    s_lshl_b32 s40, s43, 7
    s_add_u32 s42, s42, s40
    s_mov_b32 s40, s57
    s_mov_b32 s46, 6
    """)
    fx1[opt("YG2", 15)] += [[l] for l in g2a]
    YB = opt("YB", 400); YB0 = opt("YB0", 1000); YB16 = opt("YB16", 2000)
    fc = lambda k: sum(cost(l) for g in fx0[k] + fx1[k] for l in g)
    sl = split(sd_, -1, 17, lambda k: YB0 if k < 0 else (YB16 if k == 16 else YB - fc(k)), lambda k, g: UN(k, g) if 0 <= k <= 15 else g)
    if opt("SHOW"): print("Y slices", {k: fc(k) + sum(cost(l) for g in v if not isinstance(g, M) for l in g) for k, v in sl.items()})
    for k in range(-1, 17):
        if 0 <= k <= 13: main = g1issue(k + 2)
        elif k == 14: main = g2issue(0, VW2, None, doH=False)
        elif k == 15: main = sum([g2issue(i, VW2, None, doH=False) for i in (1, 2, 3)], [])
        else: main = []
        a.ext(weave(main, fx0[k] + sl[k] + fx1[k], opt("YFR", 85) / 100))
        a.ext(tr("y", f"A{k}"))
        if 1 <= k < 15: a(f"WAITV s{k+1}")
        if k == 16: a(f"WAITV g3\ns_setprio {opt('YP2', 2)}")
        if k in (-1, 16): a("s_waitcnt lgkmcnt(0)")
        a.ext(tr("y", f"B{k}"))
        a("s_barrier")
        a.ext(tr("y", f"b{k+1}"))
    A2 = 64; F2 = [128, 160]
    ac2 = lambda t, u: A2 + 4 * (4 * u + t)
    def rd2(f, slot, sub):
        rdA = lambda t: [f"ds_read_b64_tr_b16 {vr(f+4*t,2)}, v{vA[t]} offset:{16384*slot+8192*sub}",
                         f"ds_read_b64_tr_b16 {vr(f+4*t+2,2)}, v{vA[t]} offset:{16384*slot+8192*sub+4096}"]
        rdB = lambda u: f"ds_read_b128 {vr(f+16+4*u,4)}, v{vBa if u < 2 else vBb} offset:{16384*slot+8192*sub+1024*(u&1)}"
        o = rdA(0) + [rdB(u) for u in range(4)]
        for t in range(1, 4): o += rdA(t)
        return o
    mf2 = lambda f, z=None: [mfma16(ac2(t, u), f + 4 * t, f + 16 + 4 * u, z) for t, u in snake(4, 4)]
    a.ext(sum(sl[17], []))
    a.ext(rd2(F2[0], 0, 0))
    a("s_waitcnt lgkmcnt(0)")
    a.ext(interleave(mf2(F2[0], "0"), rd2(F2[1], 0, 1)))
    def body(i, extra=[], wait="s_waitcnt lgkmcnt(0)", first=[], trn=False):
        a(wait)
        if trn: a.ext(tr("y", f"B{i+17}"))
        a("s_barrier")
        if trn: a.ext(tr("y", f"d{i+1}"))
        a.ext(first)
        a.ext(interleave(mf2(F2[1]), rd2(F2[0], (i + 1) % 4, 0)))
        a("s_waitcnt lgkmcnt(0)")
        a.ext(interleave(mf2(F2[0]), rd2(F2[1], (i + 1) % 4, 1) + extra))
    ldH = f"buffer_load_dword v{vF}, v{vL4}, {WS}, s97 offen {SC}"
    one = T
    qflag = ["WAITV q"] + L(f"s_mov_b64 exec, 1\nv_mov_b32 v{T}, 1\nbuffer_store_dword v{T}, off, {WS}, s47 {SC}\ns_mov_b64 exec, -1")
    body(0, first=weave(g2issue(4, VW2, None, doH=False), []), trn=True)
    a.ext(qflag)
    a(ldH + " ;@p1")
    a.ext(poll(ldH, f"v_cmp_gt_u32 vcc, 1, v{vF}", "p1"))
    a.ext(tr("y", "p1"))
    a.ext(weave(g2issue(3, VW2, vL16, doW=False) + g2issue(4, VW2, vL16, doW=False), []))
    body(1, first=weave(g2issue(5, VW2, vL16), []), trn=True)
    body(2, wait="WAITV g3 lgkm", trn=True)
    LP = a.label("g2loop")
    a(f"{LP}:")
    for i in range(3, 7): body(i, ["s_sub_u32 s46, s46, 1", "s_cmp_lg_u32 s46, 0"] if i == 6 else [], wait="s_waitcnt vmcnt(0) lgkmcnt(0)")
    a(f"s_cbranch_scc1 {LP}")
    a("s_waitcnt lgkmcnt(0)\nVMRESET")
    a.ext([mfma16(ac2(t, u), F2[1] + 4 * t, F2[1] + 16 + 4 * u) for u in (2, 3, 0, 1) for t in range(4)])
    a.ext(tr("y", "G2end"))
    PKx = 128; BV = 144; EXR = 192; TU = 208
    for i in range(16): a(f"v_cvt_pk_bf16_f32 v{PKx+i}, v{A2+32+2*i}, v{A2+33+2*i}")
    for k in range(4): a(f"buffer_store_dwordx4 {vr(PKx+4*k,4)}, v{vL16}, {WS}, s41 offen offset:{1024*k} {SC}")
    ldE = [f"buffer_load_dwordx4 {vr(EXR+4*k,4)}, v{vL16}, {WS}, s40 offen offset:{1024*k} {SC}" for k in range(4)]
    a.ext(ldE)
    a.ext(tr("y", "pre_e")); a("s_barrier"); a.ext(tr("y", "e"))
    for x in range(2):
        for t in range(4): a(f"ds_read_b64 {vr(BV+8*x+2*t,2)}, v{vX1 if t >> 1 else vX0} offset:{2048*x+1024*(t&1)}")
    def addp(src):
        for i in range(16):
            t = TU + 2 * (i & 3)
            a(f"v_lshlrev_b32 v{t}, 16, v{src+i}\nv_and_b32 v{t+1}, 0xffff0000, v{src+i}\nv_pk_add_f32 {vr(A2+2*i,2)}, {vr(A2+2*i,2)}, {vr(t,2)}")
    a("s_waitcnt lgkmcnt(0)")
    addp(BV)
    l1 = a.label("pe"); ok = a.label("oke")
    a(f"s_mov_b32 s54, {BOUND}\n{l1}:\ns_waitcnt vmcnt(0)")
    for i in range(5): a(f"v_max3_u32 v{TU+i}, v{EXR+3*i}, v{EXR+3*i+1}, v{EXR+3*i+2}")
    a(f"""
    v_max3_u32 v{TU}, v{TU}, v{TU+1}, v{TU+2}
    v_max3_u32 v{TU+3}, v{TU+3}, v{TU+4}, v{EXR+15}
    v_max_u32 v{TU}, v{TU}, v{TU+3}
    v_cmp_eq_u32 vcc, -1, v{TU}
    s_cbranch_vccz {ok}
    s_sub_u32 s54, s54, 1
    s_cbranch_scc1 {ok}
    """)
    a.ext(ldE)
    a(f"s_branch {l1}\n{ok}:"); a.ext(tr("y", "ex"))
    addp(EXR)
    for i in range(16): a(f"v_cvt_pk_bf16_f32 v{PKx+i}, v{A2+2*i}, v{A2+1+2*i}")
    for k in range(4): a(f"v_permlane16_swap_b32 v{PKx+4*k}, v{PKx+4*k+2}\nv_permlane16_swap_b32 v{PKx+4*k+1}, v{PKx+4*k+3}")
    for k in range(4):
        if k == 2: a("s_add_u32 s42, s42, 32768")
        a(f"buffer_store_dwordx4 {vr(PKx+4*k,4)}, v{vO}, s[24:27], s42 offen offset:{64*(k&1)}")
    a.ext(tr("y", "st"))
    if opt("TRACE"): a("s_waitcnt vmcnt(0)")
    a.ext(tr("y", "done") + tr("y", "END"))
    a(f"{END}:\ns_endpgm")

def dotrace(lines):
    import json
    out = []; N = {"x": ["start"], "y": ["start"]}; R = {"x": 220, "y": 26}
    for l in lines:
        p = l.split()
        if p and p[0] == "TRACE":
            r = p[1]; i = len(N[r]) - 1
            out += ["    s_waitcnt lgkmcnt(0)", f"    v_writelane_b32 v{R[r] + i // 64}, s58, {i % 64}"]
            if p[2] == "END":
                out += [f"    {x}" for x in L(f"""
                s_lshl_b32 s55, s2, 3
                s_add_u32 s55, s55, s38
                s_lshl_b32 s55, s55, 9
                s_add_u32 s55, s55, {STAMP_OFF + MB}
                v_mbcnt_lo_u32_b32 v2, -1, 0
                v_mbcnt_hi_u32_b32 v2, -1, v2
                v_lshlrev_b32 v2, 2, v2
                buffer_store_dword v{R[r]}, v2, {WS}, s55 offen
                buffer_store_dword v{R[r]+1}, v2, {WS}, s55 offen offset:256
                """)]
            else:
                out.append(f"    s_mem{'real' if opt('TRACE') == 2 else ''}time s[58:59]"); N[r].append(p[2])
        else: out.append(l)
    json.dump(N, open("trace.json", "w"))
    return out

def build(aslist=False, extra=None):
    import hazard
    a = Asm()
    name = "f_kernel" if aslist else NAME + "_kernel"
    fused(a, name)
    Ls = [f"; @launch {'kernel='+name+' ' if aslist else ''}grid=(256,1,1) block=(512,1,1) lds=163840"]; D = [kernel_desc(name, 256)]
    if extra:
        l, d = extra(a); Ls.append(l); D.append(d)
    a.lines = dotrace(resolve(a.lines))
    a.lines, n = hazard.fix(a.lines, verbose=bool(opt('HZV')))
    print("hazard pads", n, "lines", len(a.lines))
    head = "; generated by dev/fused.py\n" + "\n".join(Ls) + "\n" + '.amdgcn_target "amdgcn-amd-amdhsa--gfx950"\n'
    return head + a.text() + "".join(D)

if __name__ == "__main__":
    ex = None
    if os.environ.get("PROBE"):
        import probe
        pr = [int(x) for x in os.environ["PROBE"].split(",")]
        ex = lambda a: probe.probe2(a, "pr_kernel", *pr)
    open(sys.argv[1], "w").write(build(aslist=bool(opt("LIST")) or ex is not None, extra=ex))
```

```python
import sys, os, re
from common import *
import common
from sched import *
from spec import nk, trig, sink_f32, sink_pack, cmul, rbf, ror_reduce

PITCH = 16640
H_OFF = 0; P_OFF = 16 * MB; WT_OFF = 21 * MB; Q_OFF = 26 * MB; BASE_OFF = 31 * MB; EX_OFF = 35 * MB
CS_OFF = 39 * MB; ST_OFF = CS_OFF + 0x40000; HF_OFF = ST_OFF + 0x2000; CF_OFF = HF_OFF + 0x1000; DF_OFF = CF_OFF + 0x1000
HP = 57344
STG = 45056; S = 3 * STG; PL = 4352; TFR = S + 4 * PL; TFI = TFR + 4096; EPA = TFI + 4096; EPS = EPA + 2048
TB = 2 * STG
TD = 49152
WR_ = 65536
WS, XS, W2S = "s[4:7]", "s[8:11]", "s[12:15]"
SC = "sc1"
BOUND = opt('BOUND', 20000)
KILL = os.environ.get('KILL', '').split(',')
def killed(l):
    op = l.split()[0]
    c = 'mf' if op.startswith('v_mfma') else 'va' if op.startswith('v_') and not op.startswith('v_cmp') else 'ds' if op.startswith('ds_') else 'at' if 'atomic' in op else 'st' if 'store' in op else 'ld' if op.startswith('buffer') else ''
    return c and c in KILL
NS = [nk(r) for r in range(16)]

def mksrd(d, p, n):
    return L(f"s_mov_b32 s{d}, s{p}\ns_mov_b32 s{d+1}, s{p+1}\ns_mov_b32 s{d+2}, {n}\ns_mov_b32 s{d+3}, 0x20000")

def fused(a, name):
    for Q in range(112): assert (Q * 147) >> 10 == Q // 7
    UN = (lambda k, g: [y for x in g for y in unpk(x)]) if opt("UNPK", 1) else (lambda k, g: g)
    TR = {"x": [], "y": []}
    global TRN; TRN = TR
    def tr(role, nm):
        sel = os.environ.get("TRSEL")
        if sel and nm != "END" and nm not in sel.split(","): return []
        return [f"TRACE {role} {nm}"] if opt("TRACE") else []
    def poll(load, cmp, tag):
        l1 = a.label("pl"); ok = a.label("ok")
        return L(f"""
        WAITV {tag}
        s_mov_b32 s54, {BOUND}
        {l1}:
        {cmp}
        s_cbranch_vccz {ok}
        s_sub_u32 s54, s54, 1
        s_cbranch_scc1 {ok}
        {load} ;@cond
        s_waitcnt vmcnt(0)
        s_branch {l1}
        {ok}:
        """)
    def mprio(ls, base=0):
        if not opt("MP", 3): return ls
        o = []
        for i, l in enumerate(ls):
            m = l.startswith("v_mfma")
            if m and not (i and ls[i - 1].startswith("v_mfma")): o.append(f"s_setprio {opt('MP', 3)}")
            o.append(l)
            if m and not (i + 1 < len(ls) and ls[i + 1].startswith("v_mfma")): o.append(f"s_setprio {base}")
        return o
    def cfpoll(d):
        return L(f"""
        s_bfe_u32 s{d}, s35, 0x20004
        s_lshl_b32 s{d}, s{d}, 2
        s_add_u32 s{d}, s{d}, s3
        s_lshl_b32 s{d}, s{d}, 8
        s_add_u32 s{d}, s{d}, {CF_OFF}
        """)
    def plane_rd(D, adr, step=4):
        o = []; pp = PL // 256
        for n in range(4):
            for c in range(2):
                r, k = adr[min(n, len(adr) - 1)], step * n
                o.append(f"ds_read2st64_b32 {vr(D+4*n+2*c,2)}, v{r} offset0:{2*c*pp+k} offset1:{(2*c+1)*pp+k}")
        return o
    def plane_st(D, vo, off, tag):
        o = [L(f"s_mul_i32 s53, s35, {PITCH}\ns_add_u32 s53, s53, {off}\ns_waitcnt lgkmcnt(0)")]
        for n in range(4):
            o.append([f"buffer_store_dwordx4 {vr(D+4*n,4)}, v{vo}, {WS}, s53 offen {SC} ;@{tag}"] + ([f"s_add_u32 s53, s53, 4096"] if n < 3 else []))
        return o
    def gather(vq, off, lds, tag):
        o = [L(f"""
        s_mul_i32 s55, s3, {64*PITCH}
        s_lshl_b32 s52, s35, 6
        s_add_u32 s55, s55, s52
        s_add_u32 s55, s55, {off}
        """)]
        for n in range(4):
            o.append([f"s_add_u32 m0, s94, {lds+1024*n}"] + ([f"s_add_u32 s55, s55, {16*PITCH}"] if n else []) +
                     [f"buffer_load_dwordx4 v{vq}, {WS}, s55 offen {SC} lds ;@{tag}"])
        return o
    def w2addr(VW2, ln, t):
        o = L(f"""
        v_lshrrev_b32 v{t}, 4, v{ln}
        v_bfe_u32 v{t+1}, v{ln}, 1, 3
        v_and_b32 v{t+2}, 1, v{ln}
        v_lshlrev_b32 v{t+2}, 4, v{t+2}
        """)
        for n in range(4):
            o += L(f"""
            v_add_u32 v{VW2+n}, {4*n}, v{t}
            v_and_b32 v{t+3}, 7, v{VW2+n}
            v_xor_b32 v{t+3}, v{t+3}, v{t+1}
            v_lshl_add_u32 v{t+3}, v{t+3}, 5, v{t+2}
            v_lshl_add_u32 v{VW2+n}, v{VW2+n}, 11, v{t+3}
            """)
            if n: o.append(f"v_subrev_u32 v{VW2+n}, {1024*n}, v{VW2+n}")
        return o
    def g2bases():
        return L(f"""
        s_lshl_b32 s94, s3, 12
        s_lshl_b32 s50, s32, 1
        s_add_u32 s50, s50, s34
        s_mul_i32 s50, s50, {8*HP}
        s_add_u32 s48, s50, s94
        s_lshr_b32 s51, s3, 1
        s_and_b32 s52, s3, 1
        s_mul_i32 s92, s51, {HP}
        s_add_u32 s92, s92, s50
        s_lshl_b32 s53, s52, 12
        s_add_u32 s92, s92, s53
        s_add_u32 s92, s92, {49152}
        s_mul_i32 s50, s34, {1792*2048}
        s_lshl_b32 s53, s33, 8
        s_add_u32 s50, s50, s53
        s_lshl_b32 s49, s51, 18
        s_add_u32 s49, s49, s50
        s_lshl_b32 s53, s52, 15
        s_add_u32 s49, s49, s53
        s_mul_i32 s93, s51, {224*2048}
        s_add_u32 s93, s93, s50
        s_lshl_b32 s53, s52, 14
        s_add_u32 s93, s93, s53
        s_add_u32 s93, s93, {96*2048}
        """)
    def g2step(i):
        if i < 3: return (i, 0)
        if i < 24: return ((i - 3) // 7, (i - 3) % 7 + 1)
        return (3, i - 24)
    def g2issue(i, VW2, VH, doW=True, doH=True):
        tp, d = g2step(i); slot = i % 4
        if tp < 3:
            pre = L(f"""
            s_add_u32 s95, s33, {d}
            s_and_b32 s95, s95, 7
            s_mul_i32 s96, s95, {8*HP}
            s_mul_i32 s95, s95, {HP}
            s_add_u32 s96, s96, s49
            s_add_u32 s95, s95, s48
            """)
            if tp: pre += L(f"s_add_u32 s96, s96, {65536*tp}\ns_add_u32 s95, s95, {16384*tp}")
        else:
            pre = L(f"""
            s_add_u32 s95, s33, {2*d}
            s_and_b32 s95, s95, 6
            s_mul_i32 s96, s95, {8*HP}
            s_mul_i32 s95, s95, {HP}
            s_add_u32 s96, s96, s93
            s_add_u32 s95, s95, s92
            """)
        G = []
        if doH:
            for n in range(4):
                g = [f"s_add_u32 m0, s94, {16384*slot}"] + (pre if n == 0 else [])
                G.append(g + [f"buffer_load_dwordx4 v{VH}, {WS}, s95 offen offset:{1024*n} {SC} lds ;@g{i}"])
            pre = []
        if doW:
            for n in range(4):
                g = [f"s_add_u32 m0, s94, {WR_+16384*slot}"] + (pre if n == 0 else [])
                if n == 2 and tp == 3: g.append("s_add_u32 s96, s96, 16384")
                G.append(g + [f"buffer_load_dwordx4 v{VW2+n}, {W2S}, s96 offen offset:{1024*n} lds ;@g{i}"])
        return G

    VX, VW = 2, 6
    def g1addr(T):
        ax = L(f"""
        v_lshrrev_b32 v{T+5}, 3, v0
        s_lshl_b32 s50, s3, 5
        v_add_u32 v{T+5}, s50, v{T+5}
        v_and_b32 v{T}, 7, v0
        """)
        for n in range(4):
            ax += L(f"""
            v_add_u32 v{T+1}, {8*n}, v{T+5}
            v_bfe_u32 v{T+2}, v{T+1}, 1, 3
            v_xor_b32 v{T+2}, v{T+2}, v{T}
            v_lshlrev_b32 v{T+2}, 4, v{T+2}
            v_lshl_add_u32 v{VX+n}, v{T+1}, 11, v{T+2}
            """)
            if n: ax.append(f"v_subrev_u32 v{VX+n}, {1024*n}, v{VX+n}")
        ax += L(f"v_lshrrev_b32 v{T+5}, 2, v0\nv_and_b32 v{T}, 3, v0\nv_lshlrev_b32 v{T}, 4, v{T}\ns_movk_i32 s51, {7168-448}")
        aw = []
        for n in range(7):
            aw.append(L(f"""
            v_add_u32 v{T+1}, {16*n}, v{T+5}
            v_mul_u32_u24 v{T+2}, 147, v{T+1}
            v_lshrrev_b32 v{T+2}, 10, v{T+2}
            v_and_b32 v{T+4}, 8, v{T+2}
            v_lshlrev_b32 v{T+4}, 2, v{T+4}
            v_xor_b32 v{T+4}, v{T+4}, v{T}
            v_mad_u32_u24 v{T+4}, v{T+2}, s51, v{T+4}
            v_lshl_add_u32 v{VW+n}, v{T+5}, 6, v{T+4}
            """) + ([f"v_add_u32 v{VW+n}, 4096, v{VW+n}"] if n >= 4 else []))
        return ax, aw
    nxt = L(f"""
    s_and_b32 s42, s42, 15
    s_lshl_b32 s43, s42, 7
    s_add_u32 s43, s43, s40
    s_mul_i32 s44, s42, {64*7168}
    s_add_u32 s44, s44, s41
    s_add_u32 s42, s42, 1
    """)
    def g1scal(first):
        return L(f"""
        s_lshl_b32 s40, s32, 18
        s_mul_i32 s41, s36, 448
        s_mul_i32 s45, s3, {16*7168}
        s_add_u32 s41, s41, s45
        s_and_b32 s42, s32, 12
        s_add_u32 s42, s42, {first}
        s_lshl_b32 s94, s3, 12
        s_mul_i32 s45, s3, 7168
        s_add_u32 s45, s45, 16384
        """) + nxt
    def g1issue(i):
        o = (i % 3) * STG; G = []
        for n in range(4):
            G.append([f"s_add_u32 m0, s94, {o}", f"buffer_load_dwordx4 v{VX+n}, {XS}, s43 offen offset:{1024*n} lds ;@s{i}"])
        for n in range(7):
            G.append([f"s_add_u32 m0, s45, {o + 4096*(n//4)}", f"buffer_load_dwordx4 v{VW+n}, s[16:19], s44 offen offset:{1024*(n%4)} lds ;@s{i}"])
        G[-1] += nxt
        return G
    def flagaddr(h, c, d):
        return L(f"""
        s_lshl_b32 s97, s32, 1
        s_add_u32 s97, s97, s34
        s_lshl_b32 s97, s97, 7
        s_add_u32 s97, s97, {HF_OFF}
        s_lshl_b32 s{h}, s33, 2
        s_add_u32 s{h}, s{h}, s3
        s_lshl_b32 s{h}, s{h}, 2
        s_add_u32 s{h}, s{h}, s97
        s_lshl_b32 s{c}, s3, 8
        s_add_u32 s{c}, s{c}, s35
        s_lshl_b32 s{c}, s{c}, 2
        s_add_u32 s{c}, s{c}, {CF_OFF}
        s_lshl_b32 s{d}, s37, 2
        s_add_u32 s{d}, s{d}, {DF_OFF}
        """)

    kernel_begin(a, name)
    END = a.label("end"); YR = a.label("yrole")
    a(f"s_cmp_ge_u32 s2, 256\ns_cbranch_scc1 {END}")
    if opt("TRACE"): a(f"s_mem{'real' if opt('TRACE') == 2 else ''}time s[58:59]")
    a(f"""
    s_load_dwordx16 s[64:79], s[0:1], 0
    s_load_dwordx4 s[80:83], s[0:1], 64
    s_load_dwordx2 s[84:85], s[0:1], 80
    v_lshrrev_b32 v1, 6, v0
    s_and_b32 s34, s2, 1
    s_bfe_u32 s32, s2, 0x20001
    v_readfirstlane_b32 s38, v1
    s_lshl_b32 s32, s32, 2
    s_lshr_b32 s33, s2, 6
    s_add_u32 s32, s32, s33
    s_bfe_u32 s33, s2, 0x30003
    s_lshl_b32 s36, s34, 3
    s_add_u32 s36, s36, s33
    s_xor_b32 s35, s2, s33
    s_and_b32 s35, s35, 1
    s_mul_i32 s35, s35, 9
    s_xor_b32 s35, s35, s2
    s_and_b32 s3, s38, 3
    s_lshr_b32 s37, s35, 5
    s_lshl_b32 s37, s37, 2
    s_add_u32 s37, s37, s3
    s_lshl_b32 s37, s37, 5
    s_and_b32 s39, s35, 31
    s_add_u32 s37, s37, s39
    s_cmp_ge_u32 s38, 4
    s_cbranch_scc1 {YR}
    """)
    vL16, VW2, vPm, vF, vL4, vQ, vO, vC, ph, sg, vBO, vBG, one = 240, 241, 245, 246, 247, 248, 249, 250, 251, 252, 253, 254, 255
    F = [112, 156]
    vAe, vAo, vA6, vB0, vB1, vHW, vHO, vLn = 200, 201, 202, 203, 204, 205, 206, 223
    GO = 224; T0 = 40
    acc = lambda t, u: 4 * (4 * t + u)
    a("VMRESET")
    ax, aw = g1addr(28)
    a("v_and_b32 v0, 63, v0")
    l31, hh, kf, bs, TT_, Q0 = 60, 61, 62, 63, 64, 80
    tb = L(f"""
    v_and_b32 v{l31}, 31, v0
    v_lshrrev_b32 v{hh}, 5, v0
    s_lshl_b32 s52, s3, 3
    v_cvt_f32_u32 v{kf}, v{l31}
    v_lshl_add_u32 v{bs}, v{hh}, 2, s52
    v_cvt_f32_u32 v{bs}, v{bs}
    v_mul_f32 v{kf}, {fhex(1/32)}, v{kf}
    v_lshlrev_b32 v{vL16}, 4, v0
    v_mul_f32 v{bs}, v{bs}, v{kf}
    s_lshl_b32 s52, s3, 10
    s_add_u32 s53, s52, {TFR}
    s_add_u32 s52, s52, {TB}
    """)
    tb += trig(kf, bs, [0, 1, 2, 3], TT_, sink_pack([(Q0, "c", "s"), (Q0 + 4, "-s", "c")]))
    tb += L(f"""
    v_add_u32 v{Q0+20}, s53, v{vL16}
    v_add_u32 v{Q0+21}, s52, v{vL16}
    v_mul_f32 v{Q0+22}, {fhex(1/32)}, v{kf}
    v_mul_f32 v{Q0+23}, {fhex(1/32)}, v{bs}
    ds_write_b128 v{Q0+20}, {vr(Q0,4)}
    ds_write_b128 v{Q0+20}, {vr(Q0+4,4)} offset:4096
    """)
    tb += trig(Q0 + 22, Q0 + 23, [0, 1, 2, 3], TT_, sink_f32(Q0 + 8, Q0 + 12))
    tb += L(f"""
    s_lshr_b32 s52, s3, 1
    s_and_b32 s53, s3, 1
    s_lshl_b32 s54, s52, 2
    s_add_u32 s54, s54, s53
    s_lshl_b32 s54, s54, 2
    v_lshl_add_u32 v{bs}, v{hh}, 3, s54
    v_cvt_f32_u32 v{bs}, v{bs}
    s_lshl_b32 s52, s52, 7
    s_add_u32 s52, s52, s53
    s_lshl_b32 s52, s52, 3
    s_add_u32 s52, s52, {TB + 8192}
    v_mul_f32 v{bs}, v{bs}, v{kf}
    ds_write_b128 v{Q0+21}, {vr(Q0+8,4)}
    ds_write_b128 v{Q0+21}, {vr(Q0+12,4)} offset:4096
    v_add_u32 v{Q0+20}, s52, v{vL16}
    """)
    def s1(grp, T_):
        o = []
        for x in range(4): o += [f"v_cos_f32 v{T_+4+x}, v{T_+x}", f"v_sin_f32 v{T_+8+x}, v{T_+x}"]
        for x in (0, 2):
            o.append(f"v_cvt_pk_bf16_f32 v{Q0+16+x//2}, v{T_+4+x}, v{T_+5+x}")
            o.append(f"v_cvt_pk_bf16_f32 v{Q0+18+x//2}, -v{T_+8+x}, -v{T_+9+x}")
        return o
    tb += trig(kf, bs, [0, 1, 2, 3], TT_, s1)
    tb += L(f"ds_write_b64 v{Q0+20}, {vr(Q0+16,2)}\nds_write_b64 v{Q0+20}, {vr(Q0+18,2)} offset:2048")
    n0 = opt("XT0", 0)
    SELF = opt("SELF", 1)
    SM = {40: 60, 41: 61, 42: 62, 43: 63, 44: 86, 45: 87}
    def ren(ls):
        o = []
        for l in ls:
            l = re.sub(r"\bs(4[0-5])\b(?!.*;@\.)", lambda m: f"s{SM[int(m.group(1))]}", l)
            o.append(re.sub(r"\bv(\d+)\b", lambda m: f"v{int(m.group(1)) + 205}" if 2 <= int(m.group(1)) <= 12 else m.group(0), l))
        return o
    g1x = lambda i: [ren(g) for g in g1issue(i)]
    a.ext(ren(ax + g1scal(0) + sum(aw, [])) + tb[:n0])
    a("s_waitcnt lgkmcnt(0)")
    a.ext(tr("x", "karg"))
    a.ext(mksrd(8, 64, 4 * MB) + mksrd(16, 72, 1024 * 7168))
    a.ext(weave(g1x(0) + g1x(1), [[l] for l in tb[n0:]], 1.0))
    a.ext(tr("x", "iss1"))
    a("s_waitcnt lgkmcnt(0)\ns_barrier")
    a.ext(tr("x", "t"))
    a(f"""
    s_and_b32 s43, s3, 1
    s_lshr_b32 s44, s3, 1
    v_mov_b32 v{vLn}, v0
    v_lshrrev_b32 v{T0}, 4, v0
    v_bfe_u32 v{T0+1}, v0, 2, 2
    v_lshl_add_u32 v{T0+1}, v{T0}, 3, v{T0+1}
    v_mul_u32_u24 v{T0+1}, 448, v{T0+1}
    v_and_b32 v{T0+2}, 3, v0
    v_lshl_add_u32 v{T0+1}, v{T0+2}, 3, v{T0+1}
    v_add_u32 v{T0+1}, 16384, v{T0+1}
    v_and_b32 v{T0+2}, 1, v{T0}
    v_lshlrev_b32 v{T0+3}, 5, v{T0+2}
    s_lshl_b32 s51, s43, 8
    v_add_u32 v{T0+4}, s51, v{T0+1}
    v_add_u32 v{vAe}, v{T0+4}, v{T0+3}
    v_sub_u32 v{vAo}, v{T0+4}, v{T0+3}
    v_xor_b32 v{T0+2}, s43, v{T0+2}
    v_lshl_add_u32 v{vA6}, v{T0+2}, 5, v{T0+1}
    v_add_u32 v{vA6}, 192, v{vA6}
    v_and_b32 v{T0+2}, 15, v0
    v_bfe_u32 v{T0+3}, v0, 1, 3
    v_xor_b32 v{T0+3}, v{T0+3}, v{T0}
    v_lshlrev_b32 v{T0+3}, 4, v{T0+3}
    v_lshl_add_u32 v{vB0}, v{T0+2}, 7, v{T0+3}
    s_lshl_b32 s51, s44, 13
    v_add_u32 v{vB0}, s51, v{vB0}
    v_xor_b32 v{vB1}, 64, v{vB0}
    s_lshl_b32 s50, s43, 13
    s_lshl_b32 s51, s44, 12
    s_add_u32 s50, s50, s51
    v_add_u32 v{vHW}, s50, v{vL16}
    s_lshl_b32 s50, s43, 9
    s_add_u32 s50, s50, s51
    v_lshl_add_u32 v{vHO}, v{l31}, 4, s50
    v_lshl_add_u32 v{vHO}, v{hh}, 10, v{vHO}
    v_lshlrev_b32 v{vL4}, 2, v{l31}
    """)
    a.ext(mksrd(4, 84, 256 * MB) + mksrd(12, 76, 3584 * 2048) + mksrd(24, 78, 2048) + w2addr(VW2, vLn, T0) + g2bases())
    a.ext(flagaddr(40, 41, 42))
    a(f"""
    s_lshl_b32 s45, s32, 4
    s_add_u32 s45, s45, s36
    s_mul_i32 s45, s45, {HP}
    v_lshlrev_b32 v{vO}, 6, v{l31}
    v_lshl_add_u32 v{vO}, v{hh}, 4, v{vO}
    v_lshlrev_b32 v{vBO}, 5, v{l31}
    v_lshl_add_u32 v{vBO}, v{hh}, 4, v{vBO}
    v_lshrrev_b32 v{vQ}, 2, v0
    v_lshlrev_b32 v{vBG}, 11, v{vQ}
    v_mul_u32_u24 v{vQ}, {PITCH}, v{vQ}
    v_and_b32 v{T0+4}, 3, v0
    v_lshl_add_u32 v{vQ}, v{T0+4}, 4, v{vQ}
    v_lshrrev_b32 v{T0+5}, 4, v0
    v_xor_b32 v{T0+4}, v{T0+4}, v{T0+5}
    v_lshl_add_u32 v{vBG}, v{T0+4}, 4, v{vBG}
    v_bfe_u32 v{vC}, v0, 2, 2
    v_xor_b32 v{vC}, s3, v{vC}
    v_lshlrev_b32 v{vC}, 4, v{vC}
    v_lshl_add_u32 v{vC}, v{l31}, 6, v{vC}
    v_lshl_add_u32 v{vC}, v{hh}, 12, v{vC}
    v_add_u32 v{vC}, {S}, v{vC}
    v_lshlrev_b32 v{sg}, 31, v0
    v_xor_b32 v{sg}, 1.0, v{sg}
    s_lshl_b32 s98, s37, 11
    s_add_u32 s99, s98, {2*MB}
    v_cmp_gt_u32 vcc, 32, v0
    v_and_b32 v{kf}, 19, v{l31}
    v_bfe_u32 v{bs}, v{l31}, 2, 1
    v_cndmask_b32 v{sg}, 0, v{sg}, vcc
    v_lshl_or_b32 v{kf}, v{bs}, 3, v{kf}
    v_bfe_u32 v{bs}, v{l31}, 3, 1
    v_lshl_or_b32 v{kf}, v{bs}, 2, v{kf}
    v_lshlrev_b32 v{vPm}, 4, v{kf}
    v_lshl_or_b32 v{vPm}, v{hh}, 9, v{vPm}
    v_cvt_f32_u32 v{kf}, v{kf}
    v_cvt_f32_u32 v{bs}, v{hh}
    v_cvt_f32_u32 v{ph}, s37
    v_mul_f32 v{kf}, {fhex(1/32)}, v{kf}
    v_mul_f32 v{bs}, 4.0, v{bs}
    v_mul_f32 v{ph}, {fhex(1/2048)}, v{ph}
    v_fma_f32 v{bs}, v{bs}, v{kf}, v{ph}
    s_bfe_u32 s100, s35, 0x20004
    s_lshl_b32 s100, s100, 2
    s_add_u32 s100, s100, s3
    s_lshl_b32 s100, s100, 8
    s_add_u32 s100, s100, {CF_OFF}
    """)
    a.ext(trig(kf, bs, NS[:8], TT_, sink_pack([(GO, "-s", "c"), (GO + 8, "c", "s")])))
    def reads(f, sub):
        vb = vB1 if sub else vB0
        def rdA(t):
            base = vA6 if t == 6 else (vAo if t & 1 else vAe)
            imm = (0 if t == 6 else 32 * t) + sub * 14336
            return [f"ds_read_b64_tr_b16 {vr(f+4*t,2)}, v{base} offset:{imm}",
                    f"ds_read_b64_tr_b16 {vr(f+4*t+2,2)}, v{base} offset:{imm+1792}"]
        rdB = lambda u: f"ds_read_b128 {vr(f+28+4*u,4)}, v{vb} offset:{2048*u}"
        o = rdA(0) + [rdB(u) for u in range(4)]
        for t in range(1, 7): o += rdA(t)
        return o
    snake = lambda nt, nu: [(t, u if t % 2 == 0 else nu - 1 - u) for t in range(nt) for u in range(nu)]
    def mf(f, z=None):
        return [mfma16(acc(t, u), f + 4 * t, f + 28 + 4 * u, z) for t, u in snake(7, 4)]
    upd = [f"v_add_u32 v{r}, s46, v{r}" for r in (vAe, vAo, vA6, vB0, vB1)]
    adv = L(f"""
    s_add_u32 s50, s50, {STG}
    s_cmp_eq_u32 s50, {S}
    s_cselect_b32 s46, {(-(S-STG)) & 0xffffffff}, s51
    s_cselect_b32 s50, 0, s50
    """)
    LOOP = a.label("g1loop")
    a(f"s_mov_b32 s51, {STG}\ns_mov_b32 s50, {STG}\ns_mov_b32 s46, {STG}\ns_mov_b32 s47, 15\ns_setprio {opt('XP1', 2)}")
    a.ext(tr("x", "setup")); a("WAITV s0"); a.ext(tr("x", "pre_b0")); a("s_barrier"); a.ext(tr("x", "b0"))
    def put(ls, G, pos):
        o = []; n = 0; G = list(G); pos = list(pos)
        for l in ls:
            o.append(l)
            if l.startswith("v_mfma"):
                while G and pos[0] == n: o += G.pop(0); pos.pop(0)
                n += 1
        assert not G
        return o
    a.ext(reads(F[0], 0))
    if SELF:
        G = g1x(2); G = [g if n in (0, 4, 8) else g[1:] for n, g in enumerate(G)]
        a.ext(sum(G[:2], []))
        a("s_mov_b32 s88, 0\ns_mov_b32 s47, 13\ns_waitcnt lgkmcnt(0)")
        a.ext(put(interleave(mf(F[0], "0"), reads(F[1], 1) + upd), G[2:], range(1, 28, 3)))
        a("s_waitcnt vmcnt(11) lgkmcnt(0)")
        G[0] = ["s_add_u32 m0, s88, s94"] + G[0][1:]; G[4] = ["s_add_u32 m0, s88, s87"] + G[4][1:]; G[8] = ["s_add_u32 m0, m0, 4096"] + G[8][1:]
        G[10] = G[10] + ["s_mov_b32 s88, s91"]
        P0 = opt("DP0", 2); PS = opt("DPS", 5)
        for lp in range(2):
            LOOP = a.label("g1loop")
            bd = interleave(mf(F[1]), reads(F[0], 0))
            bd[1:1] = ["s_mov_b32 s91, s50"] + adv
            bd += ["s_waitcnt lgkmcnt(0)"] + interleave(mf(F[0]), reads(F[1], 1) + upd)
            if lp == 0:
                M0 = [[g[0]] for g in G if "m0" in g[0]]; Gd = [g[1:] if "m0" in g[0] else g for g in G]
                bd = put(bd, Gd, [P0 + PS * n for n in range(11)])
                bd = put(bd, M0, [P0 + PS * n - 1 for n in (0, 4, 8)])
            bd[-1:-1] = ["s_sub_u32 s47, s47, 1", "s_cmp_lg_u32 s47, 0"]
            a(f"{LOOP}:\ns_barrier"); a.ext(bd)
            a(f"s_waitcnt vmcnt({11 if lp == 0 else 0}) lgkmcnt(0)\ns_cbranch_scc1 {LOOP}")
            if lp == 0: a("s_mov_b32 s47, 2")
        a("s_barrier\nVMRESET")
    else:
        a("s_waitcnt lgkmcnt(0)")
        a.ext(interleave(mf(F[0], "0"), reads(F[1], 1) + upd))
        a(f"{LOOP}:\ns_waitcnt vmcnt(0) lgkmcnt(0)\ns_barrier")
        a.ext(interleave(mf(F[1]), reads(F[0], 0) + adv))
        a("s_waitcnt lgkmcnt(0)")
        a.ext(interleave(mf(F[0]), reads(F[1], 1) + upd + ["s_sub_u32 s47, s47, 1", "s_cmp_lg_u32 s47, 0"]))
        a(f"s_cbranch_scc1 {LOOP}\ns_waitcnt lgkmcnt(0)\ns_barrier\nVMRESET")
    a.ext(tr("x", "b16"))
    EA, STt, BOP, KA_, KB_, SD = 112, 126, 130, 138, 208, [216, 218, 146, 148]
    T0 = 150
    C0, C1 = -2.302208198, -0.1029432397
    prep = L(f"""
    v_and_b32 v{T0}, 15, v{vLn}
    s_lshl_b32 s50, s44, 8
    s_add_u32 s50, s50, {EPS}
    v_lshl_add_u32 v{T0+3}, v{T0}, 2, s50
    s_lshl_b32 s50, s43, 10
    s_add_u32 s50, s50, {EPA}
    v_lshl_add_u32 v{T0+1}, v{T0}, 3, s50
    s_lshl_b32 s50, s43, 7
    s_add_u32 s50, s50, {EPA+768}
    v_lshl_add_u32 v{T0+2}, v{T0}, 3, s50
    """)
    prep += [f"ds_read_b32 v{STt+u}, v{T0+3} offset:{64*u}" for u in range(4)]
    prep += [f"ds_read_b64 {vr(EA+2*t,2)}, v{T0+1} offset:{128*t}" for t in range(6)] + [f"ds_read_b64 {vr(EA+12,2)}, v{T0+2}"]
    prep += L("s_mov_b64 s[50:51], 0xffff\ns_mov_b32 s52, 0x01000100")
    pr2 = ["s_waitcnt lgkmcnt(7)"]
    for u in range(4): pr2 += [f"v_cndmask_b32 v{BOP+2*u+1}, 0, v{STt+u}, s[50:51]", f"v_and_b32 v{SD[u]}, 0xffff0000, v{STt+u}"]
    for u in range(4): pr2 += [f"v_perm_b32 v{BOP+2*u}, v{BOP+2*u+1}, v{BOP+2*u+1}, s52", f"v_rcp_f32 v{KA_+2*u}, v{SD[u]}"]
    for u in range(4): pr2 += [f"v_mul_f32 v{KB_+2*u}, {fhex(C0)}, v{KA_+2*u}", f"v_mul_f32 v{KA_+2*u}, v{KA_+2*u}, v{KA_+2*u}"]
    for u in range(4): pr2 += [f"v_mul_f32 v{KA_+2*u}, {fhex(C1/C0)}, v{KA_+2*u}", f"v_mov_b32 v{KB_+2*u+1}, v{KB_+2*u}"]
    for u in range(4): pr2 += [f"v_mul_f32 v{KA_+2*u}, v{KA_+2*u}, v{KB_+2*u}", f"v_mov_b32 v{SD[u]+1}, v{SD[u]}"]
    for u in range(4): pr2 += [f"v_mov_b32 v{KA_+2*u+1}, v{KA_+2*u}"]
    m_ = mf(F[1])
    a.ext(interleave(m_[:6], prep, per=4) + interleave(m_[6:], pr2, start=1, per=2))
    a("s_waitcnt lgkmcnt(0)")
    corr = [f"v_mfma_f32_16x16x16_bf16 {vr(acc(t,u),4)}, {vr(EA+2*t,2)}, {vr(BOP+2*u,2)}, {vr(acc(t,u),4)}"
            for t, u in [(0, 0), (1, 0), (0, 1), (1, 1), (0, 2), (1, 2), (0, 3), (1, 3)] + snake(7, 4)[8:]]
    nc = opt("XNC", 8)
    a.ext(corr[:nc])
    a.ext(tr("x", "corr"))
    def gelu(regs, tt, pk):
        o = []; T = [tt + 2 * i for i in range(len(regs))]
        Z = list(zip(regs, T))
        for (r, u), x in Z: o.append(f"v_pk_mul_f32 {vr(x,2)}, {vr(r,2)}, {vr(r,2)}")
        for (r, u), x in Z: o.append(f"v_pk_fma_f32 {vr(x,2)}, {vr(x,2)}, {vr(KA_+2*u,2)}, {vr(KB_+2*u,2)}")
        for (r, u), x in Z: o.append(f"v_pk_mul_f32 {vr(x,2)}, {vr(x,2)}, {vr(r,2)}")
        for (r, u), x in Z: o += [f"v_exp_f32 v{x}, v{x}", f"v_exp_f32 v{x+1}, v{x+1}"]
        for (r, u), x in Z: o.append(f"v_pk_fma_f32 {vr(x,2)}, {vr(x,2)}, {vr(SD[u],2)}, {vr(SD[u],2)}")
        for (r, u), x in Z: o += [f"v_rcp_f32 v{x}, v{x}", f"v_rcp_f32 v{x+1}, v{x+1}"]
        for (r, u), x in Z: o.append(f"v_pk_mul_f32 {vr(x,2)}, {vr(x,2)}, {vr(r,2)}")
        for i in range(8): o.append(f"v_cvt_pk_bf16_f32 v{pk+i}, v{tt+2*i}, v{tt+2*i+1}")
        return o
    def flag(s_, val):
        return L(f"s_mov_b64 exec, 1\nv_mov_b32 v{one}, {val}\nbuffer_store_dword v{one}, off, {WS}, s{s_} {SC}\ns_mov_b64 exec, -1")
    TT = [160, 176]; PK = [192, 150, 112, 120, 32, 40, 128]; idx = 0
    TC, TS, GE, C2, CH, T, NQ, ACC, BS, XX = 0, 16, 32, 48, 64, 80, 92, 96, 160, 136
    vF2 = 222; HS = [45, 46, 47, 39]
    a(f"s_add_u32 s46, s45, 16384\ns_add_u32 s47, s45, 32768\ns_add_u32 s39, s45, 49152")
    hst = {1: [], 2: []}
    XF1 = opt("XF1", 5); XH1 = opt("XH1", 0)
    def fl1():
        a("WAITV h0 lgkm"); a.ext(flag(40, 1)); a.ext(tr("x", "fl1"))
    for tp in range(3):
        if tp == 1: a.ext([f"ds_read_b128 {vr(TC+4*b,4)}, v{vPm} offset:{TD+1024*b}" for b in range(8)])
        for up in range(2):
            tt = TT[idx & 1]; pk = PK[idx]; idx += 1
            regs = []
            for u in (2 * up, 2 * up + 1): regs += [(acc(2*tp, u), u), (acc(2*tp, u) + 2, u), (acc(2*tp+1, u), u), (acc(2*tp+1, u) + 2, u)]
            g = gelu(regs, tt, pk)
            if idx == 1: g = interleave(g, corr[nc:], start=opt("XCS", 24), every=opt("XCE", 2))
            a.ext(g)
            if idx == XF1: fl1()
            for k in range(2):
                u = 2 * up + k
                st_ = f"buffer_store_dwordx4 {vr(pk+4*k,4)}, v{vHW}, {WS}, s{HS[tp]} offen offset:{1024*u} {SC} ;@h{tp}"
                if tp == 0 or (tp == 1 and XH1 == -1): a(st_)
                else: hst[tp].append(st_)
                a(f"ds_write_b128 v{vHW}, {vr(pk+4*k,4)} offset:{16384*tp+1024*u}")
            if XH1 == -2 and idx >= XF1: a.ext(hst[1]); hst[1] = []
        a.ext(tr("x", f"tp{tp}"))
    regs = []
    for u in range(4): regs += [(acc(6, u), u), (acc(6, u) + 2, u)]
    pk = PK[6]
    odd = gelu(regs, TT[0], pk)
    for k in range(2): odd += [f"v_permlane32_swap_b32 v{pk+4*k}, v{pk+4*k+2}", f"v_permlane32_swap_b32 v{pk+4*k+1}, v{pk+4*k+3}"]
    for k in range(2): hst[2].append(f"buffer_store_dwordx4 {vr(pk+4*k,4)}, v{vHO}, {WS}, s39 offen offset:{2048*k} {SC} ;@h2")
    if opt("XODD", 1): a.ext(odd); odd = []
    if XF1 == 7: fl1()
    a.ext(tr("x", "odd")); a("s_waitcnt lgkmcnt(0)\ns_barrier\ns_setprio 0"); a.ext(tr("x", "d0"))
    ldH = f"buffer_load_dword v{vF}, v{vL4}, {WS}, s97 offen {SC}"
    fx0 = {k: [] for k in range(28)}; fx1 = {k: [] for k in range(28)}
    def spread(sts, k0, per):
        for j, g in enumerate(sts): fx1[k0 + j // per].append(g if isinstance(g, list) else [g])
        return k0 + (len(sts) - 1) // per
    if hst[1]: spread(hst[1], XH1, opt("XH1P", 2))
    fx0[opt("XF2", 4)].append(["WAITV h1"] + flag(40, 2))
    fx1[5].append([ldH + " ;@p2"]); fx1[6].append(poll(ldH, f"v_cmp_gt_u32 vcc, 2, v{vF}", "p2"))
    kq = opt("XQS", 2)
    fx0[kq] += [[l] for l in L(f"""
    s_bfe_u32 s50, s35, 0x20002
    s_lshl_b32 s51, s3, 6
    v_add_u32 v{T+9}, s51, v{vLn}
    v_xor_b32 v{T+8}, s50, v{T+9}
    s_mov_b32 s50, {S}
    v_lshl_add_u32 v{T+8}, v{T+8}, 2, s50
    v_lshlrev_b32 v{T+9}, 4, v{T+9}
    """) + plane_rd(CH, [T + 8])]
    q_ = plane_st(CH, T + 9, Q_OFF, "q")
    kq = spread([q_[0] + q_[1]] + q_[2:], kq, opt("XQP", 2))
    fx0[kq + opt("XQF", 3)].append(["WAITV q"] + flag(41, 2))
    kh2 = spread(hst[2], opt("XH2", 4), opt("XH2P", 2))
    fx0[opt("XF3", 10)].append(["WAITV h2"] + flag(40, 3))
    fx1[12].append([ldH + " ;@p5"]); fx1[13].append(poll(ldH, f"v_cmp_gt_u32 vcc, 3, v{vF}", "p5"))
    B2 = XX + 16
    sd_ = list(odd)
    sd_.append(M("by", opt("XH2", 4)))
    for r in range(2):
        for e in range(2): sd_.append(f"buffer_load_dwordx4 {vr(XX+8*r+4*e,4)}, v{vO}, {XS}, s{98+r} offen offset:{32*e} ;@xd")
    for e in range(2): sd_.append(f"buffer_load_dwordx4 {vr(B2+4*e,4)}, v{vO}, s[24:27], 0 offen offset:{32*e} ;@xd")
    sd_ += L(f"v_add_u32 v{T+5}, {TFR}, v{vPm}\nv_add_u32 v{T+1}, {TFR}, v{vL16}\nv_lshlrev_b32 v{vPm}, 2, v{vLn}")
    for b in range(4): sd_.append(f"ds_read_b128 {vr(C2+4*b,4)}, v{T+1} offset:{1024*b}")
    sd_.append(M("sync", 3))
    sd_.append("WAITV xd")
    for i in range(8):
        sd_ += [f"v_lshlrev_b32 v{T+6}, 16, v{B2+i}", f"v_and_b32 v{T+7}, 0xffff0000, v{B2+i}"]
        for r in range(2):
            d = BS + 16 * r + 2 * i
            sd_ += [f"v_lshlrev_b32 v{d}, 16, v{XX+8*r+i}", f"v_and_b32 v{d+1}, 0xffff0000, v{XX+8*r+i}",
                    f"v_pk_add_f32 {vr(d,2)}, {vr(d,2)}, {vr(T+6,2)}"]
    ldC = f"buffer_load_dword v{vF2}, v{vPm}, {WS}, s100 offen {SC}"
    sd_.append(M("at", max(kh2 + 1, kq + opt("XQF", 3) + opt("XCP", 2))))
    sd_.append(ldC + " ;@p3")
    for c in range(2):
        for b in range(2): sd_.append(f"ds_read_b128 {vr(GE+8*c+4*b,4)}, v{T+5} offset:{4096*(1-c)+1024*b}")
    sd_.append(M("sync"))
    sd_.append(poll(ldC, f"v_cmp_ne_u32 vcc, 2, v{vF2}", "p3"))
    sd_ += gather(vQ, Q_OFF, S, "qd")
    sd_ += L(f"""
    s_lshl_b32 s50, s3, 4
    s_add_u32 s50, s50, {S}
    v_mov_b32 v{T+4}, s50
    v_cos_f32 v{T}, v{ph}
    v_sin_f32 v{T+1}, v{ph}
    """)
    sd_.append(M("sync", 2))
    sd_.append("WAITV qd")
    sd_.append(M("sync"))
    for b in range(2):
        for e in range(2): sd_.append(f"ds_read_b128 {vr(CH+8*b+4*e,4)}, v{vC} offset:{8192*b+2048*e}")
    sd_.append(f"ds_read_b128 {vr(NQ,4)}, v{T+4}")
    sd_.append("s_waitcnt lgkmcnt(0)")
    sd_ += L(f"v_writelane_b32 v{CH}, 0, 0\nv_writelane_b32 v{CH+2}, 0, 0")
    for b in range(2): sd_ += L(f"v_swap_b32 v{CH+8*b+2}, v{CH+8*b+4}\nv_swap_b32 v{CH+8*b+3}, v{CH+8*b+5}")
    for r in range(2):
        for b in range(2):
            for c in range(2):
                sd_.append(mfma32(ACC + 32 * r + 16 * c, CH + 8 * b + 4 * r, (GO if r else GE) + 8 * c + 4 * b, "0" if b == 0 else None))
    sd_ += L(f"""
    v_and_b32 v{NQ}, 0xffff0000, v{NQ}
    v_and_b32 v{NQ+1}, 0xffff0000, v{NQ+2}
    v_lshlrev_b32 v{NQ+2}, 16, v{NQ+2}
    v_mul_f32 v{NQ+1}, v{NQ+1}, v{T}
    v_fma_f32 v{NQ+1}, -v{NQ+2}, v{T+1}, v{NQ+1}
    """)
    PKD = [192, CH]
    negim = lambda o: [re.sub(r", (v\d+)$", r", -\1", l) if l.startswith("v_cvt_pk") else l for l in o]
    for r in range(2):
        sd_.append(f"v_fmac_f32 v{ACC+32*r}, v{NQ+r}, v{sg}")
        sd_ += negim(cmul(ACC + 32 * r, ACC + 32 * r + 16, TC, TS, False, T, PKD[r], False))
        for b in range(4): sd_.append(mfma32(ACC + 32 * r, PKD[r] + 4 * b, C2 + 4 * b, "0" if b == 0 else None))
    sd_ += L(f"s_mov_b32 s100, {fhex(2.0**-20)}\ns_add_u32 s98, s98, {BASE_OFF}\ns_add_u32 s99, s99, {BASE_OFF}")
    E = ACC; O = ACC + 32
    for i in range(8):
        for r in range(2): sd_.append(f"v_pk_fma_f32 {vr(BS+16*r+2*i,2)}, {vr(E+2*i,2)}, s[100:101], {vr(BS+16*r+2*i,2)} op_sel_hi:[1,0,1]")
    for i in range(8):
        for r in range(2):
            sd_.append(f"v_pk_fma_f32 {vr(BS+16*r+2*i,2)}, {vr(O+2*i,2)}, s[100:101], {vr(BS+16*r+2*i,2)} op_sel_hi:[1,0,1]" + (" neg_lo:[1,0,0] neg_hi:[1,0,0]" if r else ""))
    for i in range(16): sd_.append(f"v_cvt_pk_bf16_f32 v{CH+i}, v{BS+2*i}, v{BS+2*i+1}")
    for r in range(2):
        if r and opt("XBS", 1): sd_.append(M("sync"))
        sd_.append(M("tail"))
        for e in range(2): sd_.append(f"buffer_store_dwordx4 {vr(CH+8*r+4*e,4)}, v{vBO}, {WS}, s{98+r} offen offset:{1024*e} {SC} ;@bs")
    ldD = f"buffer_load_dword v{vF2}, v{vL4}, {WS}, s100 offen {SC}"
    sd_ += L(f"""
    s_lshl_b32 s98, s44, 1
    s_add_u32 s98, s98, s34
    s_lshl_b32 s99, s32, 2
    s_add_u32 s98, s98, s99
    s_and_b32 s100, s98, 31
    s_lshl_b32 s100, s100, 7
    s_add_u32 s100, s100, {DF_OFF}
    s_lshl_b32 s98, s98, 16
    s_lshl_b32 s99, s33, 7
    s_add_u32 s98, s98, s99
    s_lshl_b32 s99, s43, 6
    s_add_u32 s98, s98, s99
    s_add_u32 s98, s98, {BASE_OFF}
    s_add_u32 s99, s98, 32768
    """)
    sd_.append(M("sync", opt("XBF", 3)))
    sd_.append(["WAITV bs"] + flag(42, 1))
    sd_.append(M("sync", opt("XBP", 2)))
    sd_.append(M("at", opt("XDP", 0)))
    sd_.append(ldD + " ;@p4")
    sd_.append(M("sync"))
    sd_.append(poll(ldD, f"v_cmp_ne_u32 vcc, 1, v{vF2}", "p4"))
    for x in range(2):
        for e in range(2): sd_.append([f"s_add_u32 m0, s94, {S+2048*x}", f"buffer_load_dwordx4 v{vBG}, {WS}, s{98+x} offen offset:{1024*e} {SC} lds ;@bg"])
    XB = opt("XB", 220)
    fc = lambda k: sum(cost(l) for g in fx0[k] + fx1[k] for l in g)
    sl = split(sd_, 0, 27, lambda k: XB - fc(k), UN)
    if opt("SHOW"): print("X slices", {k: fc(k) + sum(cost(l) for g in v if not isinstance(g, M) for l in g) for k, v in sl.items()})
    for k in range(28):
        main = g2issue(k + 3, VW2, vL16) if 1 <= k <= 24 else []
        a.ext(mprio(weave(main, fx0[k] + sl[k] + [M("tail")] + fx1[k], opt("XFR", 85) / 100)))
        if k < 27:
            a.ext(tr("x", f"A{k}"))
            if k + 1 >= 4: a(f"WAITV g{k+1}")
            a.ext(tr("x", f"B{k}"))
            a("s_barrier")
            a.ext(tr("x", f"d{k+1}"))
    a("s_waitcnt vmcnt(0)"); a.ext(tr("x", "pre_e")); a("s_barrier"); a.ext(tr("x", "e") + tr("x", "END"))
    a("s_endpgm")
    a(f"{YR}:\nVMRESET")
    VW2 = 13
    vL16, vT, vH, vK, ph, vF, vQ, vP, vE = 17, 18, 19, 20, 21, 22, 23, 24, 25
    T = 28; X = 40; Fv = 56
    C1c, C1s, C2a, C2c, TC, TS, ACC = 88, 96, 104, 120, 136, 152, 168
    XT = 232; RX = ACC + 48
    a(f"""
    v_and_b32 v{vK}, 255, v0
    v_and_b32 v0, 63, v0
    s_lshl_b32 s46, s37, 11
    v_lshlrev_b32 v{vL16}, 4, v0
    s_add_u32 s47, s46, {2*MB}
    v_lshlrev_b32 v{XT}, 10, v0
    v_mov_b32 v{XT+1}, 0
    s_lshl_b32 s56, s35, 2
    s_add_u32 s56, s56, {CF_OFF}
    """)
    kf, bs, hf = ACC, ACC + 1, ACC + 2; TT = ACC + 4
    ax, aw = g1addr(T)
    pre = L(f"""
    v_and_b32 v1, 31, v0
    v_lshrrev_b32 v{vH}, 5, v0
    v_cvt_f32_u32 v{hf}, v{vH}
    v_cvt_f32_u32 v{ph}, s37
    v_lshrrev_b32 v{X}, 1, v1
    v_and_b32 v{X+1}, 1, v1
    v_cvt_f32_u32 v{kf}, v{X}
    v_cvt_f32_u32 v{bs}, v{X+1}
    v_mul_f32 v{ph}, {fhex(1/2048)}, v{ph}
    v_mul_f32 v{kf}, {fhex(1/32)}, v{kf}
    v_fmamk_f32 v{bs}, v{bs}, {fhex(0.25)}, v{ph}
    v_mul_f32 v{hf}, 4.0, v{hf}
    v_fmac_f32 v{bs}, v{hf}, v{kf}
    v_lshlrev_b32 v{X}, 4, v{X}
    v_lshl_add_u32 v{X}, v{vH}, 9, v{X}
    v_lshl_add_u32 v{X}, v{X+1}, 12, v{X}
    v_add_u32 v{X}, {TFR}, v{X}
    v_add_u32 v{X+1}, {TB}, v{vL16}
    """)
    pre += trig(kf, bs, NS, TT, sink_pack([(C2c, "c", "s")]))
    pre += ["s_lshl_b32 s94, s3, 12"] if SELF else ax + g1scal(2) + sum(aw, [])
    pre += L(f"""
    s_bfe_u32 s50, s35, 0x20002
    v_xor_b32 v{vP}, s50, v{vK}
    v_bfe_u32 v{T}, v{vP}, 1, 1
    v_and_b32 v{T+1}, 1, v{vP}
    v_bfe_u32 v{T+2}, v{vP}, 2, 5
    v_lshrrev_b32 v{T+3}, 7, v{vP}
    v_mul_u32_u24 v{T+4}, 513, v{T}
    v_lshl_add_u32 v{T+2}, v{T+1}, 5, v{T+2}
    v_lshl_add_u32 v{T+2}, v{T+3}, 6, v{T+2}
    v_add_u32 v{T+1}, v{T+2}, v{T+4}
    v_lshrrev_b32 v{T+3}, 2, v{T+1}
    v_and_b32 v{T+3}, 8, v{T+3}
    v_lshl_or_b32 v{T+3}, v{T}, 4, v{T+3}
    v_xor_b32 v{T+1}, v{T+1}, v{T+3}
    v_add_u32 v{T+4}, 528, v{T+4}
    v_cmp_eq_u32 vcc, 0, v{T+2}
    s_mov_b32 s50, {S}
    v_lshl_add_u32 v{vQ}, v{T+1}, 2, s50
    v_cndmask_b32 v{T+1}, v{T+1}, v{T+4}, vcc
    v_lshl_add_u32 v{vP}, v{vP}, 2, s50
    v_lshl_add_u32 v{vF}, v{T+1}, 2, s50
    v_lshlrev_b32 v{vK}, 4, v{vK}
    v_bfe_u32 v{T}, v0, 2, 2
    v_lshl_add_u32 v{T}, v{vH}, 3, v{T}
    v_lshlrev_b32 v{vT}, 6, v{T}
    v_bfe_u32 v{T}, v0, 4, 1
    v_lshl_add_u32 v{vT}, v{T}, 5, v{vT}
    v_and_b32 v{T}, 3, v0
    v_lshl_add_u32 v{vT}, v{T}, 3, v{vT}
    s_mul_i32 s50, s3, {PL}
    s_add_u32 s50, s50, {S}
    v_add_u32 v{vT}, s50, v{vT}
    v_add_u32 v{T+11}, s50, v{vL16}
    v_bfe_u32 v{T}, v0, 2, 1
    v_xor_b32 v{T}, v{T}, v0
    v_lshl_add_u32 v{T+8}, v{T}, 5, s50
    v_lshrrev_b32 v{T}, 4, v0
    v_bfe_u32 v{T+1}, v0, 2, 2
    v_lshl_add_u32 v{T+1}, v{T}, 3, v{T+1}
    v_mul_u32_u24 v{T+1}, 448, v{T+1}
    v_and_b32 v{T+2}, 3, v0
    v_lshl_add_u32 v{T+1}, v{T+2}, 3, v{T+1}
    s_lshr_b32 s50, s2, 6
    s_lshl_b32 s50, s50, 2
    s_add_u32 s50, s50, s3
    v_and_b32 v{T}, 1, v{T}
    v_xor_b32 v{T}, s50, v{T}
    v_lshl_add_u32 v{vE}, v{T}, 5, v{T+1}
    s_lshl_b32 s51, s36, 4
    s_and_b32 s52, s32, 12
    s_add_u32 s51, s51, s52
    s_lshl_b32 s51, s51, 2
    s_add_u32 s51, s51, s50
    s_lshl_b32 s51, s51, 6
    s_add_u32 s100, s51, {CS_OFF}
    s_mul_i32 s57, s37, 2052
    """)
    n0 = opt("YT0", 0)
    a.ext(pre[:n0])
    a("s_waitcnt lgkmcnt(0)")
    a.ext(tr("y", "karg"))
    a.ext(mksrd(8, 64, 4 * MB) + mksrd(4, 84, 256 * MB))
    SK = a.label("sk")
    a(f"""
    s_cmp_lg_u32 s3, 0
    s_cbranch_scc1 {SK}
    s_mov_b64 exec, 15
    buffer_store_dword v{XT+1}, v{XT}, {WS}, s56 offen {SC} ;@cond
    s_mov_b64 exec, -1
    {SK}:
    """)
    for r in range(2):
        for e in range(2): a(f"buffer_load_dwordx4 {vr(RX+8*r+4*e,4)}, v{vL16}, {XS}, s{46+r} offen offset:{1024*e} ;@xb")
    a.ext(tr("y", "iss0"))
    a.ext(mksrd(16, 72, 1024 * 7168) + mksrd(12, 76, 3584 * 2048) + mksrd(20, 74, 7168) + mksrd(24, 80, 4 * MB) +
          mksrd(28, 82, 256) + mksrd(60, 66, 2048 * 1026) + mksrd(88, 68, 2048 * 1026))
    a.ext(pre[n0:])
    a.ext(tr("y", "pre_t")); a("s_barrier"); a.ext(tr("y", "t"))
    for b in range(4): a(f"ds_read_b128 {vr(C1c+4*b,4)}, v{X+1} offset:{8192+1024*b}")
    for b in range(8): a(f"ds_read_b128 {vr(TC+4*b,4)}, v{X+1} offset:{1024*b}")
    for b in range(4): a(f"ds_read_b128 {vr(C2a+4*b,4)}, v{X} offset:{1024*b}")
    wld = []
    for c in range(2):
        wld.append(f"buffer_load_dwordx4 {vr(XT+4*c,4)}, v{vL16}, s[60:63], s57 offen offset:{1024*c} ;@w")
        wld.append(f"buffer_load_dwordx4 {vr(XT+8+4*c,4)}, v{vL16}, s[88:91], s57 offen offset:{1024*c} ;@w")
    wld += [f"buffer_load_dword v{XT+16}, off, s[60:63], s57 offset:2048 ;@w", f"buffer_load_dword v{XT+17}, off, s[88:91], s57 offset:2048 ;@w"]
    sd_ = []
    if opt("YWL", 0) == 0: sd_ += wld
    sd_.append("WAITV xb")
    F_ = Fv
    if opt("YWL", 0) == 1: sd_ += wld
    for i in range(16): sd_ += [f"v_lshlrev_b32 v{F_+2*i}, 16, v{RX+i}", f"v_and_b32 v{F_+2*i+1}, 0xffff0000, v{RX+i}"]
    Q = ACC
    for r in range(2):
        for i in range(4): sd_.append(f"v_pk_add_f32 {vr(Q+8*r+2*i,2)}, {vr(F_+16*r+4*i,2)}, {vr(F_+16*r+4*i+2,2)}")
    for r in range(2):
        for i in range(2): sd_.append(f"v_pk_add_f32 {vr(Q+8*r+4*i,2)}, {vr(Q+8*r+4*i,2)}, {vr(Q+8*r+4*i+2,2)}")
    for r in range(2): sd_.append(f"v_pk_add_f32 {vr(Q+8*r,2)}, {vr(Q+8*r,2)}, {vr(Q+8*r+4,2)}")
    for r in range(2): sd_ += [f"v_add_f32 v{T+2*r}, v{Q+8*r}, v{Q+8*r+1}", f"v_sub_f32 v{T+2*r+1}, v{Q+8*r}, v{Q+8*r+1}"]
    sd_ += L(f"""
    v_permlane16_swap_b32 v{T}, v{T+1}
    v_permlane16_swap_b32 v{T+2}, v{T+3}
    v_add_f32 v{T}, v{T}, v{T+1}
    v_add_f32 v{T+2}, v{T+2}, v{T+3}
    v_permlane32_swap_b32 v{T}, v{T+2}
    v_add_f32 v{T}, v{T}, v{T+2}
    """)
    sd_ += ror_reduce(T)
    sd_ += L(f"v_mul_f32 v{T+1}, {fhex(1/1024)}, v{T}\nv_mov_b32 v{T+2}, v{T+1}")
    sd_ += rbf(T + 2)
    sd_ += L(f"""
    v_sub_f32 v{T+3}, v{T+1}, v{T+2}
    v_readlane_b32 s96, v{T+2}, 0
    v_readlane_b32 s98, v{T+2}, 32
    v_readlane_b32 s92, v{T}, 16
    v_readlane_b32 s93, v{T}, 48
    """)
    for r in range(2):
        for i in range(8):
            sd_.append(f"v_pk_add_f32 {vr(F_+16*r+2*i,2)}, {vr(F_+16*r+2*i,2)}, s[{96+2*r}:{97+2*r}] op_sel_hi:[1,0] neg_lo:[0,1] neg_hi:[0,1]")
    for i in range(4):
        for r in range(2):
            for c in range(2):
                s_ = vr(F_ + 16 * r + 4 * i + 2 * c, 2); d = vr(Q + 4 * r + 2 * c, 2)
                sd_.append(f"v_pk_mul_f32 {d}, {s_}, {s_}" if i == 0 else f"v_pk_fma_f32 {d}, {s_}, {s_}, {d}")
    for r in range(2): sd_.append(f"v_pk_add_f32 {vr(Q+4*r,2)}, {vr(Q+4*r,2)}, {vr(Q+4*r+2,2)}")
    for r in range(2): sd_.append(f"v_add_f32 v{T+4+r}, v{Q+4*r}, v{Q+4*r+1}")
    sd_ += L(f"""
    v_permlane32_swap_b32 v{T+4}, v{T+5}
    v_add_f32 v{T+4}, v{T+4}, v{T+5}
    v_mov_b32 v{T+5}, v{T+4}
    v_permlane16_swap_b32 v{T+4}, v{T+5}
    v_add_f32 v{T+4}, v{T+4}, v{T+5}
    """)
    sd_ += ror_reduce(T + 4)
    sd_ += L(f"""
    v_mul_f32 v{T+4}, {fhex(1/1024)}, v{T+4}
    v_fma_f32 v{T+4}, -v{T+3}, v{T+3}, v{T+4}
    v_max_f32 v{T+4}, 0, v{T+4}
    """)
    sd_ += rbf(T + 4) + [f"v_add_f32 v{T+4}, {fhex(1e-5)}, v{T+4}"] + rbf(T + 4) + [f"v_sqrt_f32 v{T+4}, v{T+4}"] + rbf(T + 4)
    sd_ += L(f"""
    v_cvt_pk_bf16_f32 v{T+5}, -v{T+2}, v{T+4}
    v_rcp_f32 v{T+4}, v{T+4}
    v_lshlrev_b32 v{T+6}, 12, v{vH}
    s_lshl_b32 s50, s37, 2
    s_add_u32 s101, s50, {ST_OFF}
    v_readlane_b32 s96, v{T+4}, 0
    v_readlane_b32 s98, v{T+4}, 32
    """)
    sd_.append(L(f"s_mov_b32 exec_lo, 1\ns_mov_b32 exec_hi, 1\nbuffer_store_dword v{T+5}, v{T+6}, {WS}, s101 offen {SC} ;@pub\ns_mov_b64 exec, -1"))
    SK = a.label("sk")
    sd_.append(L(f"""
    s_cmp_lg_u32 s3, 0
    s_cbranch_scc1 {SK}
    s_and_b32 s50, s2, 63
    s_lshl_b32 s50, s50, 2
    s_mov_b64 exec, 1
    v_mov_b32 v{T+7}, 1
    buffer_atomic_add v{T+7}, off, s[28:31], s50 {SC} ;@cond
    s_mov_b64 exec, -1
    {SK}:
    """))
    AC = ACC
    for i in range(8): sd_.append(f"v_pk_mul_f32 {vr(F_+2*i,2)}, {vr(F_+2*i,2)}, s[96:97] op_sel_hi:[1,0]")
    for i in range(8):
        sd_.append(f"v_pk_fma_f32 {vr(AC+2*i,2)}, {vr(F_+16+2*i,2)}, s[98:99], {vr(F_+2*i,2)} op_sel_hi:[1,0,1]")
        sd_.append(f"v_pk_fma_f32 {vr(AC+16+2*i,2)}, {vr(F_+16+2*i,2)}, s[98:99], {vr(F_+2*i,2)} op_sel_hi:[1,0,1] neg_lo:[1,0,0] neg_hi:[1,0,0]")
    CK = opt("YCK", 1)
    sd_.append(M("by", CK - 1))
    for i in range(16): sd_.append(f"v_cvt_pk_bf16_f32 v{AC+32+i}, v{AC+2*i}, v{AC+2*i+1}")
    for i in range(4): sd_.append(f"ds_write_b128 v{T+11}, {vr(AC+32+4*i,4)} offset:{1024*i}")
    NY = T + 9
    sd_ += L(f"""
    v_mov_b32 v{T}, s96
    v_mov_b32 v{T+1}, s98
    v_mul_f32 v{T}, s92, v{T}
    v_mul_f32 v{T+1}, s93, v{T+1}
    v_cos_f32 v{T+2}, v{ph}
    v_sin_f32 v{T+3}, v{ph}
    v_add_f32 v{T+4}, v{T}, v{T+1}
    v_sub_f32 v{T+5}, v{T}, v{T+1}
    v_mul_f32 v{T+4}, 0.5, v{T+4}
    v_mul_f32 v{T+5}, 0.5, v{T+5}
    v_mul_f32 v{T+2}, v{T+2}, v{T+5}
    v_mul_f32 v{T+3}, v{T+3}, v{T+5}
    v_cvt_pk_bf16_f32 v{NY}, v{T+4}, 0
    v_cvt_pk_bf16_f32 v{NY+1}, v{T+2}, -v{T+3}
    s_waitcnt lgkmcnt(0)
    """)
    A1 = F_
    for r in range(2):
        for b in range(2):
            for e in range(2): sd_.append(f"ds_read_b64_tr_b16 {vr(A1+8*r+4*b+2*e,2)}, v{vT} offset:{2048*r+1024*b+256*e}")
    if opt("YWL", 0) == 2: sd_ += wld
    sd_ += flagaddr(46, 47, 56)
    sd_.append(L(f"s_mov_b64 exec, 1\nv_mov_b32 v{T}, 0\nbuffer_store_dword v{T}, off, {WS}, s46 {SC} ;@pub\nbuffer_store_dword v{T}, off, {WS}, s56 {SC} ;@pub\ns_mov_b64 exec, -1"))
    sd_.append("s_waitcnt lgkmcnt(0)")
    for r in range(2):
        for b in range(2):
            sd_.append(mfma32(ACC + 32 * r, A1 + 8 * r + 4 * b, C1c + 4 * b, "0" if b == 0 else None))
            sd_.append(mfma32(ACC + 32 * r + 16, A1 + 8 * r + 4 * b, C1s + 4 * b, "0" if b == 0 else None))
    wp = L(f"s_mov_b32 s52, 0x05040100\ns_mov_b32 s53, 0x07060302\nv_xor_b32 v{T+1}, 64, v{T+8}\nWAITV w")
    for i in range(9):
        r, m, d = (XT + i, XT + 8 + i, X + 2 * i) if i < 8 else (XT + 16, XT + 17, XT + 18)
        wp += [f"v_perm_b32 v{d}, v{m}, v{r}, s52", f"v_perm_b32 v{d+1}, v{m}, v{r}, s53"]
    for c in range(2):
        for x in range(2): wp.append(f"ds_write_b128 v{T+1 if c else T+8}, {vr(X+8*c+4*x,4)} offset:{2048*c+16*x}")
    wp.append(L(f"s_mov_b64 exec, 1\nds_write_b64 v{T+8}, {vr(XT+18,2)} offset:4160\ns_mov_b64 exec, -1"))
    wp.append("s_waitcnt lgkmcnt(0)")
    PV = F_
    def bst2(r):
        D = X if r == 0 else C1c
        return cmul(ACC + 32 * r, ACC + 32 * r + 16, TC, TS, True, T, D, False) + \
               [mfma32(ACC + 32 * r, (C2c if r else C2a) + 4 * b, D + 4 * b, "0" if b == 0 else None) for b in range(4)]
    if opt("YWP", 1): sd_ += bst2(1)
    sd_ += wp
    sd_.append(M("sync"))
    sd_ += plane_rd(XT, [vF, vQ], 2)
    if not opt("YWP", 1): sd_ += bst2(1)
    b0_ = bst2(0)
    sd_ += b0_[:8] + plane_st(XT, vK, WT_OFF, "pub")
    k_ = M("mark"); sd_.append(k_)
    sd_ += b0_[8:]
    for r in (1, 0):
        P = ACC + 32 * r
        for b in range(4):
            for t in range(2): sd_.append(f"v_cvt_pk_bf16_f32 v{PV+4*b+t+2*r}, v{P+4*b+2*t}, v{P+4*b+2*t+1}")
    sd_.append(L(f"s_mov_b64 exec, 1\nv_mov_b32 v{PV}, v{NY}\nv_mov_b32 v{PV+2}, v{NY+1}\ns_mov_b64 exec, -1"))
    sd_.append(M("after", k_))
    for b in range(4): sd_.append(f"ds_write_b128 v{T+11}, {vr(PV+4*b,4)} offset:{1024*b}")
    sd_.append("s_waitcnt lgkmcnt(0)")
    sd_.append(M("sync"))
    sd_ += plane_rd(XT, [vP]) + plane_st(XT, vK, P_OFF, "pub")
    FR, FI = C1c, C2a
    vG = T + 8
    sd_.append(f"v_add_u32 v{T}, {TFR}, v{vL16}")
    for b in range(8): sd_.append(f"ds_read_b128 {vr(FR+4*b,4)}, v{T} offset:{1024*b}")
    sd_ += w2addr(VW2, 0, T) + g2bases()
    sd_ += L(f"""
    v_lshrrev_b32 v{vQ}, 2, v0
    v_mul_u32_u24 v{vQ}, {PITCH}, v{vQ}
    v_and_b32 v{T}, 3, v0
    v_lshl_add_u32 v{vQ}, v{T}, 4, v{vQ}
    v_bfe_u32 v{vG}, v0, 2, 2
    v_xor_b32 v{vG}, s3, v{vG}
    v_lshlrev_b32 v{vG}, 4, v{vG}
    v_lshl_add_u32 v{vG}, v0, 6, v{vG}
    v_add_u32 v{vG}, {S}, v{vG}
    v_lshlrev_b32 v{vT}, 2, v0
    """)
    ldS = f"buffer_load_dword v{vF}, v{vT}, s[28:31], 0 offen {SC}"
    ldP = f"buffer_load_dword v{vF}, v{vT}, {WS}, s56 offen {SC}"
    sd_ += cfpoll(56)
    sd_.append(M("sync", opt("YW", 1)))
    sd_.append(M("at", CK + 4))
    sd_.append(ldS + " ;@p0")
    sd_.append(tr("y", "w0") + ["WAITV pub cs"] + tr("y", "pub"))
    sd_.append(poll(ldS, f"v_cmp_gt_u32 vcc, 4, v{vF}", "p0") + tr("y", "p0"))
    sd_.append(M("sync"))
    sd_.append(L(f"s_mov_b64 exec, 1\nv_mov_b32 v{T}, 1\nbuffer_store_dword v{T}, off, {WS}, s47 {SC}\ns_mov_b64 exec, -1"))
    sd_ += L(f"""
    v_lshrrev_b32 v{T}, 3, v{vK}
    s_mul_i32 s50, s36, 448
    buffer_load_ushort v{XT+16}, v{T}, s[20:23], s50 offen ;@b1
    v_lshrrev_b32 v{vE}, 1, v{vK}
    v_add_u32 v{vE}, {EPA}, v{vE}
    """)
    sd_.append(M("sync", opt("YP", 1)))
    sd_.append(ldP + " ;@pp")
    if opt("YPS", 0): sd_.append(M("sync"))
    sd_.append(tr("y", "w1") + poll(ldP, f"v_cmp_gt_u32 vcc, 1, v{vF}", "pp") + tr("y", "pp"))
    g_ = gather(vQ, P_OFF, S, "pd")
    sd_ += g_[:3]
    sd_.append(M("sync"))
    sd_ += g_[3:]
    sd_.append(L(f"""
    s_and_b32 s50, s3, 1
    s_lshl_b32 s50, s50, 8
    s_add_u32 m0, s50, {EPS}
    s_lshl_b32 s51, s32, 9
    s_add_u32 s50, s50, s51
    s_add_u32 s50, s50, {ST_OFF}
    buffer_load_dword v{vT}, {WS}, s50 offen {SC} lds ;@pd
    s_lshl_b32 s50, s36, 12
    s_lshl_b32 s51, s3, 8
    s_add_u32 s50, s50, s51
    s_add_u32 s50, s50, {CS_OFF}
    """))
    sd_ += [f"buffer_load_dword v{XT+n}, v{vT}, {WS}, s50 offen offset:{1024*n} {SC} ;@pd" for n in range(4)]
    sd_.append(M("sync"))
    sd_.append(M("tail"))
    sd_.append("WAITV pd")
    sd_.append(M("sync"))
    P = X; W = C2c; WRr = Fv; WI = Fv + 16; A0 = ACC; A1 = ACC + 16; B0 = ACC + 32; B1 = ACC + 48
    for b in range(4): sd_.append(f"ds_read_b128 {vr(P+4*b,4)}, v{vG} offset:{4096*b}")
    sd_ += L(f"""
    v_add_f32 v{XT}, v{XT}, v{XT+1}
    v_add_f32 v{XT+2}, v{XT+2}, v{XT+3}
    s_mov_b32 s101, 0x07060302
    v_add_f32 v{XT}, v{XT}, v{XT+2}
    v_and_b32 v{XT+1}, 0xffff0000, v{XT}
    v_sub_f32 v{XT+1}, v{XT}, v{XT+1}
    v_and_b32 v{XT+2}, 0xffff0000, v{XT+1}
    v_perm_b32 v{XT+4}, v{XT+1}, v{XT}, s101
    v_sub_f32 v{XT+2}, v{XT+1}, v{XT+2}
    v_alignbit_b32 v{XT+5}, v{XT+16}, v{XT+2}, 16
    ds_write_b64 v{vE}, {vr(XT+4,2)}
    s_waitcnt lgkmcnt(0)
    """)
    sd_.append(M("by", 15))
    k_ = M("mark"); sd_.append(k_)
    def stage(D0, D1, dat, data_is_A):
        o = []
        for b in range(4):
            for D, Fc in ((D0, FR), (D1, FI)):
                x, y = (dat + 4 * b, Fc + 4 * b) if data_is_A else (Fc + 4 * b, dat + 4 * b)
                o.append(mfma32(D, x, y, "0" if b == 0 else None))
        return o
    sd_.append(M("after", k_))
    g_ = gather(vQ, WT_OFF, S, "wd")
    sd_ += g_[:3]
    if opt("YWS", 1): sd_.append(M("sync"))
    sd_ += g_[3:]
    sd_.append(M("sync"))
    sd_.append(M("tail"))
    sd_.append("WAITV wd")
    sd_.append(M("sync"))
    for b in range(4): sd_.append(f"ds_read_b128 {vr(W+4*b,4)}, v{vG} offset:{4096*b}")
    sd_.append("s_waitcnt lgkmcnt(0)")
    k_ = M("mark"); sd_.append(k_)
    for i in range(16): sd_ += [f"v_lshlrev_b32 v{WRr+i}, 16, v{W+i}", f"v_and_b32 v{WI+i}, 0xffff0000, v{W+i}"]
    sd_.append(M("by", 15))
    c_ = [stage(A0, A1, P, True), cmul(A0, A1, TC, TS, True, T, P, False), stage(B0, B1, P, False), cmul(B0, B1, WRr, WI, False, T, W, True),
          stage(A1, A0, W, True), cmul(A0, A1, TC, TS, False, T, P, True), stage(B1, B0, P, False),
          [f"v_cvt_pk_bf16_f32 v{W+i}, v{B1+i}, v{B0+i}" for i in range(16)]]
    vL4 = 11
    ldH = f"buffer_load_dword v{vF}, v{vL4}, {WS}, s97 offen {SC}"
    YC = opt("YC", 0); YH = opt("YH", 7)
    for j in range(9):
        if j == YC: sd_.append(M("at", 16))
        if j == YH - opt("YHD", 1): sd_.append(M("at", 16)); sd_.append(ldH + " ;@p1")
        if j == YH:
            sd_.append(tr("y", "pre_p1") + poll(ldH, f"v_cmp_gt_u32 vcc, 1, v{vF}", "p1") + tr("y", "p1"))
            sd_ += [[l.replace(";@g3", ";@h3") for l in g] for g in g2issue(3, VW2, vL16, doW=False)]
        if j < 8: sd_ += c_[j]
        if j == 7:
            sd_.append(M("after", k_))
            for b in range(4): sd_.append(f"ds_write_b128 v{T+11}, {vr(W+4*b,4)} offset:{1024*b}")
    CA = Fv + 16; CC = Fv + 24; ON = Fv + 28
    fx0 = {k: [] for k in range(-1, 19)}; fx1 = {k: [] for k in range(-1, 19)}
    for k in range(CK, CK + 4):
        d = 16384 + (k % 3) * STG if k == CK else ((k % 3) - ((k - 1) % 3)) * STG
        fx0[k] = [[f"v_add_u32 v{vE}, {d & 0xffffffff}, v{vE}"]] + \
                 [[f"ds_read_b64_tr_b16 {vr(CA+4*sub+2*e,2)}, v{vE} offset:{14336*sub+1792*e}"] for sub in range(2) for e in range(2)]
        if k == CK: fx0[k] += [[f"v_mov_b32 v{ON+i}, 0x3f803f80"] for i in range(4)]
        fx1[k] = [["s_waitcnt lgkmcnt(0)"]] + [[mfma16(CC, ON, CA + 4 * sub, "0" if (k == CK and sub == 0) else None)] for sub in range(2)]
    fx0[CK + 4] = [L(f"v_lshlrev_b32 v{CC+1}, 2, v0\ns_mov_b64 exec, 0xffff\nbuffer_store_dword v{CC}, v{CC+1}, {WS}, s100 offen {SC} ;@cs\ns_mov_b64 exec, -1")]
    fx1[14] = [L("s_lshl_b32 s39, s3, 4\ns_lshl_b64 exec, 0xffff, s39") +
               [f"ds_write_b128 v{vL16}, {vr(TC+4*b,4)} offset:{TD+1024*b}" for b in range(8)] + ["s_mov_b64 exec, -1"]]
    EK = opt("YEK", 10); EXV = XT + 8
    fx0[EK] += [[f"v_mov_b32 v{EXV+i}, -1"] for i in range(4)] + [L(f"s_lshl_b32 s57, s2, 14\ns_add_u32 s57, s57, s94\ns_add_u32 s57, s57, {EX_OFF}")]
    for k in range(4): fx1[EK + k // opt("YEP", 1)].append([f"buffer_store_dwordx4 {vr(EXV,4)}, v{vL16}, {WS}, s57 offen offset:{1024*k} {SC}"])
    PFS = opt("PFS", 7)
    if PFS:
        fx0[opt("PFK", 16)] += [L(f"""
        v_lshlrev_b32 v{XT+20}, {PFS}, v0
        s_lshl_b32 s39, s2, 2
        s_add_u32 s39, s39, s3
        s_mul_i32 s39, s39, 7168
        buffer_load_dword v{XT+21}, v{XT+20}, {W2S}, s39 offen
        """) + ([f"buffer_load_dword v{XT+22}, v{XT+20}, {W2S}, s39 offen offset:3584"] if PFS == 6 else [])]
    vA = [2, 3, 4, 5]; vBa, vBb, vO, vX0, vX1 = 6, 7, 8, 9, 10
    g2a = L(f"""
    s_and_b32 s43, s3, 1
    s_lshr_b32 s44, s3, 1
    v_lshrrev_b32 v6, 2, v0
    v_and_b32 v7, 7, v6
    v_and_b32 v8, 3, v0
    v_lshlrev_b32 v8, 3, v8
    v_lshl_add_u32 v8, v6, 8, v8
    v_add_u32 v8, {WR_}, v8
    s_lshl_b32 s40, s43, 2
    v_xor_b32 v7, s40, v7
    """)
    for t in range(4): g2a += [f"v_xor_b32 v9, {t}, v7", f"v_lshl_add_u32 v{vA[t]}, v9, 5, v8"]
    g2a += L(f"""
    s_lshl_b32 s40, s44, 12
    s_lshl_b32 s41, s34, 11
    s_add_u32 s42, s40, s41
    v_add_u32 v{vBa}, s42, v{vL16}
    s_xor_b32 s42, s42, 2048
    v_add_u32 v{vBb}, s42, v{vL16}
    v_and_b32 v11, 15, v0
    v_bfe_u32 v12, v0, 4, 1
    v_lshlrev_b32 v{vO}, 11, v11
    v_lshl_add_u32 v{vO}, v12, 5, v{vO}
    v_lshl_add_u32 v{vO}, v{vH}, 4, v{vO}
    v_lshrrev_b32 v10, 2, v11
    v_xor_b32 v10, v10, v{vH}
    v_lshlrev_b32 v{vX0}, 6, v11
    v_lshl_add_u32 v{vX0}, v10, 4, v{vX0}
    v_lshl_add_u32 v{vX0}, v12, 3, v{vX0}
    s_add_u32 s40, s94, {S}
    v_add_u32 v{vX0}, s40, v{vX0}
    v_xor_b32 v{vX1}, 32, v{vX0}
    v_lshlrev_b32 v{vL4}, 2, v1
    s_xor_b32 s41, s57, 16384
    s_lshl_b32 s42, s44, 1
    s_add_u32 s42, s42, s34
    s_lshl_b32 s40, s32, 2
    s_add_u32 s42, s42, s40
    s_lshl_b32 s42, s42, 16
    s_lshl_b32 s40, s33, 8
    s_add_u32 s42, s42, s40
    s_lshl_b32 s40, s43, 7
    s_add_u32 s42, s42, s40
    s_mov_b32 s40, s57
    s_mov_b32 s46, 6
    """)
    fx1[opt("YG2", 15)] += [[l] for l in g2a]
    YB = opt("YB", 400); YB0 = opt("YB0", 1000); YB16 = opt("YB16", 2000)
    fc = lambda k: sum(cost(l) for g in fx0[k] + fx1[k] for l in g)
    sl = split(sd_, -1, 16, lambda k: YB0 if k < 0 else YB - fc(k), lambda k, g: UN(k, g) if 0 <= k <= 15 or (k == 16 and opt("UNPKC")) else g)
    if opt("SHOW"): print("Y slices", {k: fc(k) + sum(cost(l) for g in v if not isinstance(g, M) for l in g) for k, v in sl.items()})
    for k in range(-1, 17):
        if 0 <= k <= 13: main = [] if SELF else g1issue(k + 2)
        elif k == 14: main = g2issue(0, VW2, None, doH=False)
        elif k == 15: main = sum([g2issue(i, VW2, None, doH=False) for i in (1, 2, 3)], [])
        else: main = []
        its = fx0[k] + sl[k] + fx1[k]
        if 0 <= k <= 13: its = [g if isinstance(g, M) else [l for l in g if not killed(l)] for g in its]
        w_ = weave(main, its, opt("YFR", 85) / 100)
        a.ext(mprio(w_) if 0 <= k <= 15 else w_)
        a.ext(tr("y", f"A{k}"))
        if 1 <= k < 15 and not SELF: a(f"WAITV s{k+1}")
        if k == 16: a(f"WAITV g3\ns_setprio {opt('YP2', 2)}")
        if k in (-1, 16): a("s_waitcnt lgkmcnt(0)")
        a.ext(tr("y", f"B{k}"))
        a("s_barrier")
        a.ext(tr("y", f"b{k+1}"))
    A2 = 64; F2 = [128, 160]
    ac2 = lambda t, u: A2 + 4 * (4 * u + t)
    def rd2(f, slot, sub):
        rdA = lambda t: [f"ds_read_b64_tr_b16 {vr(f+4*t,2)}, v{vA[t]} offset:{16384*slot+8192*sub}",
                         f"ds_read_b64_tr_b16 {vr(f+4*t+2,2)}, v{vA[t]} offset:{16384*slot+8192*sub+4096}"]
        rdB = lambda u: f"ds_read_b128 {vr(f+16+4*u,4)}, v{vBa if u < 2 else vBb} offset:{16384*slot+8192*sub+1024*(u&1)}"
        o = rdA(0) + [rdB(u) for u in range(4)]
        for t in range(1, 4): o += rdA(t)
        return o
    mf2 = lambda f, z=None: [mfma16(ac2(t, u), f + 4 * t, f + 16 + 4 * u, z) for t, u in snake(4, 4)]
    a.ext(rd2(F2[0], 0, 0))
    a("s_waitcnt lgkmcnt(0)")
    a.ext(interleave(mf2(F2[0], "0"), rd2(F2[1], 0, 1)))
    def body(i, extra=[], wait="s_waitcnt lgkmcnt(0)", first=[], trn=False):
        a(wait)
        if trn: a.ext(tr("y", f"B{i+17}"))
        a("s_barrier")
        if trn: a.ext(tr("y", f"d{i+1}"))
        a.ext(first)
        a.ext(interleave(mf2(F2[1]), rd2(F2[0], (i + 1) % 4, 0)))
        a("s_waitcnt lgkmcnt(0)")
        a.ext(interleave(mf2(F2[0]), rd2(F2[1], (i + 1) % 4, 1) + extra))
    body(0); body(1); body(2, wait="s_waitcnt vmcnt(0) lgkmcnt(0)", trn=True)
    LP = a.label("g2loop")
    a(f"{LP}:")
    for i in range(3, 7): body(i, ["s_sub_u32 s46, s46, 1", "s_cmp_lg_u32 s46, 0"] if i == 6 else [])
    a(f"s_cbranch_scc1 {LP}")
    a("s_waitcnt lgkmcnt(0)\nVMRESET")
    a.ext([mfma16(ac2(t, u), F2[1] + 4 * t, F2[1] + 16 + 4 * u) for u in (2, 3, 0, 1) for t in range(4)])
    a.ext(tr("y", "G2end"))
    PKx = 128; BV = 144; EXR = 192; TU = 208
    for i in range(16): a(f"v_cvt_pk_bf16_f32 v{PKx+i}, v{A2+32+2*i}, v{A2+33+2*i}")
    for k in range(4): a(f"buffer_store_dwordx4 {vr(PKx+4*k,4)}, v{vL16}, {WS}, s41 offen offset:{1024*k} {SC}")
    ldE = [f"buffer_load_dwordx4 {vr(EXR+4*k,4)}, v{vL16}, {WS}, s40 offen offset:{1024*k} {SC}" for k in range(4)]
    a.ext(ldE)
    a.ext(tr("y", "pre_e")); a("s_barrier"); a.ext(tr("y", "e"))
    for x in range(2):
        for t in range(4): a(f"ds_read_b64 {vr(BV+8*x+2*t,2)}, v{vX1 if t >> 1 else vX0} offset:{2048*x+1024*(t&1)}")
    def addp(src):
        for i in range(16):
            t = TU + 2 * (i & 3)
            a(f"v_lshlrev_b32 v{t}, 16, v{src+i}\nv_and_b32 v{t+1}, 0xffff0000, v{src+i}\nv_pk_add_f32 {vr(A2+2*i,2)}, {vr(A2+2*i,2)}, {vr(t,2)}")
    a("s_waitcnt lgkmcnt(0)")
    addp(BV)
    l1 = a.label("pe"); ok = a.label("oke")
    a(f"s_mov_b32 s54, {BOUND}\n{l1}:\ns_waitcnt vmcnt(0)")
    for i in range(5): a(f"v_max3_u32 v{TU+i}, v{EXR+3*i}, v{EXR+3*i+1}, v{EXR+3*i+2}")
    a(f"""
    v_max3_u32 v{TU}, v{TU}, v{TU+1}, v{TU+2}
    v_max3_u32 v{TU+3}, v{TU+3}, v{TU+4}, v{EXR+15}
    v_max_u32 v{TU}, v{TU}, v{TU+3}
    v_cmp_eq_u32 vcc, -1, v{TU}
    s_cbranch_vccz {ok}
    s_sub_u32 s54, s54, 1
    s_cbranch_scc1 {ok}
    """)
    a.ext(ldE)
    a(f"s_branch {l1}\n{ok}:"); a.ext(tr("y", "ex"))
    addp(EXR)
    for i in range(16): a(f"v_cvt_pk_bf16_f32 v{PKx+i}, v{A2+2*i}, v{A2+1+2*i}")
    for k in range(4): a(f"v_permlane16_swap_b32 v{PKx+4*k}, v{PKx+4*k+2}\nv_permlane16_swap_b32 v{PKx+4*k+1}, v{PKx+4*k+3}")
    for k in range(4):
        if k == 2: a("s_add_u32 s42, s42, 32768")
        a(f"buffer_store_dwordx4 {vr(PKx+4*k,4)}, v{vO}, s[24:27], s42 offen offset:{64*(k&1)} {os.environ.get('OSC', '')}")
    a.ext(tr("y", "st"))
    if opt("TRACE"): a("s_waitcnt vmcnt(0)")
    a.ext(tr("y", "done") + tr("y", "END"))
    a(f"{END}:\ns_endpgm")

def dotrace(lines):
    import json
    out = []; N = {"x": ["start"], "y": ["start"]}; R = {"x": 220, "y": 26}
    for l in lines:
        p = l.split()
        if p and p[0] == "TRACE":
            r = p[1]; i = len(N[r]) - 1
            out += ["    s_waitcnt lgkmcnt(0)", f"    v_writelane_b32 v{R[r] + i // 64}, s58, {i % 64}"]
            if p[2] == "END":
                out += [f"    {x}" for x in L(f"""
                s_lshl_b32 s55, s2, 3
                s_add_u32 s55, s55, s38
                s_lshl_b32 s55, s55, 9
                s_add_u32 s55, s55, {STAMP_OFF + MB}
                v_mbcnt_lo_u32_b32 v2, -1, 0
                v_mbcnt_hi_u32_b32 v2, -1, v2
                v_lshlrev_b32 v2, 2, v2
                buffer_store_dword v{R[r]}, v2, {WS}, s55 offen
                buffer_store_dword v{R[r]+1}, v2, {WS}, s55 offen offset:256
                """)]
            else:
                out.append(f"    s_mem{'real' if opt('TRACE') == 2 else ''}time s[58:59]"); N[r].append(p[2])
        else: out.append(l)
    json.dump(N, open("trace.json", "w"))
    return out

def build(aslist=False, extra=None):
    import hazard
    a = Asm()
    name = "f_kernel" if aslist else NAME + "_kernel"
    fused(a, name)
    Ls = [f"; @launch {'kernel='+name+' ' if aslist else ''}grid=(256,1,1) block=(512,1,1) lds=163840"]; D = [kernel_desc(name, 256)]
    if extra:
        l, d = extra(a); Ls.append(l); D.append(d)
    a.lines = dotrace(resolve(a.lines))
    a.lines, n = hazard.fix(a.lines, verbose=bool(opt('HZV')))
    print("hazard pads", n, "lines", len(a.lines))
    head = "; generated by dev/fused.py\n" + "\n".join(Ls) + "\n" + '.amdgcn_target "amdgcn-amd-amdhsa--gfx950"\n'
    return head + a.text() + "".join(D)

if __name__ == "__main__":
    ex = None
    if os.environ.get("PROBE"):
        import probe
        pr = [int(x) for x in os.environ["PROBE"].split(",")]
        ex = lambda a: probe.probe2(a, "pr_kernel", *pr)
    open(sys.argv[1], "w").write(build(aslist=bool(opt("LIST")) or ex is not None, extra=ex))
```

```python
import sys, os, re
from common import *
import common
from sched import *
from spec import nk, trig, sink_f32, sink_pack, cmul, rbf, ror_reduce

PITCH = 16640
H_OFF = 0; P_OFF = 16 * MB; WT_OFF = 21 * MB; Q_OFF = 26 * MB; BASE_OFF = 31 * MB; EX_OFF = 35 * MB
CS_OFF = 39 * MB; ST_OFF = CS_OFF + 0x40000; C2_OFF = ST_OFF + 0x2000; HF_OFF = ST_OFF + 0x20000; DF_OFF = HF_OFF + 0x20000; CF_OFF = DF_OFF + 0x20000
FS = 2 + opt("FS", 0); FH = 2 + opt("FH", 0); C3_OFF = CF_OFF + (1024 << FS)
HP = 57344
STG = 45056; S = 3 * STG; PL = 4352; TFR = S + 4 * PL; TFI = TFR + 4096; EPA = TFI + 4096; EPS = EPA + 2048
TB = 2 * STG
TD = 131072
PRG = S + 3 * PL + 4096
WG_ = 49152
WR_ = 65536
WS, XS, W2S = "s[4:7]", "s[8:11]", "s[12:15]"
SC = "sc1"
HSC = os.environ.get("HSC", "sc1").replace("none", "")
BOUND = opt('BOUND', 20000)
KILL = os.environ.get('KILL', '').split(',')
def killed(l):
    op = l.split()[0]
    c = 'mf' if op.startswith('v_mfma') else 'va' if op.startswith('v_') and not op.startswith('v_cmp') else 'ds' if op.startswith('ds_') else 'at' if 'atomic' in op else 'st' if 'store' in op else 'ld' if op.startswith('buffer') else ''
    return c and c in KILL
NS = [nk(r) for r in range(16)]

def mksrd(d, p, n):
    return L(f"s_mov_b32 s{d}, s{p}\ns_mov_b32 s{d+1}, s{p+1}\ns_mov_b32 s{d+2}, {n}\ns_mov_b32 s{d+3}, 0x20000")

def fused(a, name):
    for Q in range(112): assert (Q * 147) >> 10 == Q // 7
    UN = (lambda k, g: [y for x in g for y in unpk(x)]) if opt("UNPK", 1) else (lambda k, g: g)
    TR = {"x": [], "y": []}
    global TRN; TRN = TR
    def tr(role, nm):
        sel = os.environ.get("TRSEL")
        if sel and nm != "END" and nm not in sel.split(","): return []
        return [f"TRACE {role} {nm}"] if opt("TRACE") else []
    def poll(load, cmp, tag):
        l1 = a.label("pl"); ok = a.label("ok")
        return L(f"""
        WAITV {tag}
        s_mov_b32 s54, {BOUND}
        {l1}:
        {cmp}
        s_cbranch_vccz {ok}
        s_sub_u32 s54, s54, 1
        s_cbranch_scc1 {ok}
        {load} ;@cond
        s_waitcnt vmcnt(0)
        s_branch {l1}
        {ok}:
        """)
    def mprio(ls, base=0):
        if not opt("MP", 3): return ls
        o = []
        for i, l in enumerate(ls):
            m = l.startswith("v_mfma")
            if m and not (i and ls[i - 1].startswith("v_mfma")): o.append(f"s_setprio {opt('MP', 3)}")
            o.append(l)
            if m and not (i + 1 < len(ls) and ls[i + 1].startswith("v_mfma")): o.append(f"s_setprio {base}")
        return o
    def cfpoll(d):
        return L(f"""
        s_bfe_u32 s{d}, s35, 0x20004
        s_lshl_b32 s{d}, s{d}, 2
        s_add_u32 s{d}, s{d}, s3
        s_lshl_b32 s{d}, s{d}, {6+FS}
        s_add_u32 s{d}, s{d}, {CF_OFF}
        """)
    def plane_rd(D, adr, step=4):
        o = []; pp = PL // 256
        for n in range(4):
            for c in range(2):
                r, k = adr[min(n, len(adr) - 1)], step * n
                o.append(f"ds_read2st64_b32 {vr(D+4*n+2*c,2)}, v{r} offset0:{2*c*pp+k} offset1:{(2*c+1)*pp+k}")
        return o
    def plane_st(D, vo, off, tag, r=53):
        o = [L(f"s_mul_i32 s{r}, s35, {PITCH}\ns_add_u32 s{r}, s{r}, {off}\ns_waitcnt lgkmcnt(0)")]
        for n in range(4):
            o.append([f"buffer_store_dwordx4 {vr(D+4*n,4)}, v{vo}, {WS}, s{r} offen {SC} ;@{tag}"] + ([f"s_add_u32 s{r}, s{r}, 4096"] if n < 3 else []))
        return o
    def gather(vq, off, lds, tag):
        o = [L(f"""
        s_mul_i32 s55, s3, {64*PITCH}
        s_lshl_b32 s52, s35, 6
        s_add_u32 s55, s55, s52
        s_add_u32 s55, s55, {off}
        """)]
        for n in range(4):
            o.append([f"s_add_u32 m0, s94, {lds+1024*n}"] + ([f"s_add_u32 s55, s55, {16*PITCH}"] if n else []) +
                     [f"buffer_load_dwordx4 v{vq}, {WS}, s55 offen {SC} lds ;@{tag}"])
        return o
    def w2addr(VW2, ln, t):
        o = L(f"""
        v_lshrrev_b32 v{t}, 4, v{ln}
        v_bfe_u32 v{t+1}, v{ln}, 1, 3
        v_and_b32 v{t+2}, 1, v{ln}
        v_lshlrev_b32 v{t+2}, 4, v{t+2}
        """)
        for n in range(4):
            o += L(f"""
            v_add_u32 v{VW2+n}, {4*n}, v{t}
            v_and_b32 v{t+3}, 7, v{VW2+n}
            v_xor_b32 v{t+3}, v{t+3}, v{t+1}
            v_lshl_add_u32 v{t+3}, v{t+3}, 5, v{t+2}
            v_lshl_add_u32 v{VW2+n}, v{VW2+n}, 11, v{t+3}
            """)
            if n: o.append(f"v_subrev_u32 v{VW2+n}, {1024*n}, v{VW2+n}")
        return o
    def g2bases():
        return L(f"""
        s_lshl_b32 s94, s3, 12
        s_lshl_b32 s50, s32, 1
        s_add_u32 s50, s50, s34
        s_mul_i32 s50, s50, {8*HP}
        s_add_u32 s48, s50, s94
        s_lshr_b32 s51, s3, 1
        s_and_b32 s52, s3, 1
        s_mul_i32 s92, s51, {HP}
        s_add_u32 s92, s92, s50
        s_lshl_b32 s53, s52, 12
        s_add_u32 s92, s92, s53
        s_add_u32 s92, s92, {49152}
        s_mul_i32 s50, s34, {1792*2048}
        s_lshl_b32 s53, s33, 8
        s_add_u32 s50, s50, s53
        s_lshl_b32 s49, s51, 18
        s_add_u32 s49, s49, s50
        s_lshl_b32 s53, s52, 15
        s_add_u32 s49, s49, s53
        s_mul_i32 s93, s51, {224*2048}
        s_add_u32 s93, s93, s50
        s_lshl_b32 s53, s52, 14
        s_add_u32 s93, s93, s53
        s_add_u32 s93, s93, {96*2048}
        """)
    def g2step(i):
        if i < 3: return (i, 0)
        if i < 24: return ((i - 3) // 7, (i - 3) % 7 + 1)
        return (3, i - 24)
    def g2issue(i, VW2, VH, doW=True, doH=True):
        tp, d = g2step(i); slot = i % 4
        if tp < 3:
            pre = L(f"""
            s_cmp_lt_u32 s33, {d}
            s_cselect_b32 s95, {d}, {d-1}
            """) if d and opt("ORD2", 1) else L(f"""
            s_add_u32 s95, s33, {d}
            s_and_b32 s95, s95, 7
            """)
            pre += L(f"""
            s_mul_i32 s96, s95, {8*HP}
            s_mul_i32 s95, s95, {HP}
            s_add_u32 s96, s96, s49
            s_add_u32 s95, s95, s48
            """)
            if tp: pre += L(f"s_add_u32 s96, s96, {65536*tp}\ns_add_u32 s95, s95, {16384*tp}")
        else:
            pre = [f"s_mov_b32 s95, {2*d}"] if opt("ORD2", 1) else L(f"""
            s_add_u32 s95, s33, {2*d}
            s_and_b32 s95, s95, 6
            """)
            pre += L(f"""
            s_mul_i32 s96, s95, {8*HP}
            s_mul_i32 s95, s95, {HP}
            s_add_u32 s96, s96, s93
            s_add_u32 s95, s95, s92
            """)
        G = []
        if doH:
            for n in range(4):
                g = [f"s_add_u32 m0, s94, {16384*slot}"] + (pre if n == 0 else [])
                G.append(g + [f"buffer_load_dwordx4 v{VH}, {WS}, s95 offen offset:{1024*n} {SC} lds ;@g{i}"])
            pre = []
        if doW:
            for n in range(4):
                g = [f"s_add_u32 m0, s94, {WR_+16384*slot}"] + (pre if n == 0 else [])
                if n == 2 and tp == 3: g.append("s_add_u32 s96, s96, 16384")
                G.append(g + [f"buffer_load_dwordx4 v{VW2+n}, {W2S}, s96 offen offset:{1024*n} lds ;@g{i}"])
        return G

    VX, VW = 2, 6
    def g1addr(T):
        ax = L(f"""
        v_lshrrev_b32 v{T+5}, 3, v0
        s_lshl_b32 s50, s3, 5
        v_add_u32 v{T+5}, s50, v{T+5}
        v_and_b32 v{T}, 7, v0
        """)
        for n in range(4):
            ax += L(f"""
            v_add_u32 v{T+1}, {8*n}, v{T+5}
            v_bfe_u32 v{T+2}, v{T+1}, 1, 3
            v_xor_b32 v{T+2}, v{T+2}, v{T}
            v_lshlrev_b32 v{T+2}, 4, v{T+2}
            v_lshl_add_u32 v{VX+n}, v{T+1}, 11, v{T+2}
            """)
            if n: ax.append(f"v_subrev_u32 v{VX+n}, {1024*n}, v{VX+n}")
        ax += L(f"v_lshrrev_b32 v{T+5}, 2, v0\nv_and_b32 v{T}, 3, v0\nv_lshlrev_b32 v{T}, 4, v{T}\ns_movk_i32 s51, {7168-448}")
        aw = []
        for n in range(7):
            aw.append(L(f"""
            v_add_u32 v{T+1}, {16*n}, v{T+5}
            v_mul_u32_u24 v{T+2}, 147, v{T+1}
            v_lshrrev_b32 v{T+2}, 10, v{T+2}
            v_and_b32 v{T+4}, 8, v{T+2}
            v_lshlrev_b32 v{T+4}, 2, v{T+4}
            v_xor_b32 v{T+4}, v{T+4}, v{T}
            v_mad_u32_u24 v{T+4}, v{T+2}, s51, v{T+4}
            v_lshl_add_u32 v{VW+n}, v{T+5}, 6, v{T+4}
            """) + ([f"v_add_u32 v{VW+n}, 4096, v{VW+n}"] if n >= 4 else []))
        return ax, aw
    nxt = L(f"""
    s_and_b32 s42, s42, 15
    s_lshl_b32 s43, s42, 7
    s_add_u32 s43, s43, s40
    s_mul_i32 s44, s42, {64*7168}
    s_add_u32 s44, s44, s41
    s_add_u32 s42, s42, 1
    """)
    def g1scal(first):
        return L(f"""
        s_lshl_b32 s40, s32, 18
        s_mul_i32 s41, s36, 448
        s_mul_i32 s45, s3, {16*7168}
        s_add_u32 s41, s41, s45
        s_and_b32 s42, s32, 12
        s_add_u32 s42, s42, {first}
        s_lshl_b32 s94, s3, 12
        s_mul_i32 s45, s3, 7168
        s_add_u32 s45, s45, 16384
        """) + nxt
    def g1issue(i):
        o = (i % 3) * STG; G = []
        for n in range(4):
            G.append([f"s_add_u32 m0, s94, {o}", f"buffer_load_dwordx4 v{VX+n}, {XS}, s43 offen offset:{1024*n} lds ;@s{i}"])
        for n in range(7):
            G.append([f"s_add_u32 m0, s45, {o + 4096*(n//4)}", f"buffer_load_dwordx4 v{VW+n}, s[16:19], s44 offen offset:{1024*(n%4)} lds ;@s{i}"])
        G[-1] += nxt
        return G
    def flagaddr(h, c, d, co):
        return L(f"""
        s_lshl_b32 s97, s32, 1
        s_add_u32 s97, s97, s34
        s_lshl_b32 s97, s97, {5+FH}
        s_add_u32 s97, s97, {HF_OFF}
        s_lshl_b32 s{h}, s33, 2
        s_add_u32 s{h}, s{h}, s3
        s_lshl_b32 s{h}, s{h}, {FH}
        s_add_u32 s{h}, s{h}, s97
        s_lshl_b32 s{c}, s3, 8
        s_add_u32 s{c}, s{c}, s35
        s_lshl_b32 s{c}, s{c}, {FS}
        s_add_u32 s{c}, s{c}, {co}
        s_lshl_b32 s{d}, s37, {FH}
        s_add_u32 s{d}, s{d}, {DF_OFF}
        """)

    kernel_begin(a, name)
    END = a.label("end"); YR = a.label("yrole")
    a(f"s_cmp_ge_u32 s2, 256\ns_cbranch_scc1 {END}")
    if opt("TRACE"): a(f"s_mem{'real' if opt('TRACE') == 2 else ''}time s[58:59]")
    a(f"""
    s_load_dwordx16 s[64:79], s[0:1], 0
    s_load_dwordx4 s[80:83], s[0:1], 64
    s_load_dwordx2 s[84:85], s[0:1], 80
    v_lshrrev_b32 v1, 6, v0
    s_and_b32 s34, s2, 1
    s_bfe_u32 s32, s2, 0x20001
    v_readfirstlane_b32 s38, v1
    s_lshl_b32 s32, s32, 2
    s_lshr_b32 s33, s2, 6
    s_add_u32 s32, s32, s33
    s_bfe_u32 s33, s2, 0x30003
    s_lshl_b32 s36, s34, 3
    s_add_u32 s36, s36, s33
    s_xor_b32 s35, s2, s33
    s_and_b32 s35, s35, 1
    s_mul_i32 s35, s35, 9
    s_xor_b32 s35, s35, s2
    s_and_b32 s3, s38, 3
    s_lshr_b32 s37, s35, 5
    s_lshl_b32 s37, s37, 2
    s_add_u32 s37, s37, s3
    s_lshl_b32 s37, s37, 5
    s_and_b32 s39, s35, 31
    s_add_u32 s37, s37, s39
    s_cmp_ge_u32 s38, 4
    s_cbranch_scc1 {YR}
    """)
    vL16, VW2, vPm, vF, vL4, vQ, vO, vC, ph, sg, vBO, vBG, one = 240, 241, 245, 246, 247, 248, 249, 250, 251, 252, 253, 254, 255
    F = [112, 156]
    vAe, vAo, vA6, vB0, vB1, vHW, vHO, vLn = 200, 201, 202, 203, 204, 205, 206, 223
    GO = 224; T0 = 40
    acc = lambda t, u: 4 * (4 * t + u)
    a("VMRESET")
    ax, aw = g1addr(28)
    a("v_and_b32 v0, 63, v0")
    l31, hh, kf, bs, TT_, Q0 = 60, 61, 62, 63, 64, 80
    tb = L(f"""
    v_and_b32 v{l31}, 31, v0
    v_lshrrev_b32 v{hh}, 5, v0
    s_lshl_b32 s52, s3, 3
    v_cvt_f32_u32 v{kf}, v{l31}
    v_lshl_add_u32 v{bs}, v{hh}, 2, s52
    v_cvt_f32_u32 v{bs}, v{bs}
    v_mul_f32 v{kf}, {fhex(1/32)}, v{kf}
    v_lshlrev_b32 v{vL16}, 4, v0
    v_mul_f32 v{bs}, v{bs}, v{kf}
    s_lshl_b32 s52, s3, 10
    s_add_u32 s53, s52, {TFR}
    s_add_u32 s52, s52, {TB}
    """)
    tb += trig(kf, bs, [0, 1, 2, 3], TT_, sink_pack([(Q0, "c", "s"), (Q0 + 4, "-s", "c")]))
    tb += L(f"""
    v_add_u32 v{Q0+20}, s53, v{vL16}
    v_add_u32 v{Q0+21}, s52, v{vL16}
    v_mul_f32 v{Q0+22}, {fhex(1/32)}, v{kf}
    v_mul_f32 v{Q0+23}, {fhex(1/32)}, v{bs}
    ds_write_b128 v{Q0+20}, {vr(Q0,4)}
    ds_write_b128 v{Q0+20}, {vr(Q0+4,4)} offset:4096
    """)
    tb += trig(Q0 + 22, Q0 + 23, [0, 1, 2, 3], TT_, sink_f32(Q0 + 8, Q0 + 12))
    tb += L(f"""
    s_lshr_b32 s52, s3, 1
    s_and_b32 s53, s3, 1
    s_lshl_b32 s54, s52, 2
    s_add_u32 s54, s54, s53
    s_lshl_b32 s54, s54, 2
    v_lshl_add_u32 v{bs}, v{hh}, 3, s54
    v_cvt_f32_u32 v{bs}, v{bs}
    s_lshl_b32 s52, s52, 7
    s_add_u32 s52, s52, s53
    s_lshl_b32 s52, s52, 3
    s_add_u32 s52, s52, {TB + 8192}
    v_mul_f32 v{bs}, v{bs}, v{kf}
    ds_write_b128 v{Q0+21}, {vr(Q0+8,4)}
    ds_write_b128 v{Q0+21}, {vr(Q0+12,4)} offset:4096
    v_add_u32 v{Q0+20}, s52, v{vL16}
    """)
    def s1(grp, T_):
        o = []
        for x in range(4): o += [f"v_cos_f32 v{T_+4+x}, v{T_+x}", f"v_sin_f32 v{T_+8+x}, v{T_+x}"]
        for x in (0, 2):
            o.append(f"v_cvt_pk_bf16_f32 v{Q0+16+x//2}, v{T_+4+x}, v{T_+5+x}")
            o.append(f"v_cvt_pk_bf16_f32 v{Q0+18+x//2}, -v{T_+8+x}, -v{T_+9+x}")
        return o
    tb += trig(kf, bs, [0, 1, 2, 3], TT_, s1)
    tb += L(f"ds_write_b64 v{Q0+20}, {vr(Q0+16,2)}\nds_write_b64 v{Q0+20}, {vr(Q0+18,2)} offset:2048")
    n0 = opt("XT0", 0)
    SELF = opt("SELF", 1)
    SM = {40: 60, 41: 61, 42: 62, 43: 63, 44: 86, 45: 87}
    def ren(ls):
        o = []
        for l in ls:
            l = re.sub(r"\bs(4[0-5])\b(?!.*;@\.)", lambda m: f"s{SM[int(m.group(1))]}", l)
            o.append(re.sub(r"\bv(\d+)\b", lambda m: f"v{int(m.group(1)) + 205}" if 2 <= int(m.group(1)) <= 12 else m.group(0), l))
        return o
    g1x = lambda i: [ren(g) for g in g1issue(i)]
    a.ext(ren(ax + g1scal(0) + sum(aw, [])) + tb[:n0])
    a("s_waitcnt lgkmcnt(0)")
    a.ext(tr("x", "karg"))
    a.ext(mksrd(8, 64, 4 * MB) + mksrd(16, 72, 1024 * 7168))
    nb = opt("XN0", 11); G01 = g1x(0) + g1x(1)
    a.ext(weave(G01[:nb], [[l] for l in tb[n0:]], opt("XFR0", 30) / 100))
    a.ext(tr("x", "iss1"))
    a("s_waitcnt lgkmcnt(0)\ns_barrier")
    a.ext(tr("x", "t"))
    mark0 = len(a.lines)
    a(f"""
    s_and_b32 s43, s3, 1
    s_lshr_b32 s44, s3, 1
    v_mov_b32 v{vLn}, v0
    v_lshrrev_b32 v{T0}, 4, v0
    v_bfe_u32 v{T0+1}, v0, 2, 2
    v_lshl_add_u32 v{T0+1}, v{T0}, 3, v{T0+1}
    v_mul_u32_u24 v{T0+1}, 448, v{T0+1}
    v_and_b32 v{T0+2}, 3, v0
    v_lshl_add_u32 v{T0+1}, v{T0+2}, 3, v{T0+1}
    v_add_u32 v{T0+1}, 16384, v{T0+1}
    v_and_b32 v{T0+2}, 1, v{T0}
    v_lshlrev_b32 v{T0+3}, 5, v{T0+2}
    s_lshl_b32 s51, s43, 8
    v_add_u32 v{T0+4}, s51, v{T0+1}
    v_add_u32 v{vAe}, v{T0+4}, v{T0+3}
    v_sub_u32 v{vAo}, v{T0+4}, v{T0+3}
    v_xor_b32 v{T0+2}, s43, v{T0+2}
    v_lshl_add_u32 v{vA6}, v{T0+2}, 5, v{T0+1}
    v_add_u32 v{vA6}, 192, v{vA6}
    v_and_b32 v{T0+2}, 15, v0
    v_bfe_u32 v{T0+3}, v0, 1, 3
    v_xor_b32 v{T0+3}, v{T0+3}, v{T0}
    v_lshlrev_b32 v{T0+3}, 4, v{T0+3}
    v_lshl_add_u32 v{vB0}, v{T0+2}, 7, v{T0+3}
    s_lshl_b32 s51, s44, 13
    v_add_u32 v{vB0}, s51, v{vB0}
    v_xor_b32 v{vB1}, 64, v{vB0}
    s_lshl_b32 s50, s43, 13
    s_lshl_b32 s51, s44, 12
    s_add_u32 s50, s50, s51
    v_add_u32 v{vHW}, s50, v{vL16}
    s_lshl_b32 s50, s43, 9
    s_add_u32 s50, s50, s51
    v_lshl_add_u32 v{vHO}, v{l31}, 4, s50
    v_lshl_add_u32 v{vHO}, v{hh}, 10, v{vHO}
    v_lshlrev_b32 v{vL4}, {FH}, v{l31}
    """)
    a.ext(mksrd(4, 84, 256 * MB) + mksrd(12, 76, 3584 * 2048) + mksrd(24, 78, 2048) + w2addr(VW2, vLn, T0) + g2bases())
    a.ext(flagaddr(40, 41, 42, C3_OFF))
    a(f"""
    s_lshl_b32 s45, s32, 4
    s_add_u32 s45, s45, s36
    s_mul_i32 s45, s45, {HP}
    v_lshlrev_b32 v{vBO}, 5, v{l31}
    v_lshl_add_u32 v{vBO}, v{hh}, 4, v{vBO}
    v_lshrrev_b32 v{vQ}, 2, v0
    v_lshlrev_b32 v{vBG}, 11, v{vQ}
    v_mul_u32_u24 v{vQ}, {PITCH}, v{vQ}
    v_and_b32 v{T0+4}, 3, v0
    v_lshl_add_u32 v{vQ}, v{T0+4}, 4, v{vQ}
    v_lshrrev_b32 v{T0+5}, 4, v0
    v_xor_b32 v{T0+4}, v{T0+4}, v{T0+5}
    v_lshl_add_u32 v{vBG}, v{T0+4}, 4, v{vBG}
    v_bfe_u32 v{vC}, v0, 2, 2
    v_xor_b32 v{vC}, s3, v{vC}
    v_lshlrev_b32 v{vC}, 4, v{vC}
    v_lshl_add_u32 v{vC}, v{l31}, 6, v{vC}
    v_lshl_add_u32 v{vC}, v{hh}, 12, v{vC}
    v_add_u32 v{vC}, {S}, v{vC}
    v_lshlrev_b32 v{sg}, 31, v0
    v_xor_b32 v{sg}, 1.0, v{sg}
    s_lshl_b32 s98, s37, 11
    s_add_u32 s99, s98, {2*MB}
    v_cmp_gt_u32 vcc, 32, v0
    v_and_b32 v{kf}, 19, v{l31}
    v_bfe_u32 v{bs}, v{l31}, 2, 1
    v_cndmask_b32 v{sg}, 0, v{sg}, vcc
    v_lshl_or_b32 v{kf}, v{bs}, 3, v{kf}
    v_bfe_u32 v{bs}, v{l31}, 3, 1
    v_lshl_or_b32 v{kf}, v{bs}, 2, v{kf}
    v_lshlrev_b32 v{vPm}, 4, v{kf}
    v_lshl_or_b32 v{vPm}, v{hh}, 9, v{vPm}
    v_cvt_f32_u32 v{kf}, v{kf}
    v_cvt_f32_u32 v{bs}, v{hh}
    v_cvt_f32_u32 v{ph}, s37
    v_mul_f32 v{kf}, {fhex(1/32)}, v{kf}
    v_mul_f32 v{bs}, 4.0, v{bs}
    v_mul_f32 v{ph}, {fhex(1/2048)}, v{ph}
    v_fma_f32 v{bs}, v{bs}, v{kf}, v{ph}
    s_bfe_u32 s100, s35, 0x20004
    s_lshl_b32 s100, s100, 2
    s_add_u32 s100, s100, s3
    s_lshl_b32 s100, s100, {6+FS}
    s_add_u32 s100, s100, {C3_OFF}
    """)
    a.ext(trig(kf, bs, NS[:8], TT_, sink_pack([(GO, "-s", "c"), (GO + 8, "c", "s")])))
    su = [l.strip() for l in a.lines[mark0:]]; del a.lines[mark0:]
    n1 = len(su) * opt("XS0", 100) // 100
    a.ext(su[:n1] + weave(G01[nb:], [[l] for l in su[n1:]], 1.0))
    def reads(f, sub):
        vb = vB1 if sub else vB0
        def rdA(t):
            base = vA6 if t == 6 else (vAo if t & 1 else vAe)
            imm = (0 if t == 6 else 32 * t) + sub * 14336
            return [f"ds_read_b64_tr_b16 {vr(f+4*t,2)}, v{base} offset:{imm}",
                    f"ds_read_b64_tr_b16 {vr(f+4*t+2,2)}, v{base} offset:{imm+1792}"]
        rdB = lambda u: f"ds_read_b128 {vr(f+28+4*u,4)}, v{vb} offset:{2048*u}"
        o = rdA(0) + [rdB(u) for u in range(4)]
        for t in range(1, 7): o += rdA(t)
        return o
    snake = lambda nt, nu: [(t, u if t % 2 == 0 else nu - 1 - u) for t in range(nt) for u in range(nu)]
    def mf(f, z=None):
        return [mfma16(acc(t, u), f + 4 * t, f + 28 + 4 * u, z) for t, u in snake(7, 4)]
    upd = [f"v_add_u32 v{r}, s46, v{r}" for r in (vAe, vAo, vA6, vB0, vB1)]
    adv = L(f"""
    s_add_u32 s50, s50, {STG}
    s_cmp_eq_u32 s50, {S}
    s_cselect_b32 s46, {(-(S-STG)) & 0xffffffff}, s51
    s_cselect_b32 s50, 0, s50
    """)
    LOOP = a.label("g1loop")
    a(f"s_mov_b32 s51, {STG}\ns_mov_b32 s50, {STG}\ns_mov_b32 s46, {STG}\ns_mov_b32 s47, 15\ns_setprio {opt('XP1', 2)}")
    a.ext(tr("x", "setup")); a("WAITV s0"); a.ext(tr("x", "pre_b0")); a("s_barrier"); a.ext(tr("x", "b0"))
    def put(ls, G, pos):
        o = []; n = 0; G = list(G); pos = list(pos)
        for l in ls:
            o.append(l)
            if l.startswith("v_mfma"):
                while G and pos[0] == n: o += G.pop(0); pos.pop(0)
                n += 1
        assert not G
        return o
    a.ext(reads(F[0], 0))
    if SELF:
        G = g1x(2); G = [g if n in (0, 4, 8) else g[1:] for n, g in enumerate(G)]
        a.ext(sum(G[:2], []))
        a("s_mov_b32 s88, 0\ns_mov_b32 s47, 13\ns_waitcnt lgkmcnt(0)")
        a.ext(put(interleave(mf(F[0], "0"), reads(F[1], 1) + upd), G[2:], range(1, 28, 3)))
        a("s_waitcnt vmcnt(11) lgkmcnt(0)")
        G[0] = ["s_add_u32 m0, s88, s94"] + G[0][1:]; G[4] = ["s_add_u32 m0, s88, s87"] + G[4][1:]; G[8] = ["s_add_u32 m0, m0, 4096"] + G[8][1:]
        G[10] = G[10] + ["s_mov_b32 s88, s91"]
        P0 = opt("DP0", 2); PS = opt("DPS", 5)
        for lp in range(2):
            LOOP = a.label("g1loop")
            bd = interleave(mf(F[1]), reads(F[0], 0))
            bd[1:1] = ["s_mov_b32 s91, s50"] + adv
            bd += ["s_waitcnt lgkmcnt(0)"] + interleave(mf(F[0]), reads(F[1], 1) + upd)
            if lp == 0:
                M0 = [[g[0]] for g in G if "m0" in g[0]]; Gd = [g[1:] if "m0" in g[0] else g for g in G]
                bd = put(bd, Gd, [P0 + PS * n for n in range(11)])
                bd = put(bd, M0, [P0 + PS * n - 1 for n in (0, 4, 8)])
            bd[-1:-1] = ["s_sub_u32 s47, s47, 1", "s_cmp_lg_u32 s47, 0"]
            a(f"{LOOP}:\ns_barrier"); a.ext(bd)
            a(f"s_waitcnt vmcnt({11 if lp == 0 else 0}) lgkmcnt(0)\ns_cbranch_scc1 {LOOP}")
            if lp == 0: a("s_mov_b32 s47, 2")
        a("s_barrier\nVMRESET")
    else:
        a("s_waitcnt lgkmcnt(0)")
        a.ext(interleave(mf(F[0], "0"), reads(F[1], 1) + upd))
        a(f"{LOOP}:\ns_waitcnt vmcnt(0) lgkmcnt(0)\ns_barrier")
        a.ext(interleave(mf(F[1]), reads(F[0], 0) + adv))
        a("s_waitcnt lgkmcnt(0)")
        a.ext(interleave(mf(F[0]), reads(F[1], 1) + upd + ["s_sub_u32 s47, s47, 1", "s_cmp_lg_u32 s47, 0"]))
        a(f"s_cbranch_scc1 {LOOP}\ns_waitcnt lgkmcnt(0)\ns_barrier\nVMRESET")
    a.ext(tr("x", "b16"))
    EA, STt, BOP, KA_, KB_, SD = 112, 126, 130, 138, 208, [216, 218, 146, 148]
    T0 = 150
    C0, C1 = -2.302208198, -0.1029432397
    prep = L(f"""
    v_and_b32 v{T0}, 15, v{vLn}
    s_lshl_b32 s50, s44, 8
    s_add_u32 s50, s50, {EPS}
    v_lshl_add_u32 v{T0+3}, v{T0}, 2, s50
    s_lshl_b32 s50, s43, 10
    s_add_u32 s50, s50, {EPA}
    v_lshl_add_u32 v{T0+1}, v{T0}, 3, s50
    s_lshl_b32 s50, s43, 7
    s_add_u32 s50, s50, {EPA+768}
    v_lshl_add_u32 v{T0+2}, v{T0}, 3, s50
    """)
    prep += [f"ds_read_b32 v{STt+u}, v{T0+3} offset:{64*u}" for u in range(4)]
    prep += [f"ds_read_b64 {vr(EA+2*t,2)}, v{T0+1} offset:{128*t}" for t in range(6)] + [f"ds_read_b64 {vr(EA+12,2)}, v{T0+2}"]
    prep += L("s_mov_b64 s[50:51], 0xffff\ns_mov_b32 s52, 0x01000100")
    pr2 = ["s_waitcnt lgkmcnt(7)"]
    for u in range(4): pr2 += [f"v_cndmask_b32 v{BOP+2*u+1}, 0, v{STt+u}, s[50:51]", f"v_and_b32 v{SD[u]}, 0xffff0000, v{STt+u}"]
    for u in range(4): pr2 += [f"v_perm_b32 v{BOP+2*u}, v{BOP+2*u+1}, v{BOP+2*u+1}, s52", f"v_rcp_f32 v{KA_+2*u}, v{SD[u]}"]
    for u in range(4): pr2 += [f"v_mul_f32 v{KB_+2*u}, {fhex(C0)}, v{KA_+2*u}", f"v_mul_f32 v{KA_+2*u}, v{KA_+2*u}, v{KA_+2*u}"]
    for u in range(4): pr2 += [f"v_mul_f32 v{KA_+2*u}, {fhex(C1/C0)}, v{KA_+2*u}", f"v_mov_b32 v{KB_+2*u+1}, v{KB_+2*u}"]
    for u in range(4): pr2 += [f"v_mul_f32 v{KA_+2*u}, v{KA_+2*u}, v{KB_+2*u}", f"v_mov_b32 v{SD[u]+1}, v{SD[u]}"]
    for u in range(4): pr2 += [f"v_mov_b32 v{KA_+2*u+1}, v{KA_+2*u}"]
    m_ = mf(F[1])
    a.ext(interleave(m_[:6], prep, per=4) + interleave(m_[6:], pr2, start=1, per=2))
    a("s_waitcnt lgkmcnt(0)")
    corr = [f"v_mfma_f32_16x16x16_bf16 {vr(acc(t,u),4)}, {vr(EA+2*t,2)}, {vr(BOP+2*u,2)}, {vr(acc(t,u),4)}"
            for t, u in [(0, 0), (1, 0), (0, 1), (1, 1), (0, 2), (1, 2), (0, 3), (1, 3)] + snake(7, 4)[8:]]
    nc = opt("XNC", 8)
    a.ext(corr[:nc])
    a.ext(tr("x", "corr"))
    def gelu(regs, tt, pk):
        o = []; T = [tt + 2 * i for i in range(len(regs))]
        Z = list(zip(regs, T))
        for (r, u), x in Z: o.append(f"v_pk_mul_f32 {vr(x,2)}, {vr(r,2)}, {vr(r,2)}")
        for (r, u), x in Z: o.append(f"v_pk_fma_f32 {vr(x,2)}, {vr(x,2)}, {vr(KA_+2*u,2)}, {vr(KB_+2*u,2)}")
        for (r, u), x in Z: o.append(f"v_pk_mul_f32 {vr(x,2)}, {vr(x,2)}, {vr(r,2)}")
        for (r, u), x in Z: o += [f"v_exp_f32 v{x}, v{x}", f"v_exp_f32 v{x+1}, v{x+1}"]
        for (r, u), x in Z: o.append(f"v_pk_fma_f32 {vr(x,2)}, {vr(x,2)}, {vr(SD[u],2)}, {vr(SD[u],2)}")
        for (r, u), x in Z: o += [f"v_rcp_f32 v{x}, v{x}", f"v_rcp_f32 v{x+1}, v{x+1}"]
        for (r, u), x in Z: o.append(f"v_pk_mul_f32 {vr(x,2)}, {vr(x,2)}, {vr(r,2)}")
        for i in range(8): o.append(f"v_cvt_pk_bf16_f32 v{pk+i}, v{tt+2*i}, v{tt+2*i+1}")
        return o
    def flag(s_, val):
        return L(f"s_mov_b64 exec, 1\nv_mov_b32 v{one}, {val}\nbuffer_store_dword v{one}, off, {WS}, s{s_} {HSC if s_ == 40 else SC}\ns_mov_b64 exec, -1")
    TT = [160, 176]; PK = [192, 150, 112, 120, 32, 40, 128]; idx = 0
    TC, TS, GE, C2, CH, T, NQ, ACC, BS, XX = 0, 16, 32, 48, 64, 80, 92, 96, 160, 136
    vF2 = 222; HS = [45, 46, 47, 39]
    a(f"s_add_u32 s46, s45, 16384\ns_add_u32 s47, s45, 32768\ns_add_u32 s39, s45, 49152")
    hst = {1: [], 2: []}
    XF1 = opt("XF1", 4); XH1 = opt("XH1", 0)
    def fl1():
        a("WAITV h0"); a.ext(flag(40, 1)); a.ext(tr("x", "fl1"))
    for tp in range(3):
        for up in range(2):
            tt = TT[idx & 1]; pk = PK[idx]; idx += 1
            regs = []
            for u in (2 * up, 2 * up + 1): regs += [(acc(2*tp, u), u), (acc(2*tp, u) + 2, u), (acc(2*tp+1, u), u), (acc(2*tp+1, u) + 2, u)]
            g = gelu(regs, tt, pk)
            if idx == 1: g = interleave(g, corr[nc:], start=opt("XCS", 24), every=opt("XCE", 2))
            a.ext(g)
            if idx == XF1: fl1()
            for k in range(2):
                u = 2 * up + k
                st_ = f"buffer_store_dwordx4 {vr(pk+4*k,4)}, v{vHW}, {WS}, s{HS[tp]} offen offset:{1024*u} {HSC} ;@h{tp}"
                if tp == 0 or (tp == 1 and XH1 == -1) or (tp == 2 and u < opt("XN2", 0)): a(st_)
                else: hst[tp].append(st_)
                a(f"ds_write_b128 v{vHW}, {vr(pk+4*k,4)} offset:{16384*tp+1024*u}")
            if XH1 == -2 and idx >= XF1: a.ext(hst[1]); hst[1] = []
        a.ext(tr("x", f"tp{tp}"))
    regs = []
    for u in range(4): regs += [(acc(6, u), u), (acc(6, u) + 2, u)]
    pk = PK[6]
    odd = gelu(regs, TT[0], pk)
    for k in range(2): odd += [f"v_permlane32_swap_b32 v{pk+4*k}, v{pk+4*k+2}", f"v_permlane32_swap_b32 v{pk+4*k+1}, v{pk+4*k+3}"]
    for k in range(2): hst[2].append(f"buffer_store_dwordx4 {vr(pk+4*k,4)}, v{vHO}, {WS}, s39 offen offset:{2048*k} {HSC} ;@h2")
    if opt("XODD", 0): a.ext(odd); odd = []
    if XF1 == 7: fl1()
    ldH = f"buffer_load_dword v{vF}, v{vL4}, {WS}, s97 offen {SC}"
    fx0 = {k: [] for k in range(28)}; fx1 = {k: [] for k in range(28)}
    def spread(sts, k0, per):
        for j, g in enumerate(sts): fx1[k0 + j // per].append(g if isinstance(g, list) else [g])
        return k0 + (len(sts) - 1) // per
    def spin(k, va=T+10, vd=T+11):
        l1 = a.label("sp"); ok = a.label("ok")
        return L(f"""
        s_mov_b32 s54, {BOUND}
        {l1}:
        ds_read_b32 v{vd}, v{va}
        s_waitcnt lgkmcnt(0)
        v_cmp_gt_u32 vcc, {k}, v{vd}
        s_cbranch_vccz {ok}
        s_sub_u32 s54, s54, 1
        s_cbranch_scc0 {l1}
        {ok}:
        """)
    fl = lambda G: weave(G, [])
    no = len(odd) * opt("XO1", 40) // 100; post = False
    qs = plane_st(CH, T + 9, Q_OFF, "q"); qs = [qs[0] + qs[1]] + qs[2:]
    ZS = os.environ.get("ZS", "p,o2,L,D,P,H3,R,S,S,S,S,W4,H4,W5,H5").split(","); prog = 1
    for z in ZS:
        if z == "L": a(ldH + " ;@p1")
        elif z == "R":
            a(f"""
            s_bfe_u32 s50, s35, 0x20002
            s_lshl_b32 s51, s3, 6
            v_add_u32 v{T+9}, s51, v{vLn}
            v_xor_b32 v{T+8}, s50, v{T+9}
            s_mov_b32 s50, {S}
            v_lshl_add_u32 v{T+8}, v{T+8}, 2, s50
            v_lshlrev_b32 v{T+9}, 4, v{T+9}
            """)
            a.ext(plane_rd(CH, [T + 8]))
            a(f"v_and_b32 v{T+10}, 3, v{vLn}\nv_lshlrev_b32 v{T+10}, 6, v{T+10}\nv_add_u32 v{T+10}, {PRG}, v{T+10}")
        elif z == "D":
            a.ext(tr("x", "odd")); a("s_waitcnt lgkmcnt(0)\ns_barrier\ns_setprio 0"); a.ext(tr("x", "d0")); post = True
        elif z == "p": a("s_setprio 0")
        elif z == "o1": a.ext(UN(0, odd[:no]) if post else odd[:no]); odd = odd[no:]
        elif z == "o2": a.ext(UN(0, odd) if post else odd); odd = []
        elif z == "F2": a.ext(["WAITV h1"] + flag(40, 2))
        elif z == "F3": a.ext(["WAITV q"] + flag(41, 3))
        elif z == "P": a.ext(tr("x", "z2") + poll(ldH, f"v_cmp_gt_u32 vcc, 1, v{vF}", "p1") + tr("x", "p1"))
        elif z == "Q": a.ext(qs.pop(0))
        elif z == "S": a(hst[1].pop(0))
        elif z == "T": a(hst[2].pop(0))
        else:
            i = int(z[1])
            if i - 2 > prog: prog = i - 2; a.ext(spin(prog))
            a.ext(fl(g2issue(i, VW2, vL16, doW=z[0] == "W", doH=z[0] == "H")))
    left = sum([g2issue(i, VW2, vL16, doW=f"W{i}" not in ZS, doH=f"H{i}" not in ZS) for i in (4, 5, 6)], [])
    if hst[1]: spread(hst[1], 3, opt("XH1P", 2))
    if "F2" not in ZS: fx0[opt("XF2", 4)].append(["WAITV h1"] + flag(40, 2))
    if qs: spread(qs, opt("XQS", 3), opt("XQP", 4))
    if "F3" not in ZS: fx0[opt("XQF", 6)].append(["WAITV q"] + flag(41, 3))
    a.ext(tr("x", "z3")); a("WAITV g3"); a.ext(tr("x", "z4")); a("s_barrier"); a.ext(tr("x", "d3"))
    XL2 = opt("XL2", 1)
    fx1[5 + XL2].append([ldH + " ;@p2"]); fx1[6 + XL2].append(tr("x", "w2") + poll(ldH, f"v_cmp_gt_u32 vcc, 2, v{vF}", "p2") + tr("x", "p2"))
    kh2 = spread(hst[2], opt("XH2", 5), opt("XH2P", 2))
    fx0[opt("XF3", 10)].append(["WAITV h2"] + flag(40, 3))
    fx1[12].append([ldH + " ;@p5"]); fx1[13].append(tr("x", "w5") + poll(ldH, f"v_cmp_gt_u32 vcc, 3, v{vF}", "p5") + tr("x", "p5"))
    B2 = XX + 16
    sd_ = odd + [M("by", opt("XH2", 5))]
    sd_ += L(f"v_add_u32 v{T+5}, {TD}, v{vPm}\nv_add_u32 v{T+1}, {TFR}, v{vL16}\nv_lshlrev_b32 v{vPm}, 2, v{vLn}\nv_lshlrev_b32 v{vO}, {FS}, v{vLn}")
    for b in range(4): sd_.append(f"ds_read_b128 {vr(C2+4*b,4)}, v{T+1} offset:{1024*b}")
    for b in range(4): sd_.append(f"ds_read_b128 {vr(TC+4*b,4)}, v{T+5} offset:{1024*b}")
    ldC = f"buffer_load_dword v{vF2}, v{vO}, {WS}, s100 offen {SC}"
    sd_.append(M("at", max(kh2 + 1, opt("XCP", 9))))
    sd_.append(ldC + " ;@p3")
    for c in range(2):
        for b in range(2): sd_.append(f"ds_read_b128 {vr(GE+8*c+4*b,4)}, v{T+5} offset:{TFR-TD+4096*(1-c)+1024*b}")
    sd_.append(M("sync"))
    sd_.append(tr("x", "w3") + poll(ldC, f"v_cmp_ne_u32 vcc, 3, v{vF2}", "p3") + tr("x", "p3"))
    sd_ += gather(vQ, Q_OFF, S, "qd")
    sd_ += L(f"""
    s_lshl_b32 s50, s3, 4
    s_add_u32 s50, s50, {S}
    v_mov_b32 v{T+4}, s50
    v_cos_f32 v{T}, v{ph}
    v_sin_f32 v{T+1}, v{ph}
    """)
    sd_.append(M("sync", 2))
    sd_.append("WAITV qd")
    sd_.append(M("sync"))
    for b in range(2):
        for e in range(2): sd_.append(f"ds_read_b128 {vr(CH+8*b+4*e,4)}, v{vC} offset:{8192*b+2048*e}")
    sd_.append(f"ds_read_b128 {vr(NQ,4)}, v{T+4}")
    sd_.append("s_waitcnt lgkmcnt(0)")
    sd_ += L(f"v_writelane_b32 v{CH}, 0, 0\nv_writelane_b32 v{CH+2}, 0, 0")
    for b in range(2): sd_ += L(f"v_swap_b32 v{CH+8*b+2}, v{CH+8*b+4}\nv_swap_b32 v{CH+8*b+3}, v{CH+8*b+5}")
    for r in range(2):
        for b in range(2):
            for c in range(2):
                sd_.append(mfma32(ACC + 32 * r + 16 * c, CH + 8 * b + 4 * r, (GO if r else GE) + 8 * c + 4 * b, "0" if b == 0 else None))
    sd_ += L(f"""
    v_and_b32 v{NQ}, 0xffff0000, v{NQ}
    v_and_b32 v{NQ+1}, 0xffff0000, v{NQ+2}
    v_lshlrev_b32 v{NQ+2}, 16, v{NQ+2}
    v_mul_f32 v{NQ+1}, v{NQ+1}, v{T}
    v_fma_f32 v{NQ+1}, -v{NQ+2}, v{T+1}, v{NQ+1}
    """)
    PKD = [192, CH]
    negim = lambda o: [re.sub(r", (v\d+)$", r", -\1", l) if l.startswith("v_cvt_pk") else l for l in o]
    for r in range(2):
        sd_.append(f"v_fmac_f32 v{ACC+32*r}, v{NQ+r}, v{sg}")
        RE, IM = ACC + 32 * r, ACC + 32 * r + 16
        for j0 in range(0, 16, 4):
            J = range(j0, j0 + 4); t_ = lambda j: T + 2 * (j - j0)
            for j in J: sd_ += [f"v_fma_mix_f32 v{t_(j)}, v{RE+j}, v{TC+j}, 0 op_sel_hi:[0,1,0]", f"v_fma_mix_f32 v{t_(j)+1}, v{IM+j}, v{TC+j}, 0 op_sel_hi:[0,1,0]"]
            for j in J: sd_ += [f"v_fma_mix_f32 v{t_(j)}, -v{IM+j}, v{TC+j}, v{t_(j)} op_sel:[0,1,0] op_sel_hi:[0,1,0]",
                                f"v_fma_mix_f32 v{t_(j)+1}, v{RE+j}, v{TC+j}, v{t_(j)+1} op_sel:[0,1,0] op_sel_hi:[0,1,0]"]
            for j in J: sd_.append(f"v_cvt_pk_bf16_f32 v{PKD[r]+j}, v{t_(j)}, -v{t_(j)+1}")
        for b in range(4): sd_.append(mfma32(ACC + 32 * r, PKD[r] + 4 * b, C2 + 4 * b, "0" if b == 0 else None))
    sd_ += L(f"s_add_u32 s98, s98, {BASE_OFF}\ns_add_u32 s99, s99, {BASE_OFF}")
    E = ACC; O = ACC + 32
    for r in range(2):
        for i in range(8):
            sd_.append(f"v_pk_add_f32 {vr(BS+16*r+2*i,2)}, {vr(E+2*i,2)}, {vr(O+2*i,2)}" + (" neg_lo:[0,1] neg_hi:[0,1]" if r else ""))
    for i in range(16): sd_.append(f"v_cvt_pk_bf16_f32 v{CH+i}, v{BS+2*i}, v{BS+2*i+1}")
    for r in range(2):
        if r and opt("XBS", 0): sd_.append(M("sync"))
        sd_.append(M("tail"))
        for e in range(2): sd_.append(f"buffer_store_dwordx4 {vr(CH+8*r+4*e,4)}, v{vBO}, {WS}, s{98+r} offen offset:{1024*e} {SC} ;@bs")
    ldD = f"buffer_load_dword v{vF2}, v{vL4}, {WS}, s100 offen {SC}"
    sd_ += L(f"""
    s_lshl_b32 s98, s44, 1
    s_add_u32 s98, s98, s34
    s_lshl_b32 s99, s32, 2
    s_add_u32 s98, s98, s99
    s_and_b32 s100, s98, 31
    s_lshl_b32 s100, s100, {5+FH}
    s_add_u32 s100, s100, {DF_OFF}
    s_lshl_b32 s98, s98, 16
    s_lshl_b32 s99, s33, 7
    s_add_u32 s98, s98, s99
    s_lshl_b32 s99, s43, 6
    s_add_u32 s98, s98, s99
    s_add_u32 s98, s98, {BASE_OFF}
    s_add_u32 s99, s98, 32768
    """)
    sd_.append(M("sync", opt("XBF", 2)))
    sd_.append(["WAITV bs"] + flag(42, 1))
    sd_.append(M("sync", opt("XBP", 2)))
    sd_.append(M("at", opt("XDP", 26)))
    sd_.append(ldD + " ;@p4")
    sd_.append(M("sync"))
    sd_.append(poll(ldD, f"v_cmp_ne_u32 vcc, 1, v{vF2}", "p4"))
    for x in range(2):
        for e in range(2): sd_.append([f"s_add_u32 m0, s94, {S+2048*x}", f"buffer_load_dwordx4 v{vBG}, {WS}, s{98+x} offen offset:{1024*e} {SC} lds ;@bg"])
    fx0[25].append(L(f"""
    s_lshl_b32 s50, s44, 1
    s_add_u32 s50, s50, s34
    s_lshl_b32 s51, s32, 2
    s_add_u32 s50, s50, s51
    s_lshl_b32 s50, s50, 16
    s_lshl_b32 s52, s43, 7
    s_add_u32 s50, s50, s52
    s_lshl_b32 s51, s33, 8
    s_add_u32 s50, s50, s51
    s_add_u32 m0, s94, {WR_}
    buffer_load_dword v{vPm}, s[24:27], s51 offen lds
    """) + sum([[f"s_add_u32 m0, s94, {1024*k}", f"s_add_u32 s51, s50, {32768*(k>>1)+64*(k&1)}", f"buffer_load_dwordx4 v{vBG}, {XS}, s51 offen lds"] for k in range(4)], []))
    XB = opt("XB", 270)
    fc = lambda k: sum(cost(l) for g in fx0[k] + fx1[k] for l in g)
    sl = split(sd_, 3, 27, lambda k: XB - fc(k), UN)
    if opt("SHOW"): print("X slices", {k: fc(k) + sum(cost(l) for g in v if not isinstance(g, M) for l in g) for k, v in sl.items()})
    for k in range(3, 28):
        main = g2issue(k + 3, VW2, vL16) if 4 <= k <= 24 else left if k == 3 else []
        if XL2 and k == 7: main = g2issue(10, VW2, vL16, doH=False)
        if XL2 and k == 8: main = g2issue(10, VW2, vL16, doW=False) + main
        a.ext(mprio(weave(main, fx0[k] + sl[k] + [M("tail")] + fx1[k], opt("XFR", 85) / 100)))
        if k < 27:
            a.ext(tr("x", f"A{k}"))
            if k + 1 >= 4: a(f"WAITV g{k+1}")
            a.ext(tr("x", f"B{k}"))
            a("s_barrier")
            a.ext(tr("x", f"d{k+1}"))
    a("s_waitcnt vmcnt(0)"); a.ext(tr("x", "pre_e")); a("s_barrier"); a.ext(tr("x", "e") + tr("x", "END"))
    a("s_endpgm")
    a(f"{YR}:\nVMRESET")
    VW2 = 13
    vL16, vT, vH, vK, ph, vF, vQ, vP, vE = 17, 18, 19, 20, 21, 22, 23, 24, 25
    T = 28; X = 40; Fv = 56
    C1c, C1s, C2a, C2c, TC, TS, ACC = 88, 96, 104, 120, 136, 152, 168
    XT = 232; RX = ACC + 48
    a(f"""
    v_and_b32 v{vK}, 255, v0
    v_and_b32 v0, 63, v0
    s_lshl_b32 s46, s37, 11
    v_lshlrev_b32 v{vL16}, 4, v0
    s_add_u32 s47, s46, {2*MB}
    v_lshlrev_b32 v{XT}, {8+FS}, v0
    v_mov_b32 v{XT+1}, 0
    s_lshl_b32 s56, s35, {FS}
    s_add_u32 s56, s56, {CF_OFF}
    s_lshl_b32 s45, s35, 2
    s_add_u32 s45, s45, {C2_OFF}
    """)
    kf, bs, hf = ACC, ACC + 1, ACC + 2; TT = ACC + 4
    ax, aw = g1addr(T)
    pre = L(f"""
    v_and_b32 v1, 31, v0
    v_lshrrev_b32 v{vH}, 5, v0
    v_cvt_f32_u32 v{hf}, v{vH}
    v_cvt_f32_u32 v{ph}, s37
    v_lshrrev_b32 v{X}, 1, v1
    v_and_b32 v{X+1}, 1, v1
    v_cvt_f32_u32 v{kf}, v{X}
    v_cvt_f32_u32 v{bs}, v{X+1}
    v_mul_f32 v{ph}, {fhex(1/2048)}, v{ph}
    v_mul_f32 v{kf}, {fhex(1/32)}, v{kf}
    v_fmamk_f32 v{bs}, v{bs}, {fhex(0.25)}, v{ph}
    v_mul_f32 v{hf}, 4.0, v{hf}
    v_fmac_f32 v{bs}, v{hf}, v{kf}
    v_lshlrev_b32 v{X}, 4, v{X}
    v_lshl_add_u32 v{X}, v{vH}, 9, v{X}
    v_lshl_add_u32 v{X}, v{X+1}, 12, v{X}
    v_add_u32 v{X}, {TFR}, v{X}
    v_add_u32 v{X+1}, {TB}, v{vL16}
    """)
    pre += trig(kf, bs, NS, TT, sink_pack([(C2c, "c", "s")]))
    pre += ["s_lshl_b32 s94, s3, 12"] if SELF else ax + g1scal(2) + sum(aw, [])
    pre += L(f"""
    s_bfe_u32 s50, s35, 0x20002
    v_xor_b32 v{vP}, s50, v{vK}
    v_bfe_u32 v{T}, v{vP}, 1, 1
    v_and_b32 v{T+1}, 1, v{vP}
    v_bfe_u32 v{T+2}, v{vP}, 2, 5
    v_lshrrev_b32 v{T+3}, 7, v{vP}
    v_mul_u32_u24 v{T+4}, 513, v{T}
    v_lshl_add_u32 v{T+2}, v{T+1}, 5, v{T+2}
    v_lshl_add_u32 v{T+2}, v{T+3}, 6, v{T+2}
    v_add_u32 v{T+1}, v{T+2}, v{T+4}
    v_lshrrev_b32 v{T+3}, 2, v{T+1}
    v_and_b32 v{T+3}, 8, v{T+3}
    v_lshl_or_b32 v{T+3}, v{T}, 4, v{T+3}
    v_xor_b32 v{T+1}, v{T+1}, v{T+3}
    v_add_u32 v{T+4}, 528, v{T+4}
    v_cmp_eq_u32 vcc, 0, v{T+2}
    s_mov_b32 s50, {S}
    v_lshl_add_u32 v{vQ}, v{T+1}, 2, s50
    v_cndmask_b32 v{T+1}, v{T+1}, v{T+4}, vcc
    v_lshl_add_u32 v{vP}, v{vP}, 2, s50
    v_lshl_add_u32 v{vF}, v{T+1}, 2, s50
    v_lshlrev_b32 v{vK}, 4, v{vK}
    v_bfe_u32 v{T}, v0, 2, 2
    v_lshl_add_u32 v{T}, v{vH}, 3, v{T}
    v_lshlrev_b32 v{vT}, 6, v{T}
    v_bfe_u32 v{T}, v0, 4, 1
    v_lshl_add_u32 v{vT}, v{T}, 5, v{vT}
    v_and_b32 v{T}, 3, v0
    v_lshl_add_u32 v{vT}, v{T}, 3, v{vT}
    s_mul_i32 s50, s3, {PL}
    s_add_u32 s50, s50, {S}
    v_add_u32 v{vT}, s50, v{vT}
    v_add_u32 v{T+11}, s50, v{vL16}
    v_bfe_u32 v{T}, v0, 2, 1
    v_xor_b32 v{T}, v{T}, v0
    v_lshl_add_u32 v{T+8}, v{T}, 5, s50
    v_lshrrev_b32 v{T}, 4, v0
    v_bfe_u32 v{T+1}, v0, 2, 2
    v_lshl_add_u32 v{T+1}, v{T}, 3, v{T+1}
    v_mul_u32_u24 v{T+1}, 448, v{T+1}
    v_and_b32 v{T+2}, 3, v0
    v_lshl_add_u32 v{T+1}, v{T+2}, 3, v{T+1}
    s_lshr_b32 s50, s2, 6
    s_lshl_b32 s50, s50, 2
    s_add_u32 s50, s50, s3
    v_and_b32 v{T}, 1, v{T}
    v_xor_b32 v{T}, s50, v{T}
    v_lshl_add_u32 v{vE}, v{T}, 5, v{T+1}
    s_lshl_b32 s51, s36, 4
    s_and_b32 s52, s32, 12
    s_add_u32 s51, s51, s52
    s_lshl_b32 s51, s51, 2
    s_add_u32 s51, s51, s50
    s_lshl_b32 s51, s51, 6
    s_add_u32 s100, s51, {CS_OFF}
    s_mul_i32 s57, s37, 2052
    """)
    n0 = opt("YT0", 0)
    a.ext(pre[:n0])
    a("s_waitcnt lgkmcnt(0)")
    a.ext(tr("y", "karg"))
    a.ext(mksrd(8, 64, 4 * MB) + mksrd(4, 84, 256 * MB))
    SK = a.label("sk")
    a(f"""
    s_cmp_lg_u32 s3, 0
    s_cbranch_scc1 {SK}
    s_mov_b64 exec, 255
    buffer_store_dword v{XT+1}, v{XT}, {WS}, s56 offen {SC} ;@cond
    s_mov_b64 exec, 1
    buffer_store_dword v{XT+1}, off, {WS}, s45 {SC} ;@cond
    s_mov_b64 exec, -1
    {SK}:
    """)
    for r in range(2):
        for e in range(2): a(f"buffer_load_dwordx4 {vr(RX+8*r+4*e,4)}, v{vL16}, {XS}, s{46+r} offen offset:{1024*e} ;@xb")
    a.ext(tr("y", "iss0"))
    a.ext(mksrd(16, 72, 1024 * 7168) + mksrd(12, 76, 3584 * 2048) + mksrd(20, 74, 7168) + mksrd(24, 80, 4 * MB) +
          mksrd(28, 82, 256) + mksrd(60, 66, 2048 * 1026) + mksrd(88, 68, 2048 * 1026))
    a.ext(pre[n0:])
    a.ext(tr("y", "pre_t")); a("s_barrier"); a.ext(tr("y", "t"))
    for b in range(4): a(f"ds_read_b128 {vr(C1c+4*b,4)}, v{X+1} offset:{8192+1024*b}")
    for b in range(8): a(f"ds_read_b128 {vr(TC+4*b,4)}, v{X+1} offset:{1024*b}")
    for b in range(4): a(f"ds_read_b128 {vr(C2a+4*b,4)}, v{X} offset:{1024*b}")
    wld = []
    for c in range(2):
        wld.append(f"buffer_load_dwordx4 {vr(XT+4*c,4)}, v{vL16}, s[60:63], s57 offen offset:{1024*c} ;@w")
        wld.append(f"buffer_load_dwordx4 {vr(XT+8+4*c,4)}, v{vL16}, s[88:91], s57 offen offset:{1024*c} ;@w")
    wld += [f"buffer_load_dword v{XT+16}, off, s[60:63], s57 offset:2048 ;@w", f"buffer_load_dword v{XT+17}, off, s[88:91], s57 offset:2048 ;@w"]
    sd_ = []
    if opt("YWL", 0) == 0: sd_ += wld
    sd_.append("WAITV xb")
    F_ = Fv
    if opt("YWL", 0) == 1: sd_ += wld
    for i in range(16): sd_ += [f"v_lshlrev_b32 v{F_+2*i}, 16, v{RX+i}", f"v_and_b32 v{F_+2*i+1}, 0xffff0000, v{RX+i}"]
    Q = ACC
    for r in range(2):
        for i in range(4): sd_.append(f"v_pk_add_f32 {vr(Q+8*r+2*i,2)}, {vr(F_+16*r+4*i,2)}, {vr(F_+16*r+4*i+2,2)}")
    for r in range(2):
        for i in range(2): sd_.append(f"v_pk_add_f32 {vr(Q+8*r+4*i,2)}, {vr(Q+8*r+4*i,2)}, {vr(Q+8*r+4*i+2,2)}")
    for r in range(2): sd_.append(f"v_pk_add_f32 {vr(Q+8*r,2)}, {vr(Q+8*r,2)}, {vr(Q+8*r+4,2)}")
    for r in range(2): sd_ += [f"v_add_f32 v{T+2*r}, v{Q+8*r}, v{Q+8*r+1}", f"v_sub_f32 v{T+2*r+1}, v{Q+8*r}, v{Q+8*r+1}"]
    sd_ += L(f"""
    v_permlane16_swap_b32 v{T}, v{T+1}
    v_permlane16_swap_b32 v{T+2}, v{T+3}
    v_add_f32 v{T}, v{T}, v{T+1}
    v_add_f32 v{T+2}, v{T+2}, v{T+3}
    v_permlane32_swap_b32 v{T}, v{T+2}
    v_add_f32 v{T}, v{T}, v{T+2}
    """)
    sd_ += ror_reduce(T)
    sd_ += L(f"v_mul_f32 v{T+1}, {fhex(1/1024)}, v{T}\nv_mov_b32 v{T+2}, v{T+1}")
    sd_ += rbf(T + 2)
    sd_ += L(f"""
    v_sub_f32 v{T+3}, v{T+1}, v{T+2}
    v_readlane_b32 s96, v{T+2}, 0
    v_readlane_b32 s98, v{T+2}, 32
    v_readlane_b32 s92, v{T}, 16
    v_readlane_b32 s93, v{T}, 48
    """)
    for r in range(2):
        for i in range(8):
            sd_.append(f"v_pk_add_f32 {vr(F_+16*r+2*i,2)}, {vr(F_+16*r+2*i,2)}, s[{96+2*r}:{97+2*r}] op_sel_hi:[1,0] neg_lo:[0,1] neg_hi:[0,1]")
    for i in range(4):
        for r in range(2):
            for c in range(2):
                s_ = vr(F_ + 16 * r + 4 * i + 2 * c, 2); d = vr(Q + 4 * r + 2 * c, 2)
                sd_.append(f"v_pk_mul_f32 {d}, {s_}, {s_}" if i == 0 else f"v_pk_fma_f32 {d}, {s_}, {s_}, {d}")
    for r in range(2): sd_.append(f"v_pk_add_f32 {vr(Q+4*r,2)}, {vr(Q+4*r,2)}, {vr(Q+4*r+2,2)}")
    for r in range(2): sd_.append(f"v_add_f32 v{T+4+r}, v{Q+4*r}, v{Q+4*r+1}")
    sd_ += L(f"""
    v_permlane32_swap_b32 v{T+4}, v{T+5}
    v_add_f32 v{T+4}, v{T+4}, v{T+5}
    v_mov_b32 v{T+5}, v{T+4}
    v_permlane16_swap_b32 v{T+4}, v{T+5}
    v_add_f32 v{T+4}, v{T+4}, v{T+5}
    """)
    sd_ += ror_reduce(T + 4)
    sd_ += L(f"""
    v_mul_f32 v{T+4}, {fhex(1/1024)}, v{T+4}
    v_fma_f32 v{T+4}, -v{T+3}, v{T+3}, v{T+4}
    v_max_f32 v{T+4}, 0, v{T+4}
    """)
    sd_ += rbf(T + 4) + [f"v_add_f32 v{T+4}, {fhex(1e-5)}, v{T+4}"] + rbf(T + 4) + [f"v_sqrt_f32 v{T+4}, v{T+4}"] + rbf(T + 4)
    sd_ += L(f"""
    v_cvt_pk_bf16_f32 v{T+5}, -v{T+2}, v{T+4}
    v_rcp_f32 v{T+4}, v{T+4}
    v_lshlrev_b32 v{T+6}, 12, v{vH}
    s_lshl_b32 s50, s37, 2
    s_add_u32 s101, s50, {ST_OFF}
    v_readlane_b32 s96, v{T+4}, 0
    v_readlane_b32 s98, v{T+4}, 32
    """)
    sd_.append(L(f"s_mov_b32 exec_lo, 1\ns_mov_b32 exec_hi, 1\nbuffer_store_dword v{T+5}, v{T+6}, {WS}, s101 offen {SC} ;@pub\ns_mov_b64 exec, -1"))
    SK = a.label("sk")
    sd_.append(L(f"""
    s_cmp_lg_u32 s3, 0
    s_cbranch_scc1 {SK}
    s_and_b32 s50, s2, 63
    s_lshl_b32 s50, s50, 2
    s_mov_b64 exec, 1
    v_mov_b32 v{T+7}, 1
    buffer_atomic_add v{T+7}, off, s[28:31], s50 {SC} ;@cond
    s_mov_b64 exec, -1
    {SK}:
    """))
    AC = ACC
    for i in range(8): sd_.append(f"v_pk_mul_f32 {vr(F_+2*i,2)}, {vr(F_+2*i,2)}, s[96:97] op_sel_hi:[1,0]")
    for i in range(8):
        sd_.append(f"v_pk_fma_f32 {vr(AC+2*i,2)}, {vr(F_+16+2*i,2)}, s[98:99], {vr(F_+2*i,2)} op_sel_hi:[1,0,1]")
        sd_.append(f"v_pk_fma_f32 {vr(AC+16+2*i,2)}, {vr(F_+16+2*i,2)}, s[98:99], {vr(F_+2*i,2)} op_sel_hi:[1,0,1] neg_lo:[1,0,0] neg_hi:[1,0,0]")
    CK = opt("YCK", 1)
    sd_.append(M("by", CK - 1))
    for i in range(16): sd_.append(f"v_cvt_pk_bf16_f32 v{AC+32+i}, v{AC+2*i}, v{AC+2*i+1}")
    for i in range(4): sd_.append(f"ds_write_b128 v{T+11}, {vr(AC+32+4*i,4)} offset:{1024*i}")
    NY = T + 9
    sd_ += L(f"""
    v_mov_b32 v{T}, s96
    v_mov_b32 v{T+1}, s98
    v_mul_f32 v{T}, s92, v{T}
    v_mul_f32 v{T+1}, s93, v{T+1}
    v_cos_f32 v{T+2}, v{ph}
    v_sin_f32 v{T+3}, v{ph}
    v_add_f32 v{T+4}, v{T}, v{T+1}
    v_sub_f32 v{T+5}, v{T}, v{T+1}
    v_mul_f32 v{T+4}, 0.5, v{T+4}
    v_mul_f32 v{T+5}, 0.5, v{T+5}
    v_mul_f32 v{T+2}, v{T+2}, v{T+5}
    v_mul_f32 v{T+3}, v{T+3}, v{T+5}
    v_cvt_pk_bf16_f32 v{NY}, v{T+4}, 0
    v_cvt_pk_bf16_f32 v{NY+1}, v{T+2}, -v{T+3}
    s_waitcnt lgkmcnt(0)
    """)
    A1 = F_
    for r in range(2):
        for b in range(2):
            for e in range(2): sd_.append(f"ds_read_b64_tr_b16 {vr(A1+8*r+4*b+2*e,2)}, v{vT} offset:{2048*r+1024*b+256*e}")
    if opt("YWL", 0) == 2: sd_ += wld
    sd_ += flagaddr(46, 47, 56, CF_OFF)
    sd_.append(L(f"s_mov_b64 exec, 1\nv_mov_b32 v{T}, 0\nbuffer_store_dword v{T}, off, {WS}, s46 {SC} ;@pub\nbuffer_store_dword v{T}, off, {WS}, s56 {SC} ;@pub\ns_mov_b64 exec, -1"))
    sd_.append("s_waitcnt lgkmcnt(0)")
    for r in range(2):
        for b in range(2):
            sd_.append(mfma32(ACC + 32 * r, A1 + 8 * r + 4 * b, C1c + 4 * b, "0" if b == 0 else None))
            sd_.append(mfma32(ACC + 32 * r + 16, A1 + 8 * r + 4 * b, C1s + 4 * b, "0" if b == 0 else None))
    wp = L(f"s_mov_b32 s52, 0x05040100\ns_mov_b32 s53, 0x07060302\nv_xor_b32 v{T+1}, 64, v{T+8}\nWAITV w")
    for i in range(9):
        r, m, d = (XT + i, XT + 8 + i, X + 2 * i) if i < 8 else (XT + 16, XT + 17, XT + 18)
        wp += [f"v_perm_b32 v{d}, v{m}, v{r}, s52", f"v_perm_b32 v{d+1}, v{m}, v{r}, s53"]
    wq = []
    for c in range(2):
        for x in range(2): wq.append(f"ds_write_b128 v{T+1 if c else T+8}, {vr(X+8*c+4*x,4)} offset:{2048*c+16*x}")
    wq.append(L(f"s_mov_b64 exec, 1\nds_write_b64 v{T+8}, {vr(XT+18,2)} offset:4160\ns_mov_b64 exec, -1"))
    PV = F_
    def bst2(r):
        D = X if r == 0 else C1c
        return cmul(ACC + 32 * r, ACC + 32 * r + 16, TC, TS, True, T, D, False) + \
               [mfma32(ACC + 32 * r, (C2c if r else C2a) + 4 * b, D + 4 * b, "0" if b == 0 else None) for b in range(4)]
    WF = opt("WF", 1); kW = M("mark"); kP = M("mark")
    sW = plane_st(XT, vK, WT_OFF, "wt", 98); sP = plane_st(ACC, vK, P_OFF, "pt", 99)
    b0_, b1_ = bst2(0), bst2(1)
    if WF:
        n_ = opt("YW1", 30); kq_ = M("mark")
        sd_ += wp + wq + ["s_waitcnt lgkmcnt(0)", kq_] + b1_[:n_] + [M("after", kq_)] + plane_rd(XT, [vF, vQ], 2) + b1_[n_:n_ + 12] + [sW[0], kW] + b1_[n_ + 12:] + b0_
    else: sd_ += b0_ + b1_
    for r in ((1, 0) if WF else (0, 1)):
        P = ACC + 32 * r
        for b in range(4):
            for t in range(2): sd_.append(f"v_cvt_pk_bf16_f32 v{PV+4*b+t+2*r}, v{P+4*b+2*t}, v{P+4*b+2*t+1}")
    sd_.append(L(f"s_mov_b64 exec, 1\nv_mov_b32 v{PV}, v{NY}\nv_mov_b32 v{PV+2}, v{NY+1}\ns_mov_b64 exec, -1"))
    if WF: sd_.append(M("after", kW))
    for b in range(4): sd_.append(f"ds_write_b128 v{T+11}, {vr(PV+4*b,4)} offset:{1024*b}")
    sd_.append("s_waitcnt lgkmcnt(0)")
    sd_.append(M("sync"))
    sd_ += plane_rd(ACC, [vP]) + [sP[0], kP]
    if not WF: sd_ += wp + [M("sync")] + wq + ["s_waitcnt lgkmcnt(0)", M("sync")] + plane_rd(XT, [vF, vQ], 2) + [sW[0], kW]
    FR, FI = C1c, C2a
    vG = T + 8
    vPA, vOne = 11, 12; U = ACC + 16
    P = X; W = C2c; WRr = Fv; WI = Fv + 16; A0 = ACC; A1 = ACC + 16; B0 = ACC + 32; B1 = ACC + 48
    yflag = lambda v: L(f"s_mov_b64 exec, 1\nv_mov_b32 v{vOne}, {v}\nbuffer_store_dword v{vOne}, off, {WS}, s47 {SC}\ns_mov_b64 exec, -1")
    ldS = f"buffer_load_dword v{vF}, v{vT}, s[28:31], 0 offen {SC}"
    ldP = f"buffer_load_dword v{vF}, v{U+7}, {WS}, s56 offen {SC}"
    ldQ = f"buffer_load_dwordx4 {vr(U,4)}, v{vL16}, {WS}, s56 offen {SC}"
    tA, tB = ("wt", "pt") if WF else ("pt", "wt")
    gA = gather(vQ, WT_OFF if WF else P_OFF, S, "ga"); gB = gather(vQ, P_OFF if WF else WT_OFF, WG_, "gb")
    rd4 = lambda D, first: [f"ds_read_b128 {vr(D+4*b,4)}, v{vG if first else vP} offset:{(0 if first else WG_)+4096*b}" for b in range(4)]
    unW = ["s_waitcnt lgkmcnt(0)"] + sum([[f"v_lshlrev_b32 v{WRr+i}, 16, v{W+i}", f"v_and_b32 v{WI+i}, 0xffff0000, v{W+i}"] for i in range(16)], [])
    IT = {}
    for n in range(4):
        IT[f"sW{n}"] = sW[n + 1]; IT[f"sP{n}"] = sP[n + 1]
        IT[f"gA{n}"] = (gA[0] if n == 0 else []) + gA[n + 1]; IT[f"gB{n}"] = (gB[0] if n == 0 else []) + gB[n + 1]
        IT[f"W{n}"] = weave(g2issue(n, VW2, None, doH=False), [])
    IT["f1"] = tr("y", "w0") + [f"WAITV {tA}"] + tr("y", "pub") + yflag(1)
    IT["lS"] = [f"v_lshlrev_b32 v{vT}, 2, v0"] + cfpoll(56) + [ldS + " ;@p0"]
    IT["p0"] = poll(ldS, f"v_cmp_gt_u32 vcc, 4, v{vF}", "p0")
    IT["w2"] = tr("y", "w2") + [f"WAITV {tB} cs"] + tr("y", "p0")
    SK = a.label("sk")
    IT["f2"] = L(f"s_cmp_lg_u32 s3, 0\ns_cbranch_scc1 {SK}\ns_mov_b64 exec, 1\nv_mov_b32 v{vOne}, 2\nbuffer_store_dword v{vOne}, off, {WS}, s45 {SC} ;@cond\ns_mov_b64 exec, -1\n{SK}:")
    IT["tb"] = [f"v_add_u32 v{T}, {TFR}, v{vL16}"] + [f"ds_read_b128 {vr(FR+4*b,4)}, v{T} offset:{1024*b}" for b in range(8)]
    IT["fill"] = w2addr(VW2, 0, T) + g2bases() + L(f"""
    v_lshrrev_b32 v{vQ}, 2, v0
    v_mul_u32_u24 v{vQ}, {PITCH}, v{vQ}
    v_and_b32 v{T}, 3, v0
    v_lshl_add_u32 v{vQ}, v{T}, 4, v{vQ}
    v_bfe_u32 v{vG}, v0, 2, 2
    v_xor_b32 v{vG}, s3, v{vG}
    v_lshlrev_b32 v{vG}, 4, v{vG}
    v_lshl_add_u32 v{vP}, v0, 6, v{vG}
    v_add_u32 v{vG}, {S}, v{vP}
    """)
    IT["b1"] = L(f"""
    v_lshrrev_b32 v{T}, 3, v{vK}
    s_mul_i32 s50, s36, 448
    buffer_load_ushort v{U+6}, v{T}, s[20:23], s50 offen ;@b1
    v_lshrrev_b32 v{vE}, 1, v{vK}
    v_add_u32 v{vE}, {EPA}, v{vE}
    """)
    IT["lP"] = [f"v_lshlrev_b32 v{U+7}, {FS}, v0", ldP + " ;@pp"]
    IT["pp"] = tr("y", "w1") + poll(ldP, f"v_cmp_gt_u32 vcc, 1, v{vF}", "pp") + tr("y", "pp")
    IT["lQ"] = [f"s_mov_b32 s56, {C2_OFF}", ldQ + " ;@pq"]
    IT["pq"] = tr("y", "w3") + poll(ldQ, f"v_min3_u32 v{U}, v{U}, v{U+1}, v{U+2}\nv_min_u32 v{U}, v{U}, v{U+3}\nv_cmp_gt_u32 vcc, 2, v{U}", "pq") + tr("y", "pq")
    IT["ep"] = L(f"""
    s_and_b32 s50, s3, 1
    s_lshl_b32 s50, s50, 8
    s_add_u32 m0, s50, {EPS}
    s_lshl_b32 s51, s32, 9
    s_add_u32 s50, s50, s51
    s_add_u32 s50, s50, {ST_OFF}
    buffer_load_dword v{vT}, {WS}, s50 offen {SC} lds ;@ep
    s_lshl_b32 s50, s36, 12
    s_lshl_b32 s51, s3, 8
    s_add_u32 s50, s50, s51
    s_add_u32 s50, s50, {CS_OFF}
    """) + [f"buffer_load_dword v{U+n}, v{vT}, {WS}, s50 offen offset:{1024*n} {SC} ;@ep" for n in range(4)]
    IT["pi"] = L(f"v_mov_b32 v{vOne}, 0\nds_write_b32 v{vPA}, v{vOne}")
    IT["ec"] = L(f"""
    WAITV ep
    v_add_f32 v{U}, v{U}, v{U+1}
    v_add_f32 v{U+2}, v{U+2}, v{U+3}
    s_mov_b32 s101, 0x07060302
    v_add_f32 v{U}, v{U}, v{U+2}
    v_and_b32 v{U+1}, 0xffff0000, v{U}
    v_sub_f32 v{U+1}, v{U}, v{U+1}
    v_and_b32 v{U+2}, 0xffff0000, v{U+1}
    v_perm_b32 v{U+4}, v{U+1}, v{U}, s101
    v_sub_f32 v{U+2}, v{U+1}, v{U+2}
    v_alignbit_b32 v{U+5}, v{U+6}, v{U+2}, 16
    ds_write_b64 v{vE}, {vr(U+4,2)}
    """)
    IT["wA"] = ["WAITV ga"]; IT["wB"] = tr("y", "w4") + ["WAITV gb"] + tr("y", "wd")
    IT["rA"] = rd4(W if WF else P, True); IT["rB"] = rd4(P if WF else W, False)
    IT["unW"] = unW; IT["lg"] = ["s_waitcnt lgkmcnt(0)"]
    IT["sig"] = L(f"v_mov_b32 v{vOne}, 1\nds_write_b32 v{vPA}, v{vOne}")
    IT["spin"] = L(f"v_and_b32 v{vT}, 3, v0\nv_lshlrev_b32 v{vT}, 6, v{vT}\nv_add_u32 v{vT}, {PRG}, v{vT}") + spin(1, vT, vF)
    IT["td"] = []
    for b in range(4):
        SK = a.label("sk")
        IT["td"] += [f"s_cmp_lg_u32 s3, {b}", f"s_cbranch_scc1 {SK}"] + [f"v_cvt_pk_f16_f32 v{T+i}, v{TC+4*b+i}, v{TS+4*b+i}" for i in range(4)] + [f"{SK}:"]
    IT["td"] += L(f"s_lshl_b32 s50, s3, 10\ns_add_u32 s50, s50, {TD}\nv_add_u32 v{T+4}, s50, v{vL16}\nds_write_b128 v{T+4}, {vr(T,4)}")
    def stage(D0, D1, dat, data_is_A):
        o = []
        for b in range(4):
            for D, Fc in ((D0, FR), (D1, FI)):
                x, y = (dat + 4 * b, Fc + 4 * b) if data_is_A else (Fc + 4 * b, dat + 4 * b)
                o.append(mfma32(D, x, y, "0" if b == 0 else None))
        return o
    c_ = [stage(A0, A1, P, True), cmul(A0, A1, TC, TS, True, T, P, False), stage(B0, B1, P, False), cmul(B0, B1, WRr, WI, False, T, W, True),
          stage(A1, A0, W, True), cmul(A0, A1, TC, TS, False, T, P, True), stage(B1, B0, P, False),
          [f"v_cvt_pk_bf16_f32 v{W+i}, v{B1+i}, v{B0+i}" for i in range(16)] + [f"ds_write_b128 v{T+11}, {vr(W+4*b,4)} offset:{1024*b}" for b in range(4)]]
    for j in range(8): IT[f"c{j}"] = c_[j]
    CA = Fv + 16; CC = Fv + 24; ON = Fv + 28
    fx0 = {k: [] for k in range(-1, 19)}; fx1 = {k: [] for k in range(-1, 19)}
    for k in range(CK, CK + 4):
        d = 16384 + (k % 3) * STG if k == CK else ((k % 3) - ((k - 1) % 3)) * STG
        fx0[k] = [[f"v_add_u32 v{vE}, {d & 0xffffffff}, v{vE}"]] + \
                 [[f"ds_read_b64_tr_b16 {vr(CA+4*sub+2*e,2)}, v{vE} offset:{14336*sub+1792*e}"] for sub in range(2) for e in range(2)]
        if k == CK: fx0[k] += [[f"v_mov_b32 v{ON+i}, 0x3f803f80"] for i in range(4)]
        fx1[k] = [["s_waitcnt lgkmcnt(0)"]] + [[mfma16(CC, ON, CA + 4 * sub, "0" if (k == CK and sub == 0) else None)] for sub in range(2)]
    fx0[CK + 4] = [L(f"v_lshlrev_b32 v{CC+1}, 2, v0\ns_mov_b64 exec, 0xffff\nbuffer_store_dword v{CC}, v{CC+1}, {WS}, s100 offen {SC} ;@cs\ns_mov_b64 exec, -1")]
    for k in range(4): IT[f"ex{k}"] = [f"v_mov_b32 v{T+i}, -1" for i in range(4)] + [f"buffer_store_dwordx4 {vr(T,4)}, v{vL16}, {WS}, s40 offen offset:{1024*k} {SC} ;@ex"]
    PFS = opt("PFS", 7)
    IT["pf"] = L(f"""
    v_lshlrev_b32 v{T+9}, {PFS}, v0
    s_lshl_b32 s39, s2, 2
    s_add_u32 s39, s39, s3
    s_mul_i32 s39, s39, 7168
    buffer_load_dword v{T+10}, v{T+9}, {W2S}, s39 offen
    """) + ([f"buffer_load_dword v{T+10}, v{T+9}, {W2S}, s39 offen offset:3584"] if PFS == 6 else [])
    for k in range(4): IT[f"pf{k}"] = IT["pf"][:4] + [f"s_lshl_b64 exec, 0x3fff, {14*k}", IT["pf"][4], "s_mov_b64 exec, -1"]
    vA = [2, 3, 4, 5]; vBa, vBb, vO, vX0, vX1 = 6, 7, 8, 9, 10
    g2a = L(f"""
    s_and_b32 s43, s3, 1
    s_lshr_b32 s44, s3, 1
    v_lshrrev_b32 v6, 2, v0
    v_and_b32 v7, 7, v6
    v_and_b32 v8, 3, v0
    v_lshlrev_b32 v8, 3, v8
    v_lshl_add_u32 v8, v6, 8, v8
    v_add_u32 v8, {WR_}, v8
    s_lshl_b32 s40, s43, 2
    v_xor_b32 v7, s40, v7
    """)
    for t in range(4): g2a += [f"v_xor_b32 v9, {t}, v7", f"v_lshl_add_u32 v{vA[t]}, v9, 5, v8"]
    g2a += L(f"""
    s_lshl_b32 s40, s44, 12
    s_lshl_b32 s41, s34, 11
    s_add_u32 s42, s40, s41
    v_add_u32 v{vBa}, s42, v{vL16}
    s_xor_b32 s42, s42, 2048
    v_add_u32 v{vBb}, s42, v{vL16}
    v_and_b32 v11, 15, v0
    v_bfe_u32 v12, v0, 4, 1
    v_lshlrev_b32 v{vO}, 11, v11
    v_lshl_add_u32 v{vO}, v12, 5, v{vO}
    v_lshl_add_u32 v{vO}, v{vH}, 4, v{vO}
    v_lshrrev_b32 v10, 2, v11
    v_xor_b32 v10, v10, v{vH}
    v_lshlrev_b32 v{vX0}, 6, v11
    v_lshl_add_u32 v{vX0}, v10, 4, v{vX0}
    v_lshl_add_u32 v{vX0}, v12, 3, v{vX0}
    s_add_u32 s40, s94, {S}
    v_add_u32 v{vX0}, s40, v{vX0}
    v_xor_b32 v{vX1}, 32, v{vX0}
    s_lshl_b32 s41, s3, 6
    s_add_u32 s41, s41, {PRG}
    v_lshl_add_u32 v{vPA}, v11, 2, s41
    s_lshl_b32 s57, s2, 14
    s_add_u32 s57, s57, s94
    s_add_u32 s57, s57, {EX_OFF}
    s_xor_b32 s41, s57, 16384
    s_lshl_b32 s42, s44, 1
    s_add_u32 s42, s42, s34
    s_lshl_b32 s40, s32, 2
    s_add_u32 s42, s42, s40
    s_lshl_b32 s42, s42, 16
    s_lshl_b32 s40, s33, 8
    s_add_u32 s42, s42, s40
    s_lshl_b32 s40, s43, 7
    s_add_u32 s42, s42, s40
    s_mov_b32 s40, s57
    s_mov_b32 s46, 6
    """)
    IT["g2a"] = g2a
    YB = opt("YB", 400); YB0 = opt("YB0", 1000)
    fc = lambda k: sum(cost(l) for g in fx0[k] + fx1[k] for l in g)
    sl = split(sd_, -1, 16, lambda k: YB0 if k < 0 else YB - fc(k), lambda k, g: UN(k, g) if 0 <= k <= 15 else g)
    DEF = ("2:sW0,sW1;3:sW2,sW3;5:f1,sP0,sP1,tb;6:sP2,sP3,lS,fill;7:p0,g2a,b1,w2;8:f2,lP;9:pp,gA0;10:gA1;11:gA2;12:gA3,lQ;13:pq,ep;"
           "14:gB0,gB1,gB2,gB3,W0,pf,pi,ec,wA;15:rA,W1,td,unW,wB;16:rB,W2,W3,lg,c0,ex0,ex1,ex2,ex3,c1,c2,c3,c4,c5,c6,c7") if WF else \
          ("4:sP0,sP1,sP2,sP3;5:tb,f1;6:sW0,sW1,sW2,sW3,lS;7:w2,p0;8:f2,b1,fill;9:g2a;10:ex0;11:ex1,lP;12:pp,gA0,gA1,lQ,ex2;13:gA2,gA3,pq,ep,ex3;"
           "14:gB0,gB1,gB2,gB3,W0,pi,ec,wA;15:rA,W1,td,W2,W3;16:pf,c0,wB,sig,c1,spin,rB,c2,unW,c3,c4,c5,c6,c7")
    YS = {int(x.split(":")[0]): x.split(":")[1].split(",") for x in DEF.split(";")}
    for x in os.environ.get("YS", "").split(";"):
        if x: YS[int(x.split(":")[0])] = [y for y in x.split(":")[1].split(",") if y]
    pos = {n: (k, j) for k, v in YS.items() for j, n in enumerate(v)}
    miss = set(IT) - set(pos) - {"lg", "sig", "spin", "pf", "pf0", "pf1", "pf2", "pf3"}
    assert not miss and sum(len(v) for v in YS.values()) == len(pos), miss
    kL = max(kW.n, kP.n); A_, B_ = ("sW", "sP") if WF else ("sP", "sW")
    for x, y in [("sW0", "sW1"), ("sW1", "sW2"), ("sW2", "sW3"), ("sP0", "sP1"), ("sP1", "sP2"), ("sP2", "sP3"), (A_ + "3", "f1"), (B_ + "3", "w2"), ("f1", "f2"), ("lS", "p0"), ("p0", "lP"),
                 ("lP", "pp"), ("pp", "gA0"), ("pp", "lQ"), ("gA0", "gA1"), ("gA1", "gA2"), ("gA2", "gA3"), ("gA3", "gB0"), ("lQ", "pq"), ("pq", "ep"), ("pq", "gB0"), ("gB0", "gB1"), ("gB1", "gB2"), ("gB2", "gB3"),
                 ("ep", "ec"), ("b1", "ep"), ("fill", "gA0"), ("g2a", "ex0"), ("g2a", "pi"), ("gA3", "wA"), ("gB3", "wB"), ("f2", "pi"),
                 ("fill", "W0"), ("ec", "c0"), ("rA" if WF else "rB", "unW"), ("unW", "c3"), ("rB" if WF else "rA", "c0"), ("w2", "ep")] + [(f"c{j}", f"c{j+1}") for j in range(7)]:
        assert pos[x] < pos[y], (x, y)
    for x, y in [("w2", "f2"), ("wA", "rA"), ("rA", "c7")] + ([("pi", "sig")] if "sig" in pos else [("wB", "rB")]): assert pos[x][0] < pos[y][0], (x, y)
    if "sig" in pos: assert pos["wB"] < pos["sig"] < pos["spin"] < pos["rB"] and pos["ep"] < pos["spin"]
    lo = {"sW0": kW.n, "sP0": kP.n, "gA0": kL + 1, "gB0": 14, "W0": 14, "W1": 15, "W2": 15, "W3": 15, "td": 15, "tb": kP.n, "lS": kW.n, "fill": kL, "b1": max(CK + 4, kP.n), "w2": CK + 4, "unW": CK + 5,
          "pf": kP.n, "ex0": kL, "pi": kL + 1, "f1": 0, "rA": kP.n}
    for x, k in lo.items(): assert x not in pos or pos[x][0] >= k, (x, k)
    assert pos["ec"][0] <= 15 and pos["pi"][0] <= 15 and pos["c7"][0] == 16
    for k, v in YS.items(): fx1[k] += [UN(k, IT[n]) if k <= 15 else IT[n] for n in v]
    fx1[15].append(["s_waitcnt lgkmcnt(0)"])
    if opt("SHOW"): print("Y slices", {k: fc(k) + sum(cost(l) for g in v if not isinstance(g, M) for l in g) for k, v in sl.items()}, "kW", kW.n, "kP", kP.n)
    for k in range(-1, 17):
        main = g1issue(k + 2) if 0 <= k <= 13 and not SELF else []
        its = fx0[k] + sl[k] + fx1[k]
        if 0 <= k <= 13: its = [g if isinstance(g, M) else [l for l in g if not killed(l)] for g in its]
        w_ = weave(main, its, opt("YFR", 85) / 100)
        a.ext(mprio(w_) if 0 <= k <= 15 else w_)
        a.ext(tr("y", f"A{k}"))
        if 1 <= k < 15 and not SELF: a(f"WAITV s{k+1}")
        if k == 16: a(f"WAITV g0 g1 g2 g3 ex\ns_setprio {opt('YP2', 2)}")
        if k in (-1, 16): a("s_waitcnt lgkmcnt(0)")
        a.ext(tr("y", f"B{k}"))
        a("s_barrier")
        a.ext(tr("y", f"b{k+1}"))
    A2 = 64; F2 = [128, 160]
    ac2 = lambda t, u: A2 + 4 * (4 * u + t)
    def rd2(f, slot, sub):
        rdA = lambda t: [f"ds_read_b64_tr_b16 {vr(f+4*t,2)}, v{vA[t]} offset:{16384*slot+8192*sub}",
                         f"ds_read_b64_tr_b16 {vr(f+4*t+2,2)}, v{vA[t]} offset:{16384*slot+8192*sub+4096}"]
        rdB = lambda u: f"ds_read_b128 {vr(f+16+4*u,4)}, v{vBa if u < 2 else vBb} offset:{16384*slot+8192*sub+1024*(u&1)}"
        o = rdA(0) + [rdB(u) for u in range(4)]
        for t in range(1, 4): o += rdA(t)
        return o
    mf2 = lambda f, z=None: [mfma16(ac2(t, u), f + 4 * t, f + 16 + 4 * u, z) for t, u in snake(4, 4)]
    a.ext(rd2(F2[0], 0, 0))
    a("s_waitcnt lgkmcnt(0)")
    a.ext(interleave(mf2(F2[0], "0"), rd2(F2[1], 0, 1)))
    def body(i, extra=[], wait="s_waitcnt lgkmcnt(0)", first=[], trn=False):
        a(wait)
        if i < 3: a(f"v_mov_b32 v{vOne}, {i+2}\nds_write_b32 v{vPA}, v{vOne}")
        if trn: a.ext(tr("y", f"B{i+17}"))
        if i >= 2: a("s_barrier")
        if trn: a.ext(tr("y", f"d{i+1}"))
        a.ext(first)
        a.ext(interleave(mf2(F2[1]), rd2(F2[0], (i + 1) % 4, 0)))
        a("s_waitcnt lgkmcnt(0)")
        a.ext(interleave(mf2(F2[0]), rd2(F2[1], (i + 1) % 4, 1) + extra))
    body(0); body(1); body(2, trn=True)
    LP = a.label("g2loop")
    a(f"{LP}:")
    if opt("WBL"):
        SK = a.label("sk")
        a(f"s_lshl_b32 s47, s33, 2\ns_add_u32 s47, s47, s3\ns_lshl_b32 s47, s47, 4\ns_add_u32 s47, s47, s46\ns_cmp_lg_u32 s47, {opt('WBL')}\ns_cbranch_scc1 {SK}\nbuffer_wbl2 sc1\n{SK}:")
    for i in range(3, 7): body(i, ["s_sub_u32 s46, s46, 1", "s_cmp_lg_u32 s46, 0"] if i == 6 else [])
    a(f"s_cbranch_scc1 {LP}")
    a("s_waitcnt lgkmcnt(0)\nVMRESET")
    a.ext([mfma16(ac2(t, u), F2[1] + 4 * t, F2[1] + 16 + 4 * u) for u in (2, 3, 0, 1) for t in range(4)])
    a.ext(tr("y", "G2end"))
    PKx = 128; BV = 144; EXR = 192; TU = 208
    for i in range(16): a(f"v_cvt_pk_bf16_f32 v{PKx+i}, v{A2+32+2*i}, v{A2+33+2*i}")
    for k in range(4): a(f"buffer_store_dwordx4 {vr(PKx+4*k,4)}, v{vL16}, {WS}, s41 offen offset:{1024*k} {SC}")
    ldE = [f"buffer_load_dwordx4 {vr(EXR+4*k,4)}, v{vL16}, {WS}, s40 offen offset:{1024*k} {SC}" for k in range(4)]
    a.ext(ldE)
    def addp(src, sc=None):
        for i in range(16):
            t = TU + 2 * (i & 3); d = vr(A2 + 2 * i, 2)
            a(f"v_lshlrev_b32 v{t}, 16, v{src+i}\nv_and_b32 v{t+1}, 0xffff0000, v{src+i}")
            a(f"v_pk_fma_f32 {d}, {vr(t,2)}, {vr(sc,2)}, {d}" if sc else f"v_pk_add_f32 {d}, {d}, {vr(t,2)}")
    a(f"""
    v_mov_b32 v216, {fhex(2.0**-20)}
    v_mov_b32 v217, {fhex(2.0**-20)}
    v_subrev_u32 v218, {S}, v{vX0}
    v_subrev_u32 v219, {S}, v{vX1}
    v_lshrrev_b32 v220, 4, v0
    s_lshl_b32 s50, s43, 7
    s_add_u32 s50, s50, s94
    s_add_u32 s50, s50, {WR_}
    v_lshl_add_u32 v220, v220, 3, s50
    """)
    a.ext(tr("y", "pre_e")); a("s_barrier"); a.ext(tr("y", "e"))
    for t in range(4): a(f"ds_read_b64 {vr(XT+16+2*t,2)}, v220 offset:{32*t}")
    for x in range(2):
        for t in range(4): a(f"ds_read_b64 {vr(XT+8*x+2*t,2)}, v{218+(t&1)} offset:{2048*x+1024*(t>>1)}")
    for x in range(2):
        for t in range(4): a(f"ds_read_b64 {vr(BV+8*x+2*t,2)}, v{vX1 if t >> 1 else vX0} offset:{2048*x+1024*(t&1)}")
    a("s_waitcnt lgkmcnt(8)")
    for i in range(8):
        t = TU + 2 * (i & 3)
        a(f"v_lshlrev_b32 v{t}, 16, v{XT+16+i}\nv_and_b32 v{t+1}, 0xffff0000, v{XT+16+i}")
        for u in range(2): a(f"v_pk_add_f32 {vr(A2+16*u+2*i,2)}, {vr(A2+16*u+2*i,2)}, {vr(t,2)}")
    addp(XT)
    a("s_waitcnt lgkmcnt(0)")
    addp(BV, 216)
    l1 = a.label("pe"); ok = a.label("oke")
    a(f"s_mov_b32 s54, {BOUND}\n{l1}:\ns_waitcnt vmcnt(0)")
    for i in range(5): a(f"v_max3_u32 v{TU+i}, v{EXR+3*i}, v{EXR+3*i+1}, v{EXR+3*i+2}")
    a(f"""
    v_max3_u32 v{TU}, v{TU}, v{TU+1}, v{TU+2}
    v_max3_u32 v{TU+3}, v{TU+3}, v{TU+4}, v{EXR+15}
    v_max_u32 v{TU}, v{TU}, v{TU+3}
    v_cmp_eq_u32 vcc, -1, v{TU}
    s_cbranch_vccz {ok}
    s_sub_u32 s54, s54, 1
    s_cbranch_scc1 {ok}
    """)
    a.ext(ldE)
    a(f"s_branch {l1}\n{ok}:"); a.ext(tr("y", "ex"))
    addp(EXR)
    for i in range(16): a(f"v_cvt_pk_bf16_f32 v{PKx+i}, v{A2+2*i}, v{A2+1+2*i}")
    for k in range(4): a(f"v_permlane16_swap_b32 v{PKx+4*k}, v{PKx+4*k+2}\nv_permlane16_swap_b32 v{PKx+4*k+1}, v{PKx+4*k+3}")
    for k in range(4):
        if k == 2: a("s_add_u32 s42, s42, 32768")
        a(f"buffer_store_dwordx4 {vr(PKx+4*k,4)}, v{vO}, s[24:27], s42 offen offset:{64*(k&1)} {os.environ.get('OSC', 'sc1')}")
    a.ext(tr("y", "st"))
    if opt("TRACE"): a("s_waitcnt vmcnt(0)")
    a.ext(tr("y", "done") + tr("y", "END"))
    a(f"{END}:\ns_endpgm")

def dotrace(lines):
    import json
    out = []; N = {"x": ["start"], "y": ["start"]}; R = {"x": 220, "y": 26}
    for l in lines:
        p = l.split()
        if p and p[0] == "TRACE":
            r = p[1]; i = len(N[r]) - 1
            out += ["    s_waitcnt lgkmcnt(0)", f"    v_writelane_b32 v{R[r] + i // 64}, s58, {i % 64}"]
            if p[2] == "END":
                out += [f"    {x}" for x in L(f"""
                s_lshl_b32 s55, s2, 3
                s_add_u32 s55, s55, s38
                s_lshl_b32 s55, s55, 9
                s_add_u32 s55, s55, {STAMP_OFF + MB}
                v_mbcnt_lo_u32_b32 v2, -1, 0
                v_mbcnt_hi_u32_b32 v2, -1, v2
                v_lshlrev_b32 v2, 2, v2
                buffer_store_dword v{R[r]}, v2, {WS}, s55 offen
                buffer_store_dword v{R[r]+1}, v2, {WS}, s55 offen offset:256
                """)]
            else:
                out.append(f"    s_mem{'real' if opt('TRACE') == 2 else ''}time s[58:59]"); N[r].append(p[2])
        else: out.append(l)
    json.dump(N, open("trace.json", "w"))
    return out

def build(aslist=False, extra=None):
    import hazard
    a = Asm()
    name = "f_kernel" if aslist else NAME + "_kernel"
    fused(a, name)
    Ls = [f"; @launch {'kernel='+name+' ' if aslist else ''}grid=(256,1,1) block=(512,1,1) lds=163840"]; D = [kernel_desc(name, 256)]
    if extra:
        l, d = extra(a); Ls.append(l); D.append(d)
    xk = [f";@{t}" for t in os.environ.get("XKILL", "").split(",") if t]
    a.lines = [l for l in a.lines if not any(l.rstrip().endswith(t) for t in xk)]
    a.lines = dotrace(resolve(a.lines))
    a.lines, n = hazard.fix(a.lines, verbose=bool(opt('HZV')))
    print("hazard pads", n, "lines", len(a.lines))
    head = "; generated by dev/fused.py\n" + "\n".join(Ls) + "\n" + '.amdgcn_target "amdgcn-amd-amdhsa--gfx950"\n'
    return head + a.text() + "".join(D)

if __name__ == "__main__":
    ex = None
    if os.environ.get("PROBE"):
        import probe
        pr = [int(x) for x in os.environ["PROBE"].split(",")]
        ex = lambda a: probe.probe2(a, "pr_kernel", *pr)
    open(sys.argv[1], "w").write(build(aslist=bool(opt("LIST")) or ex is not None, extra=ex))
```

```python
import sys, json
from common import *
src, dst, M, key, kind, sel = sys.argv[1], sys.argv[2], int(sys.argv[3]), sys.argv[4], sys.argv[5], sys.argv[6].split(",")
N = json.load(open("trace.json"))
a = Asm(); kernel_begin(a, "pr_kernel")
a(f"""
s_cmp_lg_u32 s2, 0
s_cbranch_scc1 pr_end
s_load_dwordx4 s[4:7], s[0:1], 72
v_lshlrev_b32 v1, 12, v0
v_lshlrev_b32 v2, 2, v0
v_mov_b32 v3, 0
v_mov_b32 v4, -1
ds_write_b32 v2, v3
s_waitcnt lgkmcnt(0)
s_barrier
v_mov_b32 v5, 512
ds_write_b32 v5, v4
s_mov_b32 s8, s6
s_mov_b32 s9, s7
s_mov_b32 s10, {256*MB}
s_mov_b32 s11, 0x20000
s_mov_b32 s12, s4
s_mov_b32 s13, s5
s_mov_b32 s14, 256
s_mov_b32 s15, 0x20000
s_mov_b32 s16, {STAMP_OFF + MB}
""")
for w in range(8): a(f"buffer_load_dword v{8+w}, v1, s[8:11], s16 offen offset:{w*512}")
a("s_waitcnt vmcnt(0) lgkmcnt(0)\ns_barrier")
for w in range(1, 8): a(f"v_min_u32 v8, v8, v{8+w}")
a("ds_min_u32 v5, v8\ns_waitcnt lgkmcnt(0)\ns_barrier\nds_read_b32 v6, v5\ns_waitcnt lgkmcnt(0)")
for k, nm in enumerate(sel):
    r, n = nm.split(".")
    i = N[r].index(n); w0 = 0 if r == "x" else 4
    for w in range(4): a(f"buffer_load_dword v{8+w}, v1, s[8:11], s16 offen offset:{(w0+w)*512+4*i}")
    a(f"s_waitcnt vmcnt(0)\nv_max_u32 v8, v8, v9\nv_max3_u32 v8, v8, v10, v11\nv_sub_u32 v8, v8, v6\nds_max_u32 v3, v8 offset:{4*k}\nds_add_u32 v3, v8 offset:{64+4*k}")
ki = sel.index(key)
a(f"""
s_waitcnt lgkmcnt(0)
s_barrier
v_cmp_gt_u32 vcc, 64, v0
s_cbranch_vccz pr_end
v_and_b32 v2, 60, v2
ds_read_b32 v8, v2
ds_read_b32 v9, v2 offset:64
s_waitcnt lgkmcnt(0)
v_lshrrev_b32 v9, 8, v9
v_mul_u32_u24 v10, 10000, v9
v_add_u32 v10, v10, v8
buffer_store_dword v10, v2, s[12:15], 0 offen
v_readlane_b32 s20, v{8 if kind == 'max' else 9}, {ki}
s_memrealtime s[22:23]
s_min_u32 s20, s20, 10000
s_mul_i32 s20, s20, {M}
s_mov_b32 s21, 0
s_waitcnt lgkmcnt(0)
pr_l:
s_memrealtime s[24:25]
s_add_u32 s21, s21, 1
s_waitcnt lgkmcnt(0)
s_sub_u32 s26, s24, s22
s_cmp_ge_u32 s21, 2000000
s_cbranch_scc1 pr_end
s_cmp_lt_u32 s26, s20
s_cbranch_scc1 pr_l
pr_end:
s_endpgm
""")
t = open(src).read().split("\n")
i = max(j for j, l in enumerate(t) if l.startswith("; @launch"))
t.insert(i + 1, "; @launch kernel=pr_kernel grid=(1,1,1) block=(256,1,1) lds=1024")
j = min(j for j, l in enumerate(t) if l.startswith(".section .rodata"))
open(dst, "w").write("\n".join(t[:j]) + "\n" + a.text() + "\n".join(t[j:]) + kernel_desc("pr_kernel", 16))
```

```python
import sys, os, re
from common import *
import common
from sched import *
from spec import nk, trig, sink_f32, sink_pack, cmul, rbf, ror_reduce

PITCH = 16640
H_OFF = 0; P_OFF = 16 * MB; WT_OFF = 21 * MB; Q_OFF = 26 * MB; BASE_OFF = 31 * MB; EX_OFF = 35 * MB
CS_OFF = 39 * MB; ST_OFF = CS_OFF + 0x40000; C2_OFF = ST_OFF + 0x2000; HF_OFF = ST_OFF + 0x20000; DF_OFF = HF_OFF + 0x20000; CF_OFF = DF_OFF + 0x20000
FS = 2 + opt("FS", 0); FH = 2 + opt("FH", 0); C3_OFF = CF_OFF + (1024 << FS)
HP = 57344
STG = 45056; S = 3 * STG; PL = 4352; TFR = S + 4 * PL; TFI = TFR + 4096; EPA = TFI + 4096; EPS = EPA + 2048
TB = 2 * STG
TD = 131072
PRG = EPS + 512
WG_ = 49152
WR_ = 65536
WS, XS, W2S = "s[4:7]", "s[8:11]", "s[12:15]"
SC = "sc1"
HSC = os.environ.get("HSC", "sc1").replace("none", "")
BOUND = opt('BOUND', 20000); SB = 50 * BOUND
KILL = os.environ.get('KILL', '').split(',')
def killed(l):
    op = l.split()[0]
    c = 'mf' if op.startswith('v_mfma') else 'va' if op.startswith('v_') and not op.startswith('v_cmp') else 'ds' if op.startswith('ds_') else 'at' if 'atomic' in op else 'st' if 'store' in op else 'ld' if op.startswith('buffer') else ''
    return c and c in KILL
NS = [nk(r) for r in range(16)]

def mksrd(d, p, n):
    return L(f"s_mov_b32 s{d}, s{p}\ns_mov_b32 s{d+1}, s{p+1}\ns_mov_b32 s{d+2}, {n}\ns_mov_b32 s{d+3}, 0x20000")

def fused(a, name):
    for Q in range(112): assert (Q * 147) >> 10 == Q // 7
    UN = (lambda k, g: [y for x in g for y in unpk(x)]) if opt("UNPK", 1) else (lambda k, g: g)
    TR = {"x": [], "y": []}
    global TRN; TRN = TR
    def tr(role, nm):
        sel = os.environ.get("TRSEL")
        if sel and nm != "END" and nm not in sel.split(","): return []
        return [f"TRACE {role} {nm}"] if opt("TRACE") else []
    def poll(load, cmp, tag):
        l1 = a.label("pl"); ok = a.label("ok")
        return L(f"""
        WAITV {tag}
        s_mov_b32 s54, {BOUND}
        {l1}:
        {cmp}
        s_cbranch_vccz {ok}
        s_sub_u32 s54, s54, 1
        s_cbranch_scc1 {ok}
        {load} ;@cond
        s_waitcnt vmcnt(0)
        s_branch {l1}
        {ok}:
        """)
    def mprio(ls, base=0):
        if not opt("MP", 3): return ls
        o = []
        for i, l in enumerate(ls):
            m = l.startswith("v_mfma")
            if m and not (i and ls[i - 1].startswith("v_mfma")): o.append(f"s_setprio {opt('MP', 3)}")
            o.append(l)
            if m and not (i + 1 < len(ls) and ls[i + 1].startswith("v_mfma")): o.append(f"s_setprio {base}")
        return o
    def cfpoll(d):
        return L(f"""
        s_bfe_u32 s{d}, s35, 0x20004
        s_lshl_b32 s{d}, s{d}, 2
        s_add_u32 s{d}, s{d}, s3
        s_lshl_b32 s{d}, s{d}, {6+FS}
        s_add_u32 s{d}, s{d}, {CF_OFF}
        """)
    def plane_rd(D, adr, step=4):
        o = []; pp = PL // 256
        for n in range(4):
            for c in range(2):
                r, k = adr[min(n, len(adr) - 1)], step * n
                o.append(f"ds_read2st64_b32 {vr(D+4*n+2*c,2)}, v{r} offset0:{2*c*pp+k} offset1:{(2*c+1)*pp+k}")
        return o
    def plane_st(D, vo, off, tag, r=53):
        o = [L(f"s_mul_i32 s{r}, s35, {PITCH}\ns_add_u32 s{r}, s{r}, {off}\ns_waitcnt lgkmcnt(0)")]
        for n in range(4):
            o.append([f"buffer_store_dwordx4 {vr(D+4*n,4)}, v{vo}, {WS}, s{r} offen {SC} ;@{tag}"] + ([f"s_add_u32 s{r}, s{r}, 4096"] if n < 3 else []))
        return o
    def gather(vq, off, lds, tag):
        o = [L(f"""
        s_mul_i32 s55, s3, {64*PITCH}
        s_lshl_b32 s52, s35, 6
        s_add_u32 s55, s55, s52
        s_add_u32 s55, s55, {off}
        """)]
        for n in range(4):
            o.append([f"s_add_u32 m0, s94, {lds+1024*n}"] + ([f"s_add_u32 s55, s55, {16*PITCH}"] if n else []) +
                     [f"buffer_load_dwordx4 v{vq}, {WS}, s55 offen {SC} lds ;@{tag}"])
        return o
    def w2addr(VW2, ln, t):
        o = L(f"""
        v_lshrrev_b32 v{t}, 4, v{ln}
        v_bfe_u32 v{t+1}, v{ln}, 1, 3
        v_and_b32 v{t+2}, 1, v{ln}
        v_lshlrev_b32 v{t+2}, 4, v{t+2}
        """)
        for n in range(4):
            o += L(f"""
            v_add_u32 v{VW2+n}, {4*n}, v{t}
            v_and_b32 v{t+3}, 7, v{VW2+n}
            v_xor_b32 v{t+3}, v{t+3}, v{t+1}
            v_lshl_add_u32 v{t+3}, v{t+3}, 5, v{t+2}
            v_lshl_add_u32 v{VW2+n}, v{VW2+n}, 11, v{t+3}
            """)
            if n: o.append(f"v_subrev_u32 v{VW2+n}, {1024*n}, v{VW2+n}")
        return o
    def g2bases():
        return L(f"""
        s_lshl_b32 s94, s3, 12
        s_lshl_b32 s50, s32, 1
        s_add_u32 s50, s50, s34
        s_mul_i32 s50, s50, {8*HP}
        s_add_u32 s48, s50, s94
        s_lshr_b32 s51, s3, 1
        s_and_b32 s52, s3, 1
        s_mul_i32 s92, s51, {HP}
        s_add_u32 s92, s92, s50
        s_lshl_b32 s53, s52, 12
        s_add_u32 s92, s92, s53
        s_add_u32 s92, s92, {49152}
        s_mul_i32 s50, s34, {1792*2048}
        s_lshl_b32 s53, s33, 8
        s_add_u32 s50, s50, s53
        s_lshl_b32 s49, s51, 18
        s_add_u32 s49, s49, s50
        s_lshl_b32 s53, s52, 15
        s_add_u32 s49, s49, s53
        s_mul_i32 s93, s51, {224*2048}
        s_add_u32 s93, s93, s50
        s_lshl_b32 s53, s52, 14
        s_add_u32 s93, s93, s53
        s_add_u32 s93, s93, {96*2048}
        """)
    def g2step(i):
        if i < 3: return (i, 0)
        if i < 24: return ((i - 3) // 7, (i - 3) % 7 + 1)
        return (3, i - 24)
    env2 = lambda k, d: [tuple(int(y) for y in x.split(":")) for x in os.environ.get(k, d).split(",") if x]
    q4 = lambda *b: [x + 4 * n for x in b for n in range(4 // len(b))]
    XPR = [q4(0), q4(16), q4(32), q4(48), q4(96), q4(160), q4(176)]; XPM = [3, 3, 5, 5, 8, 8, 8]
    YPR = [q4(200), q4(216), q4(32), q4(48), q4(232), q4(192, 248)]
    XPG = [int(x) for x in os.environ.get("XPG", "").split(",") if x]
    PRE = {4 + n: XPR[n] for n in range(len(XPG))}; NYP = opt("NYP", 0); Y0 = opt("YP0", 4 + len(XPG))
    YPRE = {Y0 + n: YPR[n] for n in range(NYP)}; assert Y0 >= 4 + len(XPG)
    for n, g in enumerate(XPG): assert g >= XPM[n]
    wwr = lambda i, R, va: [f"ds_write_b128 v{va}, {vr(R[n],4)} offset:{16384*(i%4)+1024*n}" for n in range(4)]
    def g2issue(i, VW2, VH, doW=True, doH=True, reg=None):
        tp, d = g2step(i); slot = i % 4
        if opt("G2X") and i >= 7: tp, d = g2step(3 + i % 4)
        if tp < 3:
            pre = L(f"""
            s_cmp_lt_u32 s33, {d}
            s_cselect_b32 s95, {d}, {d-1}
            """) if d and opt("ORD2", 1) else L(f"""
            s_add_u32 s95, s33, {d}
            s_and_b32 s95, s95, 7
            """)
            pre += L(f"""
            s_mul_i32 s96, s95, {8*HP}
            s_mul_i32 s95, s95, {HP}
            s_add_u32 s96, s96, s49
            s_add_u32 s95, s95, s48
            """)
            if tp: pre += L(f"s_add_u32 s96, s96, {65536*tp}\ns_add_u32 s95, s95, {16384*tp}")
        else:
            pre = [f"s_mov_b32 s95, {2*d}"] if opt("ORD2", 1) else L(f"""
            s_add_u32 s95, s33, {2*d}
            s_and_b32 s95, s95, 6
            """)
            pre += L(f"""
            s_mul_i32 s96, s95, {8*HP}
            s_mul_i32 s95, s95, {HP}
            s_add_u32 s96, s96, s93
            s_add_u32 s95, s95, s92
            """)
        G = []
        if doH:
            for n in range(4):
                g = [f"s_add_u32 m0, s94, {16384*slot}"] + (pre if n == 0 else [])
                G.append(g + [f"buffer_load_dwordx4 v{VH}, {WS}, s95 offen offset:{1024*n} {'' if opt('G2H') else SC} lds ;@g{i}"])
            pre = []
        if doW and not reg and i in PRE: G += [[f"WAITV pw{i}", w] for w in wwr(i, PRE[i], 200)]
        elif doW and (reg or i not in YPRE):
            for n in range(4):
                g = ([] if reg else [f"s_add_u32 m0, s94, {WR_+16384*slot}"]) + (pre if n == 0 else [])
                if n == 2 and tp == 3: g.append("s_add_u32 s96, s96, 16384")
                if reg: G.append(g + [f"buffer_load_dwordx4 {vr(reg[n],4)}, v{VW2+n}, {W2S}, s96 offen offset:{1024*n} ;@pw{i}"]); continue
                if opt("G2W") and i >= 7 and n == 0: g += ["s_lshl_b32 s53, s33, 12", "s_add_u32 s96, s96, s53"]
                G.append(g + [f"buffer_load_dwordx4 v{VH if opt('G2W') and i >= 7 else VW2+n}, {W2S}, s96 offen offset:{1024*n} lds ;@g{i}"])
        return G

    VX, VW = 2, 6
    def g1addr(T):
        ax = L(f"""
        v_lshrrev_b32 v{T+5}, 3, v0
        s_lshl_b32 s50, s3, 5
        v_add_u32 v{T+5}, s50, v{T+5}
        v_and_b32 v{T}, 7, v0
        """)
        for n in range(4):
            ax += L(f"""
            v_add_u32 v{T+1}, {8*n}, v{T+5}
            v_bfe_u32 v{T+2}, v{T+1}, 1, 3
            v_xor_b32 v{T+2}, v{T+2}, v{T}
            v_lshlrev_b32 v{T+2}, 4, v{T+2}
            v_lshl_add_u32 v{VX+n}, v{T+1}, 11, v{T+2}
            """)
            if n: ax.append(f"v_subrev_u32 v{VX+n}, {1024*n}, v{VX+n}")
        ax += L(f"v_lshrrev_b32 v{T+5}, 2, v0\nv_and_b32 v{T}, 3, v0\nv_lshlrev_b32 v{T}, 4, v{T}\ns_movk_i32 s51, {7168-448}")
        aw = []
        for n in range(7):
            aw.append(L(f"""
            v_add_u32 v{T+1}, {16*n}, v{T+5}
            v_mul_u32_u24 v{T+2}, 147, v{T+1}
            v_lshrrev_b32 v{T+2}, 10, v{T+2}
            v_and_b32 v{T+4}, 8, v{T+2}
            v_lshlrev_b32 v{T+4}, 2, v{T+4}
            v_xor_b32 v{T+4}, v{T+4}, v{T}
            v_mad_u32_u24 v{T+4}, v{T+2}, s51, v{T+4}
            v_lshl_add_u32 v{VW+n}, v{T+5}, 6, v{T+4}
            """) + ([f"v_add_u32 v{VW+n}, 4096, v{VW+n}"] if n >= 4 else []))
        return ax, aw
    nxt = L(f"""
    s_and_b32 s42, s42, 15
    s_lshl_b32 s43, s42, 7
    s_add_u32 s43, s43, s40
    s_mul_i32 s44, s42, {64*7168}
    s_add_u32 s44, s44, s41
    s_add_u32 s42, s42, 1
    """)
    def g1scal(first):
        return L(f"""
        s_lshl_b32 s40, s32, 18
        s_mul_i32 s41, s36, 448
        s_mul_i32 s45, s3, {16*7168}
        s_add_u32 s41, s41, s45
        s_and_b32 s42, s32, 12
        s_add_u32 s42, s42, {first}
        s_lshl_b32 s94, s3, 12
        s_mul_i32 s45, s3, 7168
        s_add_u32 s45, s45, 16384
        """) + nxt
    def g1issue(i):
        o = (i % 3) * STG; G = []
        for n in range(4):
            G.append([f"s_add_u32 m0, s94, {o}", f"buffer_load_dwordx4 v{VX+n}, {XS}, s43 offen offset:{1024*n} lds ;@s{i}"])
        for n in range(7):
            G.append([f"s_add_u32 m0, s45, {o + 4096*(n//4)}", f"buffer_load_dwordx4 v{VW+n}, s[16:19], s44 offen offset:{1024*(n%4)} lds ;@s{i}"])
        G[-1] += nxt
        return G
    def flagaddr(h, c, d, co):
        return L(f"""
        s_lshl_b32 s97, s32, 1
        s_add_u32 s97, s97, s34
        s_lshl_b32 s97, s97, {5+FH}
        s_add_u32 s97, s97, {HF_OFF}
        s_lshl_b32 s{h}, s33, 2
        s_add_u32 s{h}, s{h}, s3
        s_lshl_b32 s{h}, s{h}, {FH}
        s_add_u32 s{h}, s{h}, s97
        s_lshl_b32 s{c}, s3, 8
        s_add_u32 s{c}, s{c}, s35
        s_lshl_b32 s{c}, s{c}, {FS}
        s_add_u32 s{c}, s{c}, {co}
        s_lshl_b32 s{d}, s37, {FH}
        s_add_u32 s{d}, s{d}, {DF_OFF}
        """)

    kernel_begin(a, name)
    END = a.label("end"); YR = a.label("yrole")
    a(f"s_cmp_ge_u32 s2, 256\ns_cbranch_scc1 {END}")
    if opt("TRACE"): a(f"s_mem{'real' if opt('TRACE') == 2 else ''}time s[58:59]")
    a(f"""
    s_load_dwordx16 s[64:79], s[0:1], 0
    s_load_dwordx4 s[80:83], s[0:1], 64
    s_load_dwordx2 s[84:85], s[0:1], 80
    v_lshrrev_b32 v1, 6, v0
    s_and_b32 s34, s2, 1
    s_bfe_u32 s32, s2, 0x20001
    v_readfirstlane_b32 s38, v1
    s_lshl_b32 s32, s32, 2
    s_lshr_b32 s33, s2, 6
    s_add_u32 s32, s32, s33
    s_bfe_u32 s33, s2, 0x30003
    s_lshl_b32 s36, s34, 3
    s_add_u32 s36, s36, s33
    s_xor_b32 s35, s2, s33
    s_and_b32 s35, s35, 1
    s_mul_i32 s35, s35, 9
    s_xor_b32 s35, s35, s2
    s_and_b32 s3, s38, 3
    s_lshr_b32 s37, s35, 5
    s_lshl_b32 s37, s37, 2
    s_add_u32 s37, s37, s3
    s_lshl_b32 s37, s37, 5
    s_and_b32 s39, s35, 31
    s_add_u32 s37, s37, s39
    s_cmp_ge_u32 s38, 4
    s_cbranch_scc1 {YR}
    """)
    vL16, VW2, vPm, vF, vL4, vQ, vO, vC, ph, sg, vBO, vBG, one = 240, 241, 245, 246, 247, 248, 249, 250, 251, 252, 253, 254, 255
    F = [112, 156]
    vAe, vAo, vA6, vB0, vB1, vHW, vHO, vLn = 200, 201, 202, 203, 204, 205, 206, 223
    GO = 224; T0 = 40
    acc = lambda t, u: 4 * (4 * t + u)
    a("VMRESET")
    ax, aw = g1addr(28)
    a("v_and_b32 v0, 63, v0")
    l31, hh, kf, bs, TT_, Q0 = 60, 61, 62, 63, 64, 80
    tb = L(f"""
    v_and_b32 v{l31}, 31, v0
    v_lshrrev_b32 v{hh}, 5, v0
    s_lshl_b32 s52, s3, 3
    v_cvt_f32_u32 v{kf}, v{l31}
    v_lshl_add_u32 v{bs}, v{hh}, 2, s52
    v_cvt_f32_u32 v{bs}, v{bs}
    v_mul_f32 v{kf}, {fhex(1/32)}, v{kf}
    v_lshlrev_b32 v{vL16}, 4, v0
    v_mul_f32 v{bs}, v{bs}, v{kf}
    s_lshl_b32 s52, s3, 10
    s_add_u32 s53, s52, {TFR}
    s_add_u32 s52, s52, {TB}
    """)
    tb += trig(kf, bs, [0, 1, 2, 3], TT_, sink_pack([(Q0, "c", "s"), (Q0 + 4, "-s", "c")]))
    tb += L(f"""
    v_add_u32 v{Q0+20}, s53, v{vL16}
    v_add_u32 v{Q0+21}, s52, v{vL16}
    v_mul_f32 v{Q0+22}, {fhex(1/32)}, v{kf}
    v_mul_f32 v{Q0+23}, {fhex(1/32)}, v{bs}
    ds_write_b128 v{Q0+20}, {vr(Q0,4)}
    ds_write_b128 v{Q0+20}, {vr(Q0+4,4)} offset:4096
    """)
    tb += trig(Q0 + 22, Q0 + 23, [0, 1, 2, 3], TT_, sink_f32(Q0 + 8, Q0 + 12))
    tb += L(f"""
    s_lshr_b32 s52, s3, 1
    s_and_b32 s53, s3, 1
    s_lshl_b32 s54, s52, 2
    s_add_u32 s54, s54, s53
    s_lshl_b32 s54, s54, 2
    v_lshl_add_u32 v{bs}, v{hh}, 3, s54
    v_cvt_f32_u32 v{bs}, v{bs}
    s_lshl_b32 s52, s52, 7
    s_add_u32 s52, s52, s53
    s_lshl_b32 s52, s52, 3
    s_add_u32 s52, s52, {TB + 8192}
    v_mul_f32 v{bs}, v{bs}, v{kf}
    ds_write_b128 v{Q0+21}, {vr(Q0+8,4)}
    ds_write_b128 v{Q0+21}, {vr(Q0+12,4)} offset:4096
    v_add_u32 v{Q0+20}, s52, v{vL16}
    """)
    def s1(grp, T_):
        o = []
        for x in range(4): o += [f"v_cos_f32 v{T_+4+x}, v{T_+x}", f"v_sin_f32 v{T_+8+x}, v{T_+x}"]
        for x in (0, 2):
            o.append(f"v_cvt_pk_bf16_f32 v{Q0+16+x//2}, v{T_+4+x}, v{T_+5+x}")
            o.append(f"v_cvt_pk_bf16_f32 v{Q0+18+x//2}, -v{T_+8+x}, -v{T_+9+x}")
        return o
    tb += trig(kf, bs, [0, 1, 2, 3], TT_, s1)
    tb += L(f"ds_write_b64 v{Q0+20}, {vr(Q0+16,2)}\nds_write_b64 v{Q0+20}, {vr(Q0+18,2)} offset:2048")
    n0 = opt("XT0", 0)
    SELF = opt("SELF", 1)
    SM = {40: 60, 41: 61, 42: 62, 43: 63, 44: 86, 45: 87}
    def ren(ls):
        o = []
        for l in ls:
            l = re.sub(r"\bs(4[0-5])\b(?!.*;@\.)", lambda m: f"s{SM[int(m.group(1))]}", l)
            o.append(re.sub(r"\bv(\d+)\b", lambda m: f"v{int(m.group(1)) + 205}" if 2 <= int(m.group(1)) <= 12 else m.group(0), l))
        return o
    g1x = lambda i: [ren(g) for g in g1issue(i)]
    a.ext(ren(ax + g1scal(0) + sum(aw, [])) + tb[:n0])
    a("s_waitcnt lgkmcnt(0)")
    a.ext(tr("x", "karg"))
    a.ext(mksrd(8, 64, 4 * MB) + mksrd(16, 72, 1024 * 7168))
    nb = opt("XN0", 11); G01 = g1x(0) + g1x(1)
    a.ext(weave(G01[:nb], [[l] for l in tb[n0:]], opt("XFR0", 30) / 100))
    a.ext(tr("x", "iss1"))
    a("s_waitcnt lgkmcnt(0)\ns_barrier")
    a.ext(tr("x", "t"))
    mark0 = len(a.lines)
    a(f"""
    s_and_b32 s43, s3, 1
    s_lshr_b32 s44, s3, 1
    v_mov_b32 v{vLn}, v0
    v_lshrrev_b32 v{T0}, 4, v0
    v_bfe_u32 v{T0+1}, v0, 2, 2
    v_lshl_add_u32 v{T0+1}, v{T0}, 3, v{T0+1}
    v_mul_u32_u24 v{T0+1}, 448, v{T0+1}
    v_and_b32 v{T0+2}, 3, v0
    v_lshl_add_u32 v{T0+1}, v{T0+2}, 3, v{T0+1}
    v_add_u32 v{T0+1}, 16384, v{T0+1}
    v_and_b32 v{T0+2}, 1, v{T0}
    v_lshlrev_b32 v{T0+3}, 5, v{T0+2}
    s_lshl_b32 s51, s43, 8
    v_add_u32 v{T0+4}, s51, v{T0+1}
    v_add_u32 v{vAe}, v{T0+4}, v{T0+3}
    v_sub_u32 v{vAo}, v{T0+4}, v{T0+3}
    v_xor_b32 v{T0+2}, s43, v{T0+2}
    v_lshl_add_u32 v{vA6}, v{T0+2}, 5, v{T0+1}
    v_add_u32 v{vA6}, 192, v{vA6}
    v_and_b32 v{T0+2}, 15, v0
    v_bfe_u32 v{T0+3}, v0, 1, 3
    v_xor_b32 v{T0+3}, v{T0+3}, v{T0}
    v_lshlrev_b32 v{T0+3}, 4, v{T0+3}
    v_lshl_add_u32 v{vB0}, v{T0+2}, 7, v{T0+3}
    s_lshl_b32 s51, s44, 13
    v_add_u32 v{vB0}, s51, v{vB0}
    v_xor_b32 v{vB1}, 64, v{vB0}
    s_lshl_b32 s50, s43, 13
    s_lshl_b32 s51, s44, 12
    s_add_u32 s50, s50, s51
    v_add_u32 v{vHW}, s50, v{vL16}
    s_lshl_b32 s50, s43, 9
    s_add_u32 s50, s50, s51
    v_lshl_add_u32 v{vHO}, v{l31}, 4, s50
    v_lshl_add_u32 v{vHO}, v{hh}, 10, v{vHO}
    v_lshlrev_b32 v{vL4}, {FH}, v{l31}
    """)
    a.ext(mksrd(4, 84, 256 * MB) + mksrd(12, 76, 3584 * 2048) + w2addr(VW2, vLn, T0) + g2bases())
    a.ext(flagaddr(40, 41, 42, C3_OFF))
    a(f"""
    s_lshl_b32 s45, s32, 4
    s_add_u32 s45, s45, s36
    s_mul_i32 s45, s45, {HP}
    v_lshlrev_b32 v{vBO}, 5, v{l31}
    v_lshl_add_u32 v{vBO}, v{hh}, 4, v{vBO}
    v_lshrrev_b32 v{vQ}, 2, v0
    v_lshlrev_b32 v{vBG}, 11, v{vQ}
    v_mul_u32_u24 v{vQ}, {PITCH}, v{vQ}
    v_and_b32 v{T0+4}, 3, v0
    v_lshl_add_u32 v{vQ}, v{T0+4}, 4, v{vQ}
    v_lshrrev_b32 v{T0+5}, 4, v0
    v_xor_b32 v{T0+4}, v{T0+4}, v{T0+5}
    v_lshl_add_u32 v{vBG}, v{T0+4}, 4, v{vBG}
    v_bfe_u32 v{vC}, v0, 2, 2
    v_xor_b32 v{vC}, s3, v{vC}
    v_lshlrev_b32 v{vC}, 4, v{vC}
    v_lshl_add_u32 v{vC}, v{l31}, 6, v{vC}
    v_lshl_add_u32 v{vC}, v{hh}, 12, v{vC}
    v_add_u32 v{vC}, {S}, v{vC}
    v_lshlrev_b32 v{sg}, 31, v0
    v_xor_b32 v{sg}, 1.0, v{sg}
    s_lshl_b32 s98, s37, 11
    s_add_u32 s99, s98, {2*MB}
    v_cmp_gt_u32 vcc, 32, v0
    v_and_b32 v{kf}, 19, v{l31}
    v_bfe_u32 v{bs}, v{l31}, 2, 1
    v_cndmask_b32 v{sg}, 0, v{sg}, vcc
    v_lshl_or_b32 v{kf}, v{bs}, 3, v{kf}
    v_bfe_u32 v{bs}, v{l31}, 3, 1
    v_lshl_or_b32 v{kf}, v{bs}, 2, v{kf}
    v_lshlrev_b32 v{vPm}, 4, v{kf}
    v_lshl_or_b32 v{vPm}, v{hh}, 9, v{vPm}
    v_cvt_f32_u32 v{kf}, v{kf}
    v_cvt_f32_u32 v{bs}, v{hh}
    v_cvt_f32_u32 v{ph}, s37
    v_mul_f32 v{kf}, {fhex(1/32)}, v{kf}
    v_mul_f32 v{bs}, 4.0, v{bs}
    v_mul_f32 v{ph}, {fhex(1/2048)}, v{ph}
    v_fma_f32 v{bs}, v{bs}, v{kf}, v{ph}
    s_bfe_u32 s100, s35, 0x20004
    s_lshl_b32 s100, s100, 2
    s_add_u32 s100, s100, s3
    s_lshl_b32 s100, s100, {6+FS}
    s_add_u32 s100, s100, {C3_OFF}
    """)
    a.ext(trig(kf, bs, NS[:8], TT_, sink_pack([(GO, "-s", "c"), (GO + 8, "c", "s")])))
    su = [l.strip() for l in a.lines[mark0:]]; del a.lines[mark0:]
    n1 = len(su) * opt("XS0", 100) // 100
    a.ext(su[:n1] + weave(G01[nb:], [[l] for l in su[n1:]], 1.0))
    def reads(f, sub):
        vb = vB1 if sub else vB0
        def rdA(t):
            base = vA6 if t == 6 else (vAo if t & 1 else vAe)
            imm = (0 if t == 6 else 32 * t) + sub * 14336
            return [f"ds_read_b64_tr_b16 {vr(f+4*t,2)}, v{base} offset:{imm}",
                    f"ds_read_b64_tr_b16 {vr(f+4*t+2,2)}, v{base} offset:{imm+1792}"]
        rdB = lambda u: f"ds_read_b128 {vr(f+28+4*u,4)}, v{vb} offset:{2048*u}"
        o = rdA(0) + [rdB(u) for u in range(4)]
        for t in range(1, 7): o += rdA(t)
        return o
    snake = lambda nt, nu: [(t, u if t % 2 == 0 else nu - 1 - u) for t in range(nt) for u in range(nu)]
    def mf(f, z=None):
        return [mfma16(acc(t, u), f + 4 * t, f + 28 + 4 * u, z) for t, u in snake(7, 4)]
    upd = [f"v_add_u32 v{r}, s46, v{r}" for r in (vAe, vAo, vA6, vB0, vB1)]
    adv = L(f"""
    s_add_u32 s50, s50, {STG}
    s_cmp_eq_u32 s50, {S}
    s_cselect_b32 s46, {(-(S-STG)) & 0xffffffff}, s51
    s_cselect_b32 s50, 0, s50
    """)
    LOOP = a.label("g1loop")
    a(f"s_mov_b32 s51, {STG}\ns_mov_b32 s50, {STG}\ns_mov_b32 s46, {STG}\ns_mov_b32 s47, 15\ns_setprio {opt('XP1', 2)}")
    a.ext(tr("x", "setup")); a("WAITV s0"); a.ext(tr("x", "pre_b0")); a("s_barrier"); a.ext(tr("x", "b0"))
    def put(ls, G, pos):
        o = []; n = 0; G = list(G); pos = list(pos)
        for l in ls:
            o.append(l)
            if l.startswith("v_mfma"):
                while G and pos[0] == n: o += G.pop(0); pos.pop(0)
                n += 1
        assert not G
        return o
    a.ext(reads(F[0], 0))
    if SELF:
        G = g1x(2); G = [g if n in (0, 4, 8) else g[1:] for n, g in enumerate(G)]
        a.ext(sum(G[:2], []))
        a("s_mov_b32 s88, 0\ns_mov_b32 s47, 13\ns_waitcnt lgkmcnt(0)")
        a.ext(put(interleave(mf(F[0], "0"), reads(F[1], 1) + upd), G[2:], range(1, 28, 3)))
        a("s_waitcnt vmcnt(11) lgkmcnt(0)")
        G[0] = ["s_add_u32 m0, s88, s94"] + G[0][1:]; G[4] = ["s_add_u32 m0, s88, s87"] + G[4][1:]; G[8] = ["s_add_u32 m0, m0, 4096"] + G[8][1:]
        G[10] = G[10] + ["s_mov_b32 s88, s91"]
        P0 = opt("DP0", 2); PS = opt("DPS", 5)
        for lp in range(2):
            LOOP = a.label("g1loop")
            bd = interleave(mf(F[1]), reads(F[0], 0))
            bd[1:1] = ["s_mov_b32 s91, s50"] + adv
            bd += ["s_waitcnt lgkmcnt(0)"] + interleave(mf(F[0]), reads(F[1], 1) + upd)
            if lp == 0:
                M0 = [[g[0]] for g in G if "m0" in g[0]]; Gd = [g[1:] if "m0" in g[0] else g for g in G]
                bd = put(bd, Gd, [P0 + PS * n for n in range(11)])
                bd = put(bd, M0, [P0 + PS * n - 1 for n in (0, 4, 8)])
            bd[-1:-1] = ["s_sub_u32 s47, s47, 1", "s_cmp_lg_u32 s47, 0"]
            a(f"{LOOP}:\ns_barrier"); a.ext(bd)
            a(f"s_waitcnt vmcnt({11 if lp == 0 else 0}) lgkmcnt(0)\ns_cbranch_scc1 {LOOP}")
            if lp == 0: a("s_mov_b32 s47, 2")
        a("s_barrier\nVMRESET")
    else:
        a("s_waitcnt lgkmcnt(0)")
        a.ext(interleave(mf(F[0], "0"), reads(F[1], 1) + upd))
        a(f"{LOOP}:\ns_waitcnt vmcnt(0) lgkmcnt(0)\ns_barrier")
        a.ext(interleave(mf(F[1]), reads(F[0], 0) + adv))
        a("s_waitcnt lgkmcnt(0)")
        a.ext(interleave(mf(F[0]), reads(F[1], 1) + upd + ["s_sub_u32 s47, s47, 1", "s_cmp_lg_u32 s47, 0"]))
        a(f"s_cbranch_scc1 {LOOP}\ns_waitcnt lgkmcnt(0)\ns_barrier\nVMRESET")
    a.ext(tr("x", "b16"))
    EA, STt, BOP, KA_, KB_, SD = 112, 126, 130, 138, 208, [216, 218, 146, 148]
    T0 = 150
    C0, C1 = -2.302208198, -0.1029432397
    prep = L(f"""
    v_and_b32 v{T0}, 15, v{vLn}
    s_lshl_b32 s50, s44, 8
    s_add_u32 s50, s50, {EPS}
    v_lshl_add_u32 v{T0+3}, v{T0}, 2, s50
    s_lshl_b32 s50, s43, 10
    s_add_u32 s50, s50, {EPA}
    v_lshl_add_u32 v{T0+1}, v{T0}, 3, s50
    s_lshl_b32 s50, s43, 7
    s_add_u32 s50, s50, {EPA+768}
    v_lshl_add_u32 v{T0+2}, v{T0}, 3, s50
    """)
    prep += [f"ds_read_b32 v{STt+u}, v{T0+3} offset:{64*u}" for u in range(4)]
    prep += [f"ds_read_b64 {vr(EA+2*t,2)}, v{T0+1} offset:{128*t}" for t in range(6)] + [f"ds_read_b64 {vr(EA+12,2)}, v{T0+2}"]
    prep += L("s_mov_b64 s[50:51], 0xffff\ns_mov_b32 s52, 0x01000100")
    pr2 = ["s_waitcnt lgkmcnt(7)"]
    for u in range(4): pr2 += [f"v_cndmask_b32 v{BOP+2*u+1}, 0, v{STt+u}, s[50:51]", f"v_and_b32 v{SD[u]}, 0xffff0000, v{STt+u}"]
    for u in range(4): pr2 += [f"v_perm_b32 v{BOP+2*u}, v{BOP+2*u+1}, v{BOP+2*u+1}, s52", f"v_rcp_f32 v{KA_+2*u}, v{SD[u]}"]
    for u in range(4): pr2 += [f"v_mul_f32 v{KB_+2*u}, {fhex(C0)}, v{KA_+2*u}", f"v_mul_f32 v{KA_+2*u}, v{KA_+2*u}, v{KA_+2*u}"]
    for u in range(4): pr2 += [f"v_mul_f32 v{KA_+2*u}, {fhex(C1/C0)}, v{KA_+2*u}", f"v_mov_b32 v{KB_+2*u+1}, v{KB_+2*u}"]
    for u in range(4): pr2 += [f"v_mul_f32 v{KA_+2*u}, v{KA_+2*u}, v{KB_+2*u}", f"v_mov_b32 v{SD[u]+1}, v{SD[u]}"]
    for u in range(4): pr2 += [f"v_mov_b32 v{KA_+2*u+1}, v{KA_+2*u}"]
    m_ = mf(F[1])
    a.ext(interleave(m_[:6], prep, per=4) + interleave(m_[6:], pr2, start=1, per=2))
    a("s_waitcnt lgkmcnt(0)")
    corr = [f"v_mfma_f32_16x16x16_bf16 {vr(acc(t,u),4)}, {vr(EA+2*t,2)}, {vr(BOP+2*u,2)}, {vr(acc(t,u),4)}"
            for t, u in [(0, 0), (1, 0), (0, 1), (1, 1), (0, 2), (1, 2), (0, 3), (1, 3)] + snake(7, 4)[8:]]
    nc = opt("XNC", 8)
    a.ext(corr[:nc])
    a.ext(tr("x", "corr"))
    def gelu(regs, tt, pk):
        o = []; T = [tt + 2 * i for i in range(len(regs))]
        Z = list(zip(regs, T))
        for (r, u), x in Z: o.append(f"v_pk_mul_f32 {vr(x,2)}, {vr(r,2)}, {vr(r,2)}")
        for (r, u), x in Z: o.append(f"v_pk_fma_f32 {vr(x,2)}, {vr(x,2)}, {vr(KA_+2*u,2)}, {vr(KB_+2*u,2)}")
        for (r, u), x in Z: o.append(f"v_pk_mul_f32 {vr(x,2)}, {vr(x,2)}, {vr(r,2)}")
        for (r, u), x in Z: o += [f"v_exp_f32 v{x}, v{x}", f"v_exp_f32 v{x+1}, v{x+1}"]
        for (r, u), x in Z: o.append(f"v_pk_fma_f32 {vr(x,2)}, {vr(x,2)}, {vr(SD[u],2)}, {vr(SD[u],2)}")
        for (r, u), x in Z: o += [f"v_rcp_f32 v{x}, v{x}", f"v_rcp_f32 v{x+1}, v{x+1}"]
        for (r, u), x in Z: o.append(f"v_pk_mul_f32 {vr(x,2)}, {vr(x,2)}, {vr(r,2)}")
        for i in range(8): o.append(f"v_cvt_pk_bf16_f32 v{pk+i}, v{tt+2*i}, v{tt+2*i+1}")
        return o
    def flag(s_, val):
        return L(f"s_mov_b64 exec, 1\nv_mov_b32 v{one}, {val}\nbuffer_store_dword v{one}, off, {WS}, s{s_} {HSC if s_ == 40 else SC}\ns_mov_b64 exec, -1")
    TT = [160, 176]; PK = [192, 150, 112, 120, 192, 150, 128]; idx = 0
    def xpre(g, idx):
        ld = sum([g2issue(4 + n, VW2, None, doH=False, reg=XPR[n]) for n, x in enumerate(XPG) if x == idx], [])
        return weave(ld, [[l] for l in g], 0.9) if ld else g
    TC, TS, GE, C2, CH, T, NQ, ACC, BS, XX = 0, 16, 32, 48, 64, 80, 92, 96, 160, 136
    vF2 = 222; HS = [45, 46, 47, 39]
    a(f"s_add_u32 s46, s45, 16384\ns_add_u32 s47, s45, 32768\ns_add_u32 s39, s45, 49152\ns_add_u32 s50, s94, {WR_}\nv_add_u32 v200, s50, v{vL16}")
    hst = {1: [], 2: []}
    XF1 = opt("XF1", 4); XH1 = opt("XH1", 0)
    def fl1():
        a("WAITV h0"); a.ext(flag(40, 1)); a.ext(tr("x", "fl1"))
    for tp in range(3):
        for up in range(2):
            tt = TT[idx & 1]; pk = PK[idx]; idx += 1
            regs = []
            for u in (2 * up, 2 * up + 1): regs += [(acc(2*tp, u), u), (acc(2*tp, u) + 2, u), (acc(2*tp+1, u), u), (acc(2*tp+1, u) + 2, u)]
            g = gelu(regs, tt, pk)
            if idx == 1: g = interleave(g, corr[nc:], start=opt("XCS", 24), every=opt("XCE", 2))
            a.ext(xpre(g, idx))
            if idx == XF1: fl1()
            for k in range(2):
                u = 2 * up + k
                st_ = f"buffer_store_dwordx4 {vr(pk+4*k,4)}, v{vHW}, {WS}, s{HS[tp]} offen offset:{1024*u} {HSC} ;@h{tp}"
                if tp == 0 or (tp == 1 and XH1 == -1) or (tp == 2 and u < opt("XN2", 0)): a(st_)
                else: hst[tp].append(st_)
                a(f"ds_write_b128 v{vHW}, {vr(pk+4*k,4)} offset:{16384*tp+1024*u}")
            if XH1 == -2 and idx >= XF1: a.ext(hst[1]); hst[1] = []
        a.ext(tr("x", f"tp{tp}"))
    regs = []
    for u in range(4): regs += [(acc(6, u), u), (acc(6, u) + 2, u)]
    pk = PK[6]
    assert XF1 <= 4
    odd = xpre(gelu(regs, TT[0], pk), 7)
    for k in range(2): odd += [f"v_permlane32_swap_b32 v{pk+4*k}, v{pk+4*k+2}", f"v_permlane32_swap_b32 v{pk+4*k+1}, v{pk+4*k+3}"]
    for k in range(2): hst[2].append(f"buffer_store_dwordx4 {vr(pk+4*k,4)}, v{vHO}, {WS}, s39 offen offset:{2048*k} {HSC} ;@h2")
    if opt("XODD", 0): a.ext(odd); odd = []
    if XF1 == 7: fl1()
    ldH = f"buffer_load_dword v{vF}, v{vL4}, {WS}, s97 offen {SC}"
    fx0 = {k: [] for k in range(28)}; fx1 = {k: [] for k in range(28)}
    def spread(sts, k0, per):
        for j, g in enumerate(sts): fx1[k0 + j // per].append(g if isinstance(g, list) else [g])
        return k0 + (len(sts) - 1) // per
    OOL = []
    def chk(k, va, vd, off):
        sl_ = a.label("sl"); l1 = a.label("sp"); bk = a.label("bk"); c = f"v_cmp_gt_u32 vcc, {k}, v{vd}"
        OOL.extend(L(f"""
        {sl_}:
        s_mov_b32 s54, {SB}
        {l1}:
        ds_read_b32 v{vd}, v{va} offset:{off}
        s_waitcnt lgkmcnt(0)
        {c}
        s_cbranch_vccz {bk}
        s_sub_u32 s54, s54, 1
        s_cbranch_scc0 {l1}
        s_branch {bk}
        """))
        return [c], [f"s_cbranch_vccnz {sl_}", f"{bk}:"]
    e1 = lambda l: ["s_mov_b64 exec, 1", l, "s_mov_b64 exec, -1"] if opt("E1", 1) else [l]
    xsig = lambda j, off=16: [f"v_mov_b32 v{one}, {j}"] + e1(f"ds_write_b32 v{T+8}, v{one} offset:{off}")
    def spin(k, va=T+10, vd=T+11, off=0):
        l1 = a.label("sp"); ok = a.label("ok")
        return L(f"""
        s_mov_b32 s54, {SB}
        {l1}:
        ds_read_b32 v{vd}, v{va} offset:{off}
        s_waitcnt lgkmcnt(0)
        v_cmp_gt_u32 vcc, {k}, v{vd}
        s_cbranch_vccz {ok}
        s_sub_u32 s54, s54, 1
        s_cbranch_scc0 {l1}
        {ok}:
        """)
    fl = lambda G: weave(G, [])
    no = len(odd) * opt("XO1", 40) // 100; post = False
    qs = plane_st(CH, T + 9, Q_OFF, "q"); qs = [qs[0] + qs[1]] + qs[2:]
    ZS = os.environ.get("ZS", "p,o2,L,D,P,H3,R,S,S,S,S,G3,W4,H4,W5,H5,G4").split(","); prog = 1
    for z in ZS:
        if z == "L": a(ldH + " ;@p1")
        elif z == "R":
            a(f"""
            s_bfe_u32 s50, s35, 0x20002
            s_lshl_b32 s51, s3, 6
            v_add_u32 v{T+9}, s51, v{vLn}
            v_xor_b32 v{T+8}, s50, v{T+9}
            s_mov_b32 s50, {S}
            v_lshl_add_u32 v{T+8}, v{T+8}, 2, s50
            v_lshlrev_b32 v{T+9}, 4, v{T+9}
            """)
            a.ext(plane_rd(CH, [T + 8]))
            a(f"v_and_b32 v{T+10}, 3, v{vLn}\nv_lshlrev_b32 v{T+10}, 2, v{T+10}\nv_add_u32 v{T+10}, {PRG}, v{T+10}")
            a(f"s_lshl_b32 s50, s3, 2\ns_add_u32 s50, s50, {PRG}\nv_mov_b32 v{T+8}, s50")
        elif z == "D":
            a.ext(tr("x", "odd")); a("s_waitcnt lgkmcnt(0)\ns_barrier\ns_setprio 0"); a.ext(tr("x", "d0")); post = True
        elif z == "p": a("s_setprio 0")
        elif z == "X": assert not odd; a.ext(xpre([], 8))
        elif z == "o1": a.ext(UN(0, odd[:no]) if post else odd[:no]); odd = odd[no:]
        elif z == "o2": a.ext(UN(0, odd) if post else odd); odd = []
        elif z == "F2": a.ext(["WAITV h1"] + flag(40, 2))
        elif z == "F3": a.ext(["WAITV q"] + flag(41, 3))
        elif z == "P": a.ext(tr("x", "z2") + poll(ldH, f"v_cmp_gt_u32 vcc, 1, v{vF}", "p1") + tr("x", "p1"))
        elif z == "Q": a.ext(qs.pop(0))
        elif z == "S": a(hst[1].pop(0))
        elif z == "T": a(hst[2].pop(0))
        elif z[0] == "G": a.ext(tr("x", "w" + z) + [f"WAITV g{z[1]}"] + xsig(int(z[1]) + 1) + tr("x", z))
        else:
            i = int(z[1])
            if i - 2 > prog: prog = i - 2; a.ext(spin(prog))
            a.ext(fl(g2issue(i, VW2, vL16, doW=z[0] == "W", doH=z[0] == "H")))
    left = sum([g2issue(i, VW2, vL16, doW=f"W{i}" not in ZS, doH=f"H{i}" not in ZS) for i in (4, 5, 6)], [])
    if hst[1]: spread(hst[1], 3, opt("XH1P", 2))
    if "F2" not in ZS: fx0[opt("XF2", 4)].append(["WAITV h1"] + flag(40, 2))
    if qs: spread(qs, opt("XQS", 3), opt("XQP", 4))
    if "F3" not in ZS: fx0[opt("XQF", 6)].append(["WAITV q"] + flag(41, 3))
    assert ZS.index("R") < ZS.index("G3")
    XL2 = opt("XL2", 1)
    fx1[5 + XL2].append([ldH + " ;@p2"]); fx1[6 + XL2].append(tr("x", "w2") + poll(ldH, f"v_cmp_gt_u32 vcc, 2, v{vF}", "p2") + tr("x", "p2"))
    kh2 = spread(hst[2], opt("XH2", 5), opt("XH2P", 2))
    fx0[opt("XF3", 10)].append(["WAITV h2"] + flag(40, 3))
    fx1[12].append([ldH + " ;@p5"]); fx1[13].append(tr("x", "w5") + poll(ldH, f"v_cmp_gt_u32 vcc, 3, v{vF}", "p5") + tr("x", "p5"))
    B2 = XX + 16
    assert 8 not in XPG or "X" in ZS
    sd_ = odd + [M("by", opt("XH2", 5)), M("at", max(list(PRE) + [5]) - 2)]
    sd_ += L(f"v_add_u32 v{T+5}, {TD}, v{vPm}\nv_add_u32 v{T+1}, {TFR}, v{vL16}\nv_lshlrev_b32 v{vO}, {FS}, v{vLn}")
    for b in range(4): sd_.append(f"ds_read_b128 {vr(C2+4*b,4)}, v{T+1} offset:{1024*b}")
    for b in range(4): sd_.append(f"ds_read_b128 {vr(TC+4*b,4)}, v{T+5} offset:{1024*b}")
    ldC = f"buffer_load_dword v{vF2}, v{vO}, {WS}, s100 offen {SC}"
    sd_.append(M("at", max(kh2 + 1, opt("XCP", 9))))
    sd_.append(ldC + " ;@p3")
    for c in range(2):
        for b in range(2): sd_.append(f"ds_read_b128 {vr(GE+8*c+4*b,4)}, v{T+5} offset:{TFR-TD+4096*(1-c)+1024*b}")
    sd_.append(M("sync"))
    sd_.append(tr("x", "w3") + poll(ldC, f"v_cmp_ne_u32 vcc, 3, v{vF2}", "p3") + tr("x", "p3"))
    sd_ += gather(vQ, Q_OFF, S, "qd")
    sd_ += L(f"""
    s_lshl_b32 s50, s3, 4
    s_add_u32 s50, s50, {S}
    v_mov_b32 v{T+4}, s50
    v_cos_f32 v{T}, v{ph}
    v_sin_f32 v{T+1}, v{ph}
    """)
    sd_.append(M("sync", 2))
    sd_.append(["WAITV qd"] + xsig(1, 32))
    sd_.append(M("sync"))
    sd_.append(spin(1, vd=T+9, off=32))
    for b in range(2):
        for e in range(2): sd_.append(f"ds_read_b128 {vr(CH+8*b+4*e,4)}, v{vC} offset:{8192*b+2048*e}")
    sd_.append(f"ds_read_b128 {vr(NQ,4)}, v{T+4}")
    sd_.append("s_waitcnt lgkmcnt(0)")
    sd_ += L(f"v_writelane_b32 v{CH}, 0, 0\nv_writelane_b32 v{CH+2}, 0, 0")
    for b in range(2): sd_ += L(f"v_swap_b32 v{CH+8*b+2}, v{CH+8*b+4}\nv_swap_b32 v{CH+8*b+3}, v{CH+8*b+5}")
    for r in range(2):
        for b in range(2):
            for c in range(2):
                sd_.append(mfma32(ACC + 32 * r + 16 * c, CH + 8 * b + 4 * r, (GO if r else GE) + 8 * c + 4 * b, "0" if b == 0 else None))
    sd_ += L(f"""
    v_and_b32 v{NQ}, 0xffff0000, v{NQ}
    v_and_b32 v{NQ+1}, 0xffff0000, v{NQ+2}
    v_lshlrev_b32 v{NQ+2}, 16, v{NQ+2}
    v_mul_f32 v{NQ+1}, v{NQ+1}, v{T}
    v_fma_f32 v{NQ+1}, -v{NQ+2}, v{T+1}, v{NQ+1}
    """)
    PKD = [192, CH]
    negim = lambda o: [re.sub(r", (v\d+)$", r", -\1", l) if l.startswith("v_cvt_pk") else l for l in o]
    for r in range(2):
        sd_.append(f"v_fmac_f32 v{ACC+32*r}, v{NQ+r}, v{sg}")
        RE, IM = ACC + 32 * r, ACC + 32 * r + 16
        for j0 in range(0, 16, 4):
            J = range(j0, j0 + 4); t_ = lambda j: T + 2 * (j - j0)
            for j in J: sd_ += [f"v_fma_mix_f32 v{t_(j)}, v{RE+j}, v{TC+j}, 0 op_sel_hi:[0,1,0]", f"v_fma_mix_f32 v{t_(j)+1}, v{IM+j}, v{TC+j}, 0 op_sel_hi:[0,1,0]"]
            for j in J: sd_ += [f"v_fma_mix_f32 v{t_(j)}, -v{IM+j}, v{TC+j}, v{t_(j)} op_sel:[0,1,0] op_sel_hi:[0,1,0]",
                                f"v_fma_mix_f32 v{t_(j)+1}, v{RE+j}, v{TC+j}, v{t_(j)+1} op_sel:[0,1,0] op_sel_hi:[0,1,0]"]
            for j in J: sd_.append(f"v_cvt_pk_bf16_f32 v{PKD[r]+j}, v{t_(j)}, -v{t_(j)+1}")
        for b in range(4): sd_.append(mfma32(ACC + 32 * r, PKD[r] + 4 * b, C2 + 4 * b, "0" if b == 0 else None))
    sd_ += L(f"s_add_u32 s98, s98, {BASE_OFF}\ns_add_u32 s99, s99, {BASE_OFF}")
    E = ACC; O = ACC + 32
    for r in range(2):
        for i in range(8):
            sd_.append(f"v_pk_add_f32 {vr(BS+16*r+2*i,2)}, {vr(E+2*i,2)}, {vr(O+2*i,2)}" + (" neg_lo:[0,1] neg_hi:[0,1]" if r else ""))
    for i in range(16): sd_.append(f"v_cvt_pk_bf16_f32 v{CH+i}, v{BS+2*i}, v{BS+2*i+1}")
    for r in range(2):
        if r and opt("XBS", 0): sd_.append(M("sync"))
        sd_.append(M("tail"))
        for e in range(2): sd_.append(f"buffer_store_dwordx4 {vr(CH+8*r+4*e,4)}, v{vBO}, {WS}, s{98+r} offen offset:{1024*e} {SC} ;@bs")
    ldD = f"buffer_load_dword v{vF2}, v{vL4}, {WS}, s100 offen {SC}"
    sd_ += L(f"""
    s_lshl_b32 s98, s44, 1
    s_add_u32 s98, s98, s34
    s_lshl_b32 s99, s32, 2
    s_add_u32 s98, s98, s99
    s_and_b32 s100, s98, 31
    s_lshl_b32 s100, s100, {5+FH}
    s_add_u32 s100, s100, {DF_OFF}
    s_lshl_b32 s98, s98, 16
    s_lshl_b32 s99, s33, 7
    s_add_u32 s98, s98, s99
    s_lshl_b32 s99, s43, 6
    s_add_u32 s98, s98, s99
    s_add_u32 s98, s98, {BASE_OFF}
    s_add_u32 s99, s98, 32768
    """)
    sd_.append(M("sync", opt("XBF", 2)))
    sd_.append(tr("x", "wb") + ["WAITV bs"] + flag(42, 1) + tr("x", "bf"))
    sd_.append(M("sync", opt("XBP", 2)))
    sd_.append(M("at", opt("XDP", 24)))
    sd_.append(ldD + " ;@p4")
    sd_.append(M("sync"))
    sd_.append(tr("x", "w4") + poll(ldD, f"v_cmp_ne_u32 vcc, 1, v{vF2}", "p4") + tr("x", "p4"))
    for x in range(2):
        for e in range(2): sd_.append([f"s_add_u32 m0, s94, {S+2048*x}", f"buffer_load_dwordx4 v{vBG}, {WS}, s{98+x} offen offset:{1024*e} {SC} lds ;@bg"])
    XB = opt("XB", 270)
    fc = lambda k: sum(cost(l) for g in fx0[k] + fx1[k] for l in g)
    sl = split(sd_, 3, 27, lambda k: XB - fc(k), UN)
    if opt("SHOW"): print("X slices", {k: fc(k) + sum(cost(l) for g in v if not isinstance(g, M) for l in g) for k, v in sl.items()})
    KB = opt("KB", 5); KE = opt("KE", 24); hard = lambda k: KB <= k <= KE
    XSM = lambda j: opt("XSM", -1) if j <= opt("XSJ", 12) else opt("XSM2", -1)
    rdY = f"ds_read_b32 v{T+11}, v{T+10}"
    kend = max(k for k in sl if sl[k])
    for k in range(3, kend + 1):
        if k == 3: a.ext(spin(4))
        elif hard(k): a(f"WAITV g{k}{' lgkm' if k in PRE else ''}\ns_barrier")
        else:
            c_, b_ = chk(k + 1, T + 10, T + 11, 0); a.ext(["s_waitcnt lgkmcnt(0)"] + c_ + b_)
        a.ext(tr("x", f"d{k}"))
        main = g2issue(k + 3, VW2, vL16) if 4 <= k <= 24 else left if k == 3 else []
        if XL2 and k == 7: main = g2issue(10, VW2, vL16, doH=False)
        if XL2 and k == 8: main = g2issue(10, VW2, vL16, doW=False) + main
        sg_ = lambda j: [f"WAITV g{j}"] + xsig(j + 1)
        j = k + 1
        if f"G{j}" not in ZS and not hard(j) and j <= 25 and (XSM(j) >= 0 or j == 4):
            m = min(max(XSM(j), 0), len(main))
            if m == len(main): main[-1] = main[-1] + sg_(j)
            else: main[m] = sg_(j) + main[m]
        pre_ = hard(k + 1) or (bool(main) and opt("XRY", 1))
        if pre_ and not hard(k + 1): main[-1] = [rdY] + main[-1]
        a.ext(mprio(weave(main, fx0[k] + sl[k] + [M("tail")] + fx1[k], opt("XFR", 85) / 100)))
        a.ext(tr("x", f"A{k}"))
        j = k + 2
        if f"G{j}" not in ZS and not hard(j) and (j == 26 or (j < 26 and XSM(j) < 0)): a.ext(sg_(j))
        if k == 24: a.ext(sg_(27))
        if not pre_ and k < kend: a(rdY)
        a.ext(tr("x", f"B{k}"))
    a.ext(["s_waitcnt vmcnt(0)"] + xsig(60) + ["s_waitcnt lgkmcnt(0)"] + tr("x", "e") + tr("x", "END"))
    a("s_endpgm"); a.ext(OOL); OOL.clear()
    a(f"{YR}:\nVMRESET")
    VW2 = 13
    vL16, vT, vH, vK, ph, vF, vQ, vP, vE = 17, 18, 19, 20, 21, 22, 23, 24, 25
    T = 28; X = 40; Fv = 56
    C1c, C1s, C2a, C2c, TC, TS, ACC = 88, 96, 104, 120, 136, 152, 168
    XT = 232; RX = ACC + 48
    a(f"""
    v_and_b32 v{vK}, 255, v0
    v_and_b32 v0, 63, v0
    s_lshl_b32 s46, s37, 11
    v_lshlrev_b32 v{vL16}, 4, v0
    s_add_u32 s47, s46, {2*MB}
    v_lshlrev_b32 v{XT}, {8+FS}, v0
    v_mov_b32 v{XT+1}, 0
    s_lshl_b32 s56, s35, {FS}
    s_add_u32 s56, s56, {CF_OFF}
    s_lshl_b32 s45, s35, 2
    s_add_u32 s45, s45, {C2_OFF}
    """)
    kf, bs, hf = ACC, ACC + 1, ACC + 2; TT = ACC + 4
    ax, aw = g1addr(T)
    pre = L(f"""
    v_and_b32 v1, 31, v0
    v_lshrrev_b32 v{vH}, 5, v0
    v_cvt_f32_u32 v{hf}, v{vH}
    v_cvt_f32_u32 v{ph}, s37
    v_lshrrev_b32 v{X}, 1, v1
    v_and_b32 v{X+1}, 1, v1
    v_cvt_f32_u32 v{kf}, v{X}
    v_cvt_f32_u32 v{bs}, v{X+1}
    v_mul_f32 v{ph}, {fhex(1/2048)}, v{ph}
    v_mul_f32 v{kf}, {fhex(1/32)}, v{kf}
    v_fmamk_f32 v{bs}, v{bs}, {fhex(0.25)}, v{ph}
    v_mul_f32 v{hf}, 4.0, v{hf}
    v_fmac_f32 v{bs}, v{hf}, v{kf}
    v_lshlrev_b32 v{X}, 4, v{X}
    v_lshl_add_u32 v{X}, v{vH}, 9, v{X}
    v_lshl_add_u32 v{X}, v{X+1}, 12, v{X}
    v_add_u32 v{X}, {TFR}, v{X}
    v_add_u32 v{X+1}, {TB}, v{vL16}
    """)
    pre += trig(kf, bs, NS, TT, sink_pack([(C2c, "c", "s")]))
    pre += ["s_lshl_b32 s94, s3, 12"] if SELF else ax + g1scal(2) + sum(aw, [])
    pre += L(f"""
    s_bfe_u32 s50, s35, 0x20002
    v_xor_b32 v{vP}, s50, v{vK}
    v_bfe_u32 v{T}, v{vP}, 1, 1
    v_and_b32 v{T+1}, 1, v{vP}
    v_bfe_u32 v{T+2}, v{vP}, 2, 5
    v_lshrrev_b32 v{T+3}, 7, v{vP}
    v_mul_u32_u24 v{T+4}, 513, v{T}
    v_lshl_add_u32 v{T+2}, v{T+1}, 5, v{T+2}
    v_lshl_add_u32 v{T+2}, v{T+3}, 6, v{T+2}
    v_add_u32 v{T+1}, v{T+2}, v{T+4}
    v_lshrrev_b32 v{T+3}, 2, v{T+1}
    v_and_b32 v{T+3}, 8, v{T+3}
    v_lshl_or_b32 v{T+3}, v{T}, 4, v{T+3}
    v_xor_b32 v{T+1}, v{T+1}, v{T+3}
    v_add_u32 v{T+4}, 528, v{T+4}
    v_cmp_eq_u32 vcc, 0, v{T+2}
    s_mov_b32 s50, {S}
    v_lshl_add_u32 v{vQ}, v{T+1}, 2, s50
    v_cndmask_b32 v{T+1}, v{T+1}, v{T+4}, vcc
    v_lshl_add_u32 v{vP}, v{vP}, 2, s50
    v_lshl_add_u32 v{vF}, v{T+1}, 2, s50
    v_lshlrev_b32 v{vK}, 4, v{vK}
    v_bfe_u32 v{T}, v0, 2, 2
    v_lshl_add_u32 v{T}, v{vH}, 3, v{T}
    v_lshlrev_b32 v{vT}, 6, v{T}
    v_bfe_u32 v{T}, v0, 4, 1
    v_lshl_add_u32 v{vT}, v{T}, 5, v{vT}
    v_and_b32 v{T}, 3, v0
    v_lshl_add_u32 v{vT}, v{T}, 3, v{vT}
    s_mul_i32 s50, s3, {PL}
    s_add_u32 s50, s50, {S}
    v_add_u32 v{vT}, s50, v{vT}
    v_add_u32 v{T+11}, s50, v{vL16}
    v_bfe_u32 v{T}, v0, 2, 1
    v_xor_b32 v{T}, v{T}, v0
    v_lshl_add_u32 v{T+8}, v{T}, 5, s50
    v_lshrrev_b32 v{T}, 4, v0
    v_bfe_u32 v{T+1}, v0, 2, 2
    v_lshl_add_u32 v{T+1}, v{T}, 3, v{T+1}
    v_mul_u32_u24 v{T+1}, 448, v{T+1}
    v_and_b32 v{T+2}, 3, v0
    v_lshl_add_u32 v{T+1}, v{T+2}, 3, v{T+1}
    s_lshr_b32 s50, s2, 6
    s_lshl_b32 s50, s50, 2
    s_add_u32 s50, s50, s3
    v_and_b32 v{T}, 1, v{T}
    v_xor_b32 v{T}, s50, v{T}
    v_lshl_add_u32 v{vE}, v{T}, 5, v{T+1}
    s_lshl_b32 s51, s36, 4
    s_and_b32 s52, s32, 12
    s_add_u32 s51, s51, s52
    s_lshl_b32 s51, s51, 2
    s_add_u32 s51, s51, s50
    s_lshl_b32 s51, s51, 6
    s_add_u32 s100, s51, {CS_OFF}
    s_mul_i32 s57, s37, 2052
    """)
    n0 = opt("YT0", 0)
    a.ext(pre[:n0])
    a("s_waitcnt lgkmcnt(0)")
    a.ext(tr("y", "karg"))
    a.ext(mksrd(8, 64, 4 * MB) + mksrd(4, 84, 256 * MB))
    SK = a.label("sk")
    a(f"""
    s_cmp_lg_u32 s3, 0
    s_cbranch_scc1 {SK}
    s_mov_b64 exec, 255
    buffer_store_dword v{XT+1}, v{XT}, {WS}, s56 offen {SC} ;@cond
    s_mov_b64 exec, 1
    buffer_store_dword v{XT+1}, off, {WS}, s45 {SC} ;@cond
    s_mov_b64 exec, -1
    {SK}:
    """)
    for r in range(2):
        for e in range(2): a(f"buffer_load_dwordx4 {vr(RX+8*r+4*e,4)}, v{vL16}, {XS}, s{46+r} offen offset:{1024*e} ;@xb")
    a.ext(tr("y", "iss0"))
    CPF = opt("CPF", 8)
    if CPF:
        a(f"""
        s_getpc_b64 s[50:51]
        pc_ref:
        s_lshr_b32 s52, s2, {opt("CPS", 3)}
        s_sub_u32 s50, s50, pc_ref-{name}
        s_subb_u32 s51, s51, 0
        s_lshl_b32 s52, s52, 2
        s_add_u32 s52, s52, s3
        s_mul_i32 s52, s52, {64*CPF}
        v_lshl_add_u32 v254, v0, 6, s52
        v_min_u32 v254, code_end-{name}-4, v254
        s_mov_b64 exec, {hex((1 << CPF) - 1)}
        global_load_dword v255, v254, s[50:51]
        s_mov_b64 exec, -1
        """)
    a.ext(mksrd(16, 72, 1024 * 7168) + mksrd(12, 76, 3584 * 2048) + mksrd(20, 74, 7168) + mksrd(24, 80, 4 * MB) +
          mksrd(28, 82, 256) + mksrd(60, 66, 2048 * 1026) + mksrd(88, 68, 2048 * 1026))
    pfe = L(f"""
    v_lshlrev_b32 v254, 7, v0
    s_lshl_b32 s39, s2, 2
    s_add_u32 s39, s39, s3
    s_mul_i32 s39, s39, 7168
    buffer_load_dword v255, v254, {W2S}, s39 offen
    """)
    pf1 = pfe[:4] + ["buffer_load_dword v255, v254, s[16:19], s39 offen"]
    if opt("PF1") == 1: a.ext(pf1)
    if opt("PFE") == 1: a.ext(pfe)
    a.ext(pre[n0:])
    if opt("PF1") == 2: a.ext(pf1)
    if opt("PFE") == 2: a.ext(pfe)
    a.ext(tr("y", "pre_t")); a("s_barrier"); a.ext(tr("y", "t"))
    for b in range(4): a(f"ds_read_b128 {vr(C1c+4*b,4)}, v{X+1} offset:{8192+1024*b}")
    for b in range(8): a(f"ds_read_b128 {vr(TC+4*b,4)}, v{X+1} offset:{1024*b}")
    for b in range(4): a(f"ds_read_b128 {vr(C2a+4*b,4)}, v{X} offset:{1024*b}")
    wld = []
    for c in range(2):
        wld.append(f"buffer_load_dwordx4 {vr(XT+4*c,4)}, v{vL16}, s[60:63], s57 offen offset:{1024*c} ;@w")
        wld.append(f"buffer_load_dwordx4 {vr(XT+8+4*c,4)}, v{vL16}, s[88:91], s57 offen offset:{1024*c} ;@w")
    wld += [f"buffer_load_dword v{XT+16}, off, s[60:63], s57 offset:2048 ;@w", f"buffer_load_dword v{XT+17}, off, s[88:91], s57 offset:2048 ;@w"]
    sd_ = []
    if opt("YWL", 0) == 0: sd_ += wld
    if opt("PF1") == 3: sd_ += pf1
    if opt("PFE") == 3: sd_ += pfe
    sd_.append("WAITV xb")
    F_ = Fv
    if opt("YWL", 0) == 1: sd_ += wld
    for i in range(16): sd_ += [f"v_lshlrev_b32 v{F_+2*i}, 16, v{RX+i}", f"v_and_b32 v{F_+2*i+1}, 0xffff0000, v{RX+i}"]
    Q = ACC
    for r in range(2):
        for i in range(4): sd_.append(f"v_pk_add_f32 {vr(Q+8*r+2*i,2)}, {vr(F_+16*r+4*i,2)}, {vr(F_+16*r+4*i+2,2)}")
    for r in range(2):
        for i in range(2): sd_.append(f"v_pk_add_f32 {vr(Q+8*r+4*i,2)}, {vr(Q+8*r+4*i,2)}, {vr(Q+8*r+4*i+2,2)}")
    for r in range(2): sd_.append(f"v_pk_add_f32 {vr(Q+8*r,2)}, {vr(Q+8*r,2)}, {vr(Q+8*r+4,2)}")
    for r in range(2): sd_ += [f"v_add_f32 v{T+2*r}, v{Q+8*r}, v{Q+8*r+1}", f"v_sub_f32 v{T+2*r+1}, v{Q+8*r}, v{Q+8*r+1}"]
    sd_ += L(f"""
    v_permlane16_swap_b32 v{T}, v{T+1}
    v_permlane16_swap_b32 v{T+2}, v{T+3}
    v_add_f32 v{T}, v{T}, v{T+1}
    v_add_f32 v{T+2}, v{T+2}, v{T+3}
    v_permlane32_swap_b32 v{T}, v{T+2}
    v_add_f32 v{T}, v{T}, v{T+2}
    """)
    sd_ += ror_reduce(T)
    sd_ += L(f"v_mul_f32 v{T+1}, {fhex(1/1024)}, v{T}\nv_mov_b32 v{T+2}, v{T+1}")
    sd_ += rbf(T + 2)
    sd_ += L(f"""
    v_sub_f32 v{T+3}, v{T+1}, v{T+2}
    v_readlane_b32 s96, v{T+2}, 0
    v_readlane_b32 s98, v{T+2}, 32
    v_readlane_b32 s92, v{T}, 16
    v_readlane_b32 s93, v{T}, 48
    """)
    for r in range(2):
        for i in range(8):
            sd_.append(f"v_pk_add_f32 {vr(F_+16*r+2*i,2)}, {vr(F_+16*r+2*i,2)}, s[{96+2*r}:{97+2*r}] op_sel_hi:[1,0] neg_lo:[0,1] neg_hi:[0,1]")
    for i in range(4):
        for r in range(2):
            for c in range(2):
                s_ = vr(F_ + 16 * r + 4 * i + 2 * c, 2); d = vr(Q + 4 * r + 2 * c, 2)
                sd_.append(f"v_pk_mul_f32 {d}, {s_}, {s_}" if i == 0 else f"v_pk_fma_f32 {d}, {s_}, {s_}, {d}")
    for r in range(2): sd_.append(f"v_pk_add_f32 {vr(Q+4*r,2)}, {vr(Q+4*r,2)}, {vr(Q+4*r+2,2)}")
    for r in range(2): sd_.append(f"v_add_f32 v{T+4+r}, v{Q+4*r}, v{Q+4*r+1}")
    sd_ += L(f"""
    v_permlane32_swap_b32 v{T+4}, v{T+5}
    v_add_f32 v{T+4}, v{T+4}, v{T+5}
    v_mov_b32 v{T+5}, v{T+4}
    v_permlane16_swap_b32 v{T+4}, v{T+5}
    v_add_f32 v{T+4}, v{T+4}, v{T+5}
    """)
    sd_ += ror_reduce(T + 4)
    sd_ += L(f"""
    v_mul_f32 v{T+4}, {fhex(1/1024)}, v{T+4}
    v_fma_f32 v{T+4}, -v{T+3}, v{T+3}, v{T+4}
    v_max_f32 v{T+4}, 0, v{T+4}
    """)
    sd_ += rbf(T + 4) + [f"v_add_f32 v{T+4}, {fhex(1e-5)}, v{T+4}"] + rbf(T + 4) + [f"v_sqrt_f32 v{T+4}, v{T+4}"] + rbf(T + 4)
    sd_ += L(f"""
    v_cvt_pk_bf16_f32 v{T+5}, -v{T+2}, v{T+4}
    v_rcp_f32 v{T+4}, v{T+4}
    v_lshlrev_b32 v{T+6}, 12, v{vH}
    s_lshl_b32 s50, s37, 2
    s_add_u32 s101, s50, {ST_OFF}
    v_readlane_b32 s96, v{T+4}, 0
    v_readlane_b32 s98, v{T+4}, 32
    """)
    sd_.append(L(f"s_mov_b32 exec_lo, 1\ns_mov_b32 exec_hi, 1\nbuffer_store_dword v{T+5}, v{T+6}, {WS}, s101 offen {SC} ;@pub\ns_mov_b64 exec, -1"))
    SK = a.label("sk")
    sd_.append(L(f"""
    s_cmp_lg_u32 s3, 0
    s_cbranch_scc1 {SK}
    s_and_b32 s50, s2, 63
    s_lshl_b32 s50, s50, 2
    s_mov_b64 exec, 1
    v_mov_b32 v{T+7}, 1
    buffer_atomic_add v{T+7}, off, s[28:31], s50 {SC} ;@cond
    s_mov_b64 exec, -1
    {SK}:
    """))
    AC = ACC
    for i in range(8): sd_.append(f"v_pk_mul_f32 {vr(F_+2*i,2)}, {vr(F_+2*i,2)}, s[96:97] op_sel_hi:[1,0]")
    for i in range(8):
        sd_.append(f"v_pk_fma_f32 {vr(AC+2*i,2)}, {vr(F_+16+2*i,2)}, s[98:99], {vr(F_+2*i,2)} op_sel_hi:[1,0,1]")
        sd_.append(f"v_pk_fma_f32 {vr(AC+16+2*i,2)}, {vr(F_+16+2*i,2)}, s[98:99], {vr(F_+2*i,2)} op_sel_hi:[1,0,1] neg_lo:[1,0,0] neg_hi:[1,0,0]")
    CK = opt("YCK", 1)
    sd_.append(M("by", CK - 1))
    for i in range(16): sd_.append(f"v_cvt_pk_bf16_f32 v{AC+32+i}, v{AC+2*i}, v{AC+2*i+1}")
    for i in range(4): sd_.append(f"ds_write_b128 v{T+11}, {vr(AC+32+4*i,4)} offset:{1024*i}")
    NY = T + 9
    sd_ += L(f"""
    v_mov_b32 v{T}, s96
    v_mov_b32 v{T+1}, s98
    v_mul_f32 v{T}, s92, v{T}
    v_mul_f32 v{T+1}, s93, v{T+1}
    v_cos_f32 v{T+2}, v{ph}
    v_sin_f32 v{T+3}, v{ph}
    v_add_f32 v{T+4}, v{T}, v{T+1}
    v_sub_f32 v{T+5}, v{T}, v{T+1}
    v_mul_f32 v{T+4}, 0.5, v{T+4}
    v_mul_f32 v{T+5}, 0.5, v{T+5}
    v_mul_f32 v{T+2}, v{T+2}, v{T+5}
    v_mul_f32 v{T+3}, v{T+3}, v{T+5}
    v_cvt_pk_bf16_f32 v{NY}, v{T+4}, 0
    v_cvt_pk_bf16_f32 v{NY+1}, v{T+2}, -v{T+3}
    s_waitcnt lgkmcnt(0)
    """)
    A1 = F_
    for r in range(2):
        for b in range(2):
            for e in range(2): sd_.append(f"ds_read_b64_tr_b16 {vr(A1+8*r+4*b+2*e,2)}, v{vT} offset:{2048*r+1024*b+256*e}")
    if opt("YWL", 0) == 2: sd_ += wld
    sd_ += flagaddr(46, 47, 56, CF_OFF)
    sd_.append(L(f"s_mov_b64 exec, 1\nv_mov_b32 v{T}, 0\nbuffer_store_dword v{T}, off, {WS}, s46 {SC} ;@pub\nbuffer_store_dword v{T}, off, {WS}, s56 {SC} ;@pub\ns_mov_b64 exec, -1"))
    sd_.append("s_waitcnt lgkmcnt(0)")
    for r in range(2):
        for b in range(2):
            sd_.append(mfma32(ACC + 32 * r, A1 + 8 * r + 4 * b, C1c + 4 * b, "0" if b == 0 else None))
            sd_.append(mfma32(ACC + 32 * r + 16, A1 + 8 * r + 4 * b, C1s + 4 * b, "0" if b == 0 else None))
    wp = L(f"s_mov_b32 s52, 0x05040100\ns_mov_b32 s53, 0x07060302\nv_xor_b32 v{T+1}, 64, v{T+8}\nWAITV w")
    for i in range(9):
        r, m, d = (XT + i, XT + 8 + i, X + 2 * i) if i < 8 else (XT + 16, XT + 17, XT + 18)
        wp += [f"v_perm_b32 v{d}, v{m}, v{r}, s52", f"v_perm_b32 v{d+1}, v{m}, v{r}, s53"]
    wq = []
    for c in range(2):
        for x in range(2): wq.append(f"ds_write_b128 v{T+1 if c else T+8}, {vr(X+8*c+4*x,4)} offset:{2048*c+16*x}")
    wq.append(L(f"s_mov_b64 exec, 1\nds_write_b64 v{T+8}, {vr(XT+18,2)} offset:4160\ns_mov_b64 exec, -1"))
    PV = F_
    def bst2(r):
        D = X if r == 0 else C1c
        return cmul(ACC + 32 * r, ACC + 32 * r + 16, TC, TS, True, T, D, False) + \
               [mfma32(ACC + 32 * r, (C2c if r else C2a) + 4 * b, D + 4 * b, "0" if b == 0 else None) for b in range(4)]
    WF = opt("WF", 0); kW = M("mark"); kP = M("mark")
    sW = plane_st(XT, vK, WT_OFF, "wt", 98); sP = plane_st(ACC, vK, P_OFF, "pt", 99)
    b0_, b1_ = bst2(0), bst2(1)
    if WF:
        n_ = opt("YW1", 30); kq_ = M("mark")
        sd_ += wp + wq + ["s_waitcnt lgkmcnt(0)", kq_] + b1_[:n_] + [M("after", kq_)] + plane_rd(XT, [vF, vQ], 2) + b1_[n_:n_ + 12] + [sW[0], kW] + b1_[n_ + 12:] + b0_
    else: sd_ += b0_ + b1_
    for r in ((1, 0) if WF else (0, 1)):
        P = ACC + 32 * r
        for b in range(4):
            for t in range(2): sd_.append(f"v_cvt_pk_bf16_f32 v{PV+4*b+t+2*r}, v{P+4*b+2*t}, v{P+4*b+2*t+1}")
    sd_.append(L(f"s_mov_b64 exec, 1\nv_mov_b32 v{PV}, v{NY}\nv_mov_b32 v{PV+2}, v{NY+1}\ns_mov_b64 exec, -1"))
    if WF: sd_.append(M("after", kW))
    for b in range(4): sd_.append(f"ds_write_b128 v{T+11}, {vr(PV+4*b,4)} offset:{1024*b}")
    sd_.append("s_waitcnt lgkmcnt(0)")
    sd_.append(M("sync"))
    sd_ += plane_rd(ACC, [vP]) + [sP[0], kP]
    if not WF: sd_ += wp + [M("sync")] + wq + ["s_waitcnt lgkmcnt(0)", M("sync")] + plane_rd(XT, [vF, vQ], 2) + [sW[0], kW]
    FR, FI = C1c, C2a
    vG = T + 8
    vPA, vOne = 11, 12; U = ACC + 16
    P = X; W = C2c; WRr = Fv; WI = Fv + 16; A0 = ACC; A1 = ACC + 16; B0 = A0; B1 = A1
    yflag = lambda v: L(f"s_mov_b64 exec, 1\nv_mov_b32 v{vOne}, {v}\nbuffer_store_dword v{vOne}, off, {WS}, s47 {SC}\ns_mov_b64 exec, -1")
    ldS = f"buffer_load_dword v{vF}, v{vT}, s[28:31], 0 offen {SC}"
    ldP = f"buffer_load_dword v{vF}, v{U+7}, {WS}, s56 offen {SC}"
    ldQ = f"buffer_load_dwordx4 {vr(U,4)}, v{vL16}, {WS}, s56 offen {SC}"
    tA, tB = ("wt", "pt") if WF else ("pt", "wt")
    gA = gather(vQ, WT_OFF if WF else P_OFF, S, "ga"); gB = gather(vQ, P_OFF if WF else WT_OFF, WG_, "gb")
    rd4 = lambda D, first: [f"ds_read_b128 {vr(D+4*b,4)}, v{vG if first else vP} offset:{(0 if first else WG_)+4096*b}" for b in range(4)]
    unW = ["s_waitcnt lgkmcnt(0)"] + sum([[f"v_lshlrev_b32 v{WRr+i}, 16, v{W+i}", f"v_and_b32 v{WI+i}, 0xffff0000, v{W+i}"] for i in range(16)], [])
    IT = {}
    for n in range(4):
        IT[f"sW{n}"] = sW[n + 1]; IT[f"sP{n}"] = sP[n + 1]
        IT[f"gA{n}"] = (gA[0] if n == 0 else []) + gA[n + 1]; IT[f"gB{n}"] = (gB[0] if n == 0 else []) + gB[n + 1]
        IT[f"W{n}"] = weave(g2issue(n, VW2, None, doH=False), [])
    for n, j in enumerate(YPRE): IT[f"y{n}"] = weave(g2issue(j, VW2, None, doH=False, reg=YPR[n]), [])
    IT["f1"] = tr("y", "w0") + [f"WAITV {tA}"] + tr("y", "pub") + yflag(1)
    IT["lS"] = [f"v_lshlrev_b32 v{vT}, 2, v0"] + cfpoll(56) + [ldS + " ;@p0"]
    IT["p0"] = poll(ldS, f"v_cmp_gt_u32 vcc, 4, v{vF}", "p0")
    IT["w2"] = tr("y", "w2") + [f"WAITV {tB} cs"] + tr("y", "p0")
    SK = a.label("sk")
    IT["f2"] = L(f"s_cmp_lg_u32 s3, 0\ns_cbranch_scc1 {SK}\ns_mov_b64 exec, 1\nv_mov_b32 v{vOne}, 2\nbuffer_store_dword v{vOne}, off, {WS}, s45 {SC} ;@cond\ns_mov_b64 exec, -1\n{SK}:")
    IT["tb"] = [f"v_add_u32 v{T}, {TFR}, v{vL16}"] + [f"ds_read_b128 {vr(FR+4*b,4)}, v{T} offset:{1024*b}" for b in range(8)]
    IT["fill"] = w2addr(VW2, 0, T) + g2bases() + L(f"""
    v_lshrrev_b32 v{vQ}, 2, v0
    v_mul_u32_u24 v{vQ}, {PITCH}, v{vQ}
    v_and_b32 v{T}, 3, v0
    v_lshl_add_u32 v{vQ}, v{T}, 4, v{vQ}
    v_bfe_u32 v{vG}, v0, 2, 2
    v_xor_b32 v{vG}, s3, v{vG}
    v_lshlrev_b32 v{vG}, 4, v{vG}
    v_lshl_add_u32 v{vP}, v0, 6, v{vG}
    v_add_u32 v{vG}, {S}, v{vP}
    """)
    IT["b1"] = L(f"""
    v_lshrrev_b32 v{T}, 3, v{vK}
    s_mul_i32 s50, s36, 448
    buffer_load_ushort v{U+6}, v{T}, s[20:23], s50 offen ;@b1
    v_lshrrev_b32 v{vE}, 1, v{vK}
    v_add_u32 v{vE}, {EPA}, v{vE}
    """)
    IT["lP"] = [f"v_lshlrev_b32 v{U+7}, {FS}, v0", ldP + " ;@pp"]
    IT["pp"] = tr("y", "w1") + poll(ldP, f"v_cmp_gt_u32 vcc, 1, v{vF}", "pp") + tr("y", "pp")
    IT["lQ"] = [f"s_mov_b32 s56, {C2_OFF}", ldQ + " ;@pq"]
    IT["pq"] = tr("y", "w3") + poll(ldQ, f"v_min3_u32 v{U}, v{U}, v{U+1}, v{U+2}\nv_min_u32 v{U}, v{U}, v{U+3}\nv_cmp_gt_u32 vcc, 2, v{U}", "pq") + tr("y", "pq")
    IT["ep"] = L(f"""
    s_and_b32 s50, s3, 1
    s_lshl_b32 s50, s50, 8
    s_add_u32 m0, s50, {EPS}
    s_lshl_b32 s51, s32, 9
    s_add_u32 s50, s50, s51
    s_add_u32 s50, s50, {ST_OFF}
    buffer_load_dword v{vT}, {WS}, s50 offen {SC} lds ;@ep
    s_lshl_b32 s50, s36, 12
    s_lshl_b32 s51, s3, 8
    s_add_u32 s50, s50, s51
    s_add_u32 s50, s50, {CS_OFF}
    """) + [f"buffer_load_dword v{U+n}, v{vT}, {WS}, s50 offen offset:{1024*n} {SC} ;@ep" for n in range(4)]
    IT["pi"] = L(f"v_mov_b32 v{vOne}, 0\nds_write_b32 v{vPA}, v{vOne}\nds_write_b32 v{vPA}, v{vOne} offset:16\nds_write_b32 v{vPA}, v{vOne} offset:32")
    IT["ec"] = L(f"""
    WAITV ep
    v_add_f32 v{U}, v{U}, v{U+1}
    v_add_f32 v{U+2}, v{U+2}, v{U+3}
    s_mov_b32 s101, 0x07060302
    v_add_f32 v{U}, v{U}, v{U+2}
    v_and_b32 v{U+1}, 0xffff0000, v{U}
    v_sub_f32 v{U+1}, v{U}, v{U+1}
    v_and_b32 v{U+2}, 0xffff0000, v{U+1}
    v_perm_b32 v{U+4}, v{U+1}, v{U}, s101
    v_sub_f32 v{U+2}, v{U+1}, v{U+2}
    v_alignbit_b32 v{U+5}, v{U+6}, v{U+2}, 16
    ds_write_b64 v{vE}, {vr(U+4,2)}
    """)
    IT["wA"] = ["WAITV ga"]; IT["wB"] = tr("y", "w4") + ["WAITV gb"] + tr("y", "wd")
    IT["rA"] = rd4(W if WF else P, True); IT["rB"] = rd4(P if WF else W, False)
    IT["unW"] = unW; IT["lg"] = ["s_waitcnt lgkmcnt(0)"]
    IT["sig"] = L(f"v_mov_b32 v{vOne}, 1\nds_write_b32 v{vPA}, v{vOne}")
    ppa = L(f"v_and_b32 v{vT}, 3, v0\nv_lshlrev_b32 v{vT}, 2, v{vT}\nv_add_u32 v{vT}, {PRG}, v{vT}")
    IT["spin"] = ppa + spin(1, vT, vF)
    IT["td"] = []
    for b in range(4):
        SK = a.label("sk")
        IT["td"] += [f"s_cmp_lg_u32 s3, {b}", f"s_cbranch_scc1 {SK}"] + [f"v_cvt_pk_f16_f32 v{T+i}, v{TC+4*b+i}, v{TS+4*b+i}" for i in range(4)] + [f"{SK}:"]
    IT["td"] += L(f"s_lshl_b32 s50, s3, 10\ns_add_u32 s50, s50, {TD}\nv_add_u32 v{T+4}, s50, v{vL16}\nds_write_b128 v{T+4}, {vr(T,4)}")
    def stage(D0, D1, dat, data_is_A):
        o = []
        for b in range(4):
            for D, Fc in ((D0, FR), (D1, FI)):
                x, y = (dat + 4 * b, Fc + 4 * b) if data_is_A else (Fc + 4 * b, dat + 4 * b)
                o.append(mfma32(D, x, y, "0" if b == 0 else None))
        return o
    c_ = [stage(A0, A1, P, True), cmul(A0, A1, TC, TS, True, T, P, False), stage(B0, B1, P, False), cmul(B0, B1, WRr, WI, False, T, W, True),
          stage(A1, A0, W, True), cmul(A0, A1, TC, TS, False, T, P, True), stage(B1, B0, P, False),
          [f"v_cvt_pk_bf16_f32 v{W+i}, v{B1+i}, v{B0+i}" for i in range(16)] + [f"ds_write_b128 v{T+11}, {vr(W+4*b,4)} offset:{1024*b}" for b in range(4)]]
    for j in range(8): IT[f"c{j}"] = c_[j]
    CA = Fv + 16; CC = Fv + 24; ON = Fv + 28
    fx0 = {k: [] for k in range(-1, 19)}; fx1 = {k: [] for k in range(-1, 19)}
    for k in range(CK, CK + 4):
        d = 16384 + (k % 3) * STG if k == CK else ((k % 3) - ((k - 1) % 3)) * STG
        fx0[k] = [[f"v_add_u32 v{vE}, {d & 0xffffffff}, v{vE}"]] + \
                 [[f"ds_read_b64_tr_b16 {vr(CA+4*sub+2*e,2)}, v{vE} offset:{14336*sub+1792*e}"] for sub in range(2) for e in range(2)]
        if k == CK: fx0[k] += [[f"v_mov_b32 v{ON+i}, 0x3f803f80"] for i in range(4)]
        fx1[k] = [["s_waitcnt lgkmcnt(0)"]] + [[mfma16(CC, ON, CA + 4 * sub, "0" if (k == CK and sub == 0) else None)] for sub in range(2)]
    fx0[CK + 4] = [L(f"v_lshlrev_b32 v{CC+1}, 2, v0\ns_mov_b64 exec, 0xffff\nbuffer_store_dword v{CC}, v{CC+1}, {WS}, s100 offen {SC} ;@cs\ns_mov_b64 exec, -1")]
    for k in range(4): IT[f"ex{k}"] = [f"v_mov_b32 v{T+i}, -1" for i in range(4)] + [f"buffer_store_dwordx4 {vr(T,4)}, v{vL16}, {WS}, s40 offen offset:{1024*k} {SC} ;@ex"]
    PFS = opt("PFS", 7)
    IT["pf"] = L(f"""
    v_lshlrev_b32 v{T+9}, {PFS}, v0
    s_lshl_b32 s39, s2, 2
    s_add_u32 s39, s39, s3
    s_mul_i32 s39, s39, 7168
    buffer_load_dword v{T+10}, v{T+9}, {W2S}, s39 offen
    """) + ([f"buffer_load_dword v{T+10}, v{T+9}, {W2S}, s39 offen offset:3584"] if PFS == 6 else [])
    for k in range(4): IT[f"pf{k}"] = IT["pf"][:4] + [f"s_lshl_b64 exec, 0x3fff, {14*k}", IT["pf"][4], "s_mov_b64 exec, -1"]
    SPN = opt("SPN", 8); SPS = opt("SPS", 128); NSP = -(-7168 // SPS // SPN)
    for k in range(NSP):
        IT[f"sp{k}"] = (IT["pf"][1:4] if k == 0 else []) + [f"s_buffer_load_dword s70, {W2S}, s39 offset:{SPS*j}" for j in range(SPN * k, min(SPN * k + SPN, 7168 // SPS))]
    vA = [2, 3, 4, 5]; vBa, vBb, vO, vX0, vX1 = 6, 7, 8, 9, 10
    g2a = L(f"""
    s_and_b32 s43, s3, 1
    s_lshr_b32 s44, s3, 1
    v_lshrrev_b32 v6, 2, v0
    v_and_b32 v7, 7, v6
    v_and_b32 v8, 3, v0
    v_lshlrev_b32 v8, 3, v8
    v_lshl_add_u32 v8, v6, 8, v8
    v_add_u32 v8, {WR_}, v8
    s_lshl_b32 s40, s43, 2
    v_xor_b32 v7, s40, v7
    """)
    for t in range(4): g2a += [f"v_xor_b32 v9, {t}, v7", f"v_lshl_add_u32 v{vA[t]}, v9, 5, v8"]
    g2a += L(f"""
    s_lshl_b32 s40, s44, 12
    s_lshl_b32 s41, s34, 11
    s_add_u32 s42, s40, s41
    v_add_u32 v{vBa}, s42, v{vL16}
    s_xor_b32 s42, s42, 2048
    v_add_u32 v{vBb}, s42, v{vL16}
    v_and_b32 v11, 15, v0
    v_bfe_u32 v12, v0, 4, 1
    v_lshlrev_b32 v{vO}, 11, v11
    v_lshl_add_u32 v{vO}, v12, 5, v{vO}
    v_lshl_add_u32 v{vO}, v{vH}, 4, v{vO}
    v_lshrrev_b32 v10, 2, v11
    v_xor_b32 v10, v10, v{vH}
    v_lshlrev_b32 v{vX0}, 6, v11
    v_lshl_add_u32 v{vX0}, v10, 4, v{vX0}
    v_lshl_add_u32 v{vX0}, v12, 3, v{vX0}
    s_add_u32 s40, s94, {S}
    v_add_u32 v{vX0}, s40, v{vX0}
    v_xor_b32 v{vX1}, 32, v{vX0}
    s_lshl_b32 s41, s3, 2
    s_add_u32 s41, s41, {PRG}
    v_mov_b32 v{vPA}, s41
    s_lshl_b32 s57, s2, 14
    s_add_u32 s57, s57, s94
    s_add_u32 s57, s57, {EX_OFF}
    s_xor_b32 s41, s57, 16384
    s_lshl_b32 s42, s44, 1
    s_add_u32 s42, s42, s34
    s_lshl_b32 s40, s32, 2
    s_add_u32 s42, s42, s40
    s_lshl_b32 s42, s42, 16
    s_lshl_b32 s40, s33, 8
    s_add_u32 s42, s42, s40
    s_lshl_b32 s40, s43, 7
    s_add_u32 s42, s42, s40
    s_mov_b32 s40, s57
    s_mov_b32 s46, 5
    """)
    IT["g2a"] = g2a
    A2 = 64
    swp = lambda R, n: sum([[f"v_permlane16_swap_b32 v{R+4*k}, v{R+4*k+2}", f"v_permlane16_swap_b32 v{R+4*k+1}, v{R+4*k+3}"] for k in range(n)], [])
    for k in range(4): IT[f"xl{k}"] = ([f"s_add_u32 s50, s42, 32768"] if k >> 1 else []) + [f"buffer_load_dwordx4 {vr(XT+4*k,4)}, v{vO}, {XS}, s{50 if k >> 1 else 42} offen offset:{64*(k&1)} ;@xl"]
    IT["bl"] = mksrd(60, 78, 2048) + L(f"v_and_b32 v{T}, 63, v{vO}\ns_and_b32 s50, s42, 2047") + [f"buffer_load_dwordx4 {vr(XT+16+4*k,4)}, v{T}, s[60:63], s50 offen offset:{64*k} ;@xl" for k in range(2)]
    IT["xs"] = ["WAITV xl"] + swp(XT, 6)
    IT["xi"] = ppa + L(f"s_add_u32 s50, s94, {WR_}\nv_add_u32 v{vK}, s50, v{vL16}")
    for i in range(8):
        t = T + 2 * (i & 3)
        IT["xi"] += [f"v_lshlrev_b32 v{t}, 16, v{XT+16+i}", f"v_and_b32 v{t+1}, 0xffff0000, v{XT+16+i}"]
        for u in range(2):
            d = A2 + 16 * u + 2 * i
            IT["xi"] += [f"v_lshlrev_b32 v{d}, 16, v{XT+8*u+i}", f"v_and_b32 v{d+1}, 0xffff0000, v{XT+8*u+i}", f"v_pk_add_f32 {vr(d,2)}, {vr(d,2)}, {vr(t,2)}"]
    YB = opt("YB", 400); YB0 = opt("YB0", 1000)
    fc = lambda k: sum(cost(l) for g in fx0[k] + fx1[k] for l in g)
    sl = split(sd_, -1, 16, lambda k: YB0 if k < 0 else YB - fc(k), lambda k, g: UN(k, g) if 0 <= k <= 15 else g)
    DEF = ("2:sW0,sW1;3:sW2,sW3;5:f1,sP0,sP1,tb;6:sP2,sP3,lS,fill;7:p0,g2a,b1,w2;8:f2,lP,xl0;9:pp,gA0,xl1;10:gA1,xl2;11:gA2,xl3;12:gA3,lQ,bl;13:pq,ep,xs;"
           "14:gB0,gB1,gB2,gB3,W0,pf,pi,ec,wA;15:rA,W1,td,unW,wB;16:rB,W2,W3,lg,c0,ex0,ex1,ex2,ex3,c1,c2,c3,c4,c5,c6,c7,xi") if WF else \
          ("4:sP0,sP1,sP2,sP3;5:tb,f1;6:sW0,sW1,sW2,sW3,lS;7:w2,p0;8:f2,b1,fill;9:g2a,xl0,xl1;10:ex0,xl2,xl3;11:ex1,bl,lP;12:pp,gA0,gA1,lQ,ex2,xs;13:gA2,gA3,pq,ep,ex3;"
           "14:gB0,gB1,gB2,gB3,W0,pi,ec,wA;15:rA,W1,td,W2,W3,pf;16:c0,y0,wB,sig,c1,y1,spin,rB,c2,unW,c3,c4,c5,c6,c7,xi,y2,y3,y4,y5")
    YS = {int(x.split(":")[0]): x.split(":")[1].split(",") for x in DEF.split(";")}
    for x in os.environ.get("YS", "").split(";"):
        if x: YS[int(x.split(":")[0])] = [y for y in x.split(":")[1].split(",") if y]
    YS = {k: [n for n in v if n in IT or not re.fullmatch(r"y\d", n)] for k, v in YS.items()}
    pos = {n: (k, j) for k, v in YS.items() for j, n in enumerate(v)}
    for n in range(NYP): assert pos[f"y{n}"] > pos["xi" if n >= 2 else "w2"] and pos[f"y{n}"] > pos["fill"] and (n < 2 or pos[f"y{n}"] > pos["c7"])
    miss = set(IT) - set(pos) - {"lg", "sig", "spin", "pf", "pf0", "pf1", "pf2", "pf3"} - {f"sp{k}" for k in range(NSP)}
    assert not miss and sum(len(v) for v in YS.values()) == len(pos), miss
    kL = max(kW.n, kP.n); A_, B_ = ("sW", "sP") if WF else ("sP", "sW")
    for x, y in [("sW0", "sW1"), ("sW1", "sW2"), ("sW2", "sW3"), ("sP0", "sP1"), ("sP1", "sP2"), ("sP2", "sP3"), (A_ + "3", "f1"), (B_ + "3", "w2"), ("f1", "f2"), ("lS", "p0"), ("p0", "lP"),
                 ("lP", "pp"), ("pp", "gA0"), ("pp", "lQ"), ("gA0", "gA1"), ("gA1", "gA2"), ("gA2", "gA3"), ("gA3", "gB0"), ("lQ", "pq"), ("pq", "ep"), ("pq", "gB0"), ("gB0", "gB1"), ("gB1", "gB2"), ("gB2", "gB3"),
                 ("ep", "ec"), ("b1", "ep"), ("fill", "gA0"), ("g2a", "ex0"), ("g2a", "pi"), ("gA3", "wA"), ("gB3", "wB"), ("f2", "pi"),
                 ("fill", "W0"), ("ec", "c0"), ("rA" if WF else "rB", "unW"), ("unW", "c3"), ("rB" if WF else "rA", "c0"), ("w2", "ep"),
                 ("g2a", "xl0"), ("g2a", "bl"), ("w2", "xl0"), ("f1", "xl0"), ("w2", "bl"), ("xl0", "xl1"), ("xl1", "xl2"), ("xl2", "xl3"), ("xl3", "xs"), ("bl", "xs"), ("xs", "xi"), ("c6", "xi")] + [(f"c{j}", f"c{j+1}") for j in range(7)]:
        assert pos[x] < pos[y], (x, y)
    for x, y in [("w2", "f2"), ("wA", "rA"), ("rA", "c7")] + ([("pi", "sig")] if "sig" in pos else [("wB", "rB")]): assert pos[x][0] < pos[y][0], (x, y)
    if "sig" in pos: assert pos["wB"] < pos["sig"] < pos["spin"] < pos["rB"] and pos["ep"] < pos["spin"]
    lo = {"sW0": kW.n, "sP0": kP.n, "gA0": kL + 1, "gB0": 14, "W0": 14, "W1": 15, "W2": 15, "W3": 15, "td": 15, "tb": kP.n, "lS": kW.n, "fill": kL, "b1": max(CK + 4, kP.n), "w2": CK + 4, "unW": CK + 5,
          "pf": kP.n, "ex0": kL, "pi": kL + 1, "f1": 0, "rA": kP.n}
    for x, k in lo.items(): assert x not in pos or pos[x][0] >= k, (x, k)
    assert pos["ec"][0] <= 15 and pos["pi"][0] <= 15 and pos["c7"][0] == 16
    if opt("PFE") >= 10: fx1[opt("PFE") - 11].append(pfe)
    for k, v in YS.items(): fx1[k] += [UN(k, IT[n]) if k <= 15 else IT[n] for n in v]
    fx1[15].append(["s_waitcnt lgkmcnt(0)"])
    if opt("SHOW"): print("Y slices", {k: fc(k) + sum(cost(l) for g in v if not isinstance(g, M) for l in g) for k, v in sl.items()}, "kW", kW.n, "kP", kP.n)
    for k in range(-1, 17):
        main = g1issue(k + 2) if 0 <= k <= 13 and not SELF else []
        its = fx0[k] + sl[k] + fx1[k]
        if 0 <= k <= 13: its = [g if isinstance(g, M) else [l for l in g if not killed(l)] for g in its]
        w_ = weave(main, its, opt("YFR", 85) / 100)
        a.ext(mprio(w_) if 0 <= k <= 15 else w_)
        a.ext(tr("y", f"A{k}"))
        if 1 <= k < 15 and not SELF: a(f"WAITV s{k+1}")
        if k == 16: a(f"WAITV g0 g1 g2 g3 ex\ns_setprio {opt('YP2', 2)}")
        if k in (-1, 16): a("s_waitcnt lgkmcnt(0)")
        a.ext(tr("y", f"B{k}"))
        a("s_barrier")
        a.ext(tr("y", f"b{k+1}"))
    F2 = [128, 160]
    ac2 = lambda t, u: A2 + 4 * (4 * u + t)
    rdA = lambda f, t, o: [f"ds_read_b64_tr_b16 {vr(f+4*t,2)}, v{vA[t]} offset:{o}", f"ds_read_b64_tr_b16 {vr(f+4*t+2,2)}, v{vA[t]} offset:{o+4096}"]
    rdB = lambda d, u, o: f"ds_read_b128 {vr(d,4)}, v{vBa if u < 2 else vBb} offset:{o+1024*(u&1)}"
    def rd2(f, slot, sub):
        o_ = 16384 * slot + 8192 * sub
        o = rdA(f, 0, o_) + [rdB(f + 16 + 4 * u, u, o_) for u in range(4)]
        for t in range(1, 4): o += rdA(f, t, o_)
        return o
    mf2 = lambda f, z=None: [mfma16(ac2(t, u), f + 4 * t, f + 16 + 4 * u, z if u >= 2 else None) for t, u in snake(4, 4)]
    rdX = f"ds_read_b32 v{vF}, v{vT} offset:16"; inc = f"v_add_u32 v{vOne}, 1, v{vOne}"
    a.ext(rd2(F2[0], 0, 0))
    a(f"v_mov_b32 v{vOne}, 2\ns_waitcnt lgkmcnt(0)")
    a.ext(interleave(mf2(F2[0], "0"), rd2(F2[1], 0, 1)))
    def top(m, rd, k, thr, trn=None):
        a("s_waitcnt lgkmcnt(0)")
        if not hard(k): a.ext(e1(f"ds_write_b32 v{vPA}, v{vOne}"))
        if trn: a.ext(tr("y", "B" + trn))
        if hard(k):
            a("s_barrier"); o = interleave(m, rd)
            if trn: a.ext(tr("y", "d" + trn))
        elif thr:
            c_, b_ = chk(thr, vT, vF, 16)
            a.ext(c_ + m[:1] + b_)
            if trn: a.ext(tr("y", "d" + trn))
            o = interleave(m, rd)[1:]
        else: o = interleave(m, rd)
        a.ext(o)
    nxt_ = lambda k: [] if hard(k) else [f"v_mov_b32 v{vOne}, {k+1}"] + ([rdX] if k >= 3 else [])
    YWD = opt("YWD", 0); YWG = [int(x) for x in os.environ.get("YWG", "2,8").split(",")]
    def addw(rd, w):
        for g, x in zip(YWG, w):
            if g < len(rd): rd[g] += "\n" + x
            else: rd.append(x)
        return rd
    for i in range(23):
        j = i + 4 - YWD; w = []
        if j in YPRE:
            assert hard(i + 1) and hard(j); w = wwr(j, YPRE[j], vK); w[0] = f"WAITV pw{j}\n" + w[0]
        top(mf2(F2[1]), addw(rd2(F2[0], (i + 1) % 4, 0), w[:2]), i + 1, i + 2 if i >= 2 else None, str(i + 1))
        a("s_waitcnt lgkmcnt(0)")
        a.ext(interleave(mf2(F2[0]), addw(rd2(F2[1], (i + 1) % 4, 1), w[2:]) + nxt_(i + 2)))
    a("VMRESET")
    GB = [192, 128]; PKx = 240; EXR = 176; BV = 28; TU = 44; TY = A2 + 32
    PH = [(x[0], int(x[1:])) for x in os.environ.get("PH", "F24,F25,F26,O24,F27,O25,O26,O27").split(",")]
    def rdh(p):
        h, st = PH[p]; f = GB[p & 1]; o = []
        for sub in range(2):
            o_ = 16384 * (st % 4) + 8192 * sub; g = f + 24 * sub
            o += rdA(g, 0, o_) + [rdB(g + 16 + 4 * x, (2 if h == "F" else 0) + x, o_) for x in range(2)]
            for t in range(1, 4): o += rdA(g, t, o_)
        return o
    def mfh(p):
        h, st = PH[p]; f = GB[p & 1]
        return [mfma16(ac2(t, (2 if h == "F" else 0) + x), f + 24 * sub + 4 * t, f + 24 * sub + 16 + 4 * x) for sub in range(2) for t, x in snake(4, 2)]
    ldE = [f"buffer_load_dwordx4 {vr(EXR+4*k,4)}, v{vL16}, {WS}, s40 offen offset:{1024*k} {SC}" for k in range(4)]
    pF = PH.index(("F", 27)); nP = len(PH); seen = set()
    def pair(rd, n):
        o = []; rd = list(rd)
        while rd:
            c = -(-len(rd) // (n - len(o))); o.append("\n".join(rd[:c])); rd = rd[c:]
        return o
    for p in range(-1, nP):
        m = mfh(p) if p >= 0 else mf2(F2[1])
        rd = rdh(p + 1) if p + 1 < nP else []
        thr = None
        if p + 1 < nP and PH[p + 1][1] not in seen: thr = PH[p + 1][1] + 1; seen.add(PH[p + 1][1])
        if p == nP - 2:
            assert thr is None; thr = 60
            rd += [f"ds_read_b64 {vr(BV+8*x+2*t,2)}, v{vX1 if t >> 1 else vX0} offset:{2048*x+1024*(t&1)}" for x in range(2) for t in range(4)]
        rd = pair(rd, 13) + nxt_(p + 26) if rd else []
        if p == pF + 1:
            snd = []
            for k in (0, 2, 3, 1):
                snd += [f"v_cvt_pk_bf16_f32 v{PKx+i}, v{TY+2*i}, v{TY+1+2*i}" for i in range(4 * k, 4 * k + 4)]
                snd[-1] += f"\nbuffer_store_dwordx4 {vr(PKx+4*k,4)}, v{vL16}, {WS}, s41 offen offset:{1024*k} {SC}"
            snd = pair(snd, 8)
            rd = [x + ("\n" + snd[n] if n < len(snd) else "") for n, x in enumerate(rd)]
        if p == nP - 1:
            assert p > pF + 1
            rd = [f"v_lshlrev_b32 v{TY+2*i}, 16, v{BV+i}\nv_and_b32 v{TY+2*i+1}, 0xffff0000, v{BV+i}" for i in range(16)]
            e0 = opt("YEL", 16)
            for k in range(4):
                if e0 + k < 16: rd[e0 + k] += "\n" + ldE[k]
        top(m, rd, p + 25, thr, f"P{p+1}")
    a.ext(tr("y", "G2end"))
    a.ext([ldE[k] for k in range(4) if opt("YEL", 16) + k >= 16])
    a(f"v_mov_b32 v{TU+8}, {fhex(2.0**-20)}\nv_mov_b32 v{TU+9}, {fhex(2.0**-20)}")
    for i in (0, 1, 8, 9, 10, 11, 2, 3, 4, 5, 12, 13, 14, 15, 6, 7): a(f"v_pk_fma_f32 {vr(A2+2*i,2)}, {vr(TY+2*i,2)}, {vr(TU+8,2)}, {vr(A2+2*i,2)}")
    l1 = a.label("pe"); ok = a.label("oke")
    a(f"s_mov_b32 s54, {BOUND}\n{l1}:\ns_waitcnt vmcnt(0)")
    for i in range(5): a(f"v_max3_u32 v{TU+i}, v{EXR+3*i}, v{EXR+3*i+1}, v{EXR+3*i+2}")
    a(f"""
    v_max3_u32 v{TU}, v{TU}, v{TU+1}, v{TU+2}
    v_max3_u32 v{TU+3}, v{TU+3}, v{TU+4}, v{EXR+15}
    v_max_u32 v{TU}, v{TU}, v{TU+3}
    v_cmp_eq_u32 vcc, -1, v{TU}
    s_cbranch_vccz {ok}
    s_sub_u32 s54, s54, 1
    s_cbranch_scc1 {ok}
    """)
    a.ext(ldE)
    a(f"s_branch {l1}\n{ok}:"); a.ext(tr("y", "ex"))
    for k in range(4):
        for i in range(4 * k, 4 * k + 4):
            t = TU + 2 * (i & 3); d = vr(A2 + 2 * i, 2)
            a(f"v_lshlrev_b32 v{t}, 16, v{EXR+i}\nv_and_b32 v{t+1}, 0xffff0000, v{EXR+i}\nv_pk_add_f32 {d}, {d}, {vr(t,2)}")
        for i in range(4 * k, 4 * k + 4): a(f"v_cvt_pk_bf16_f32 v{PKx+i}, v{A2+2*i}, v{A2+1+2*i}")
        if k == 2: a("s_add_u32 s42, s42, 32768")
        a.ext(swp(PKx + 4 * k, 1))
        a(f"buffer_store_dwordx4 {vr(PKx+4*k,4)}, v{vO}, s[24:27], s42 offen offset:{64*(k&1)} {os.environ.get('OSC', 'sc1')}")
    a.ext(tr("y", "st"))
    if opt("TRACE"): a("s_waitcnt vmcnt(0)")
    a.ext(tr("y", "done") + tr("y", "END"))
    a(f"{END}:\ns_endpgm"); a.ext(OOL)
    a("code_end:")

def dotrace(lines):
    import json
    out = []; N = {"x": ["start"], "y": ["start"]}; R = {"x": 220, "y": 26}
    for l in lines:
        p = l.split()
        if p and p[0] == "TRACE":
            r = p[1]; i = len(N[r]) - 1
            out += ["    s_waitcnt lgkmcnt(0)", f"    v_writelane_b32 v{R[r] + i // 64}, s58, {i % 64}"]
            if p[2] == "END":
                out += [f"    {x}" for x in L(f"""
                s_lshl_b32 s55, s2, 3
                s_add_u32 s55, s55, s38
                s_lshl_b32 s55, s55, 9
                s_add_u32 s55, s55, {STAMP_OFF + MB}
                v_mbcnt_lo_u32_b32 v2, -1, 0
                v_mbcnt_hi_u32_b32 v2, -1, v2
                v_lshlrev_b32 v2, 2, v2
                buffer_store_dword v{R[r]}, v2, {WS}, s55 offen
                buffer_store_dword v{R[r]+1}, v2, {WS}, s55 offen offset:256
                """)]
            else:
                out.append(f"    s_mem{'real' if opt('TRACE') == 2 else ''}time s[58:59]"); N[r].append(p[2])
        else: out.append(l)
    json.dump(N, open("trace.json", "w"))
    return out

def build(aslist=False, extra=None):
    import hazard
    a = Asm()
    name = "f_kernel" if aslist else NAME + "_kernel"
    fused(a, name)
    Ls = [f"; @launch {'kernel='+name+' ' if aslist else ''}grid=(256,1,1) block=(512,1,1) lds=163840"]; D = [kernel_desc(name, 256)]
    if extra:
        l, d = extra(a); Ls.append(l); D.append(d)
    xk = [f";@{t}" for t in os.environ.get("XKILL", "").split(",") if t]
    a.lines = [l for l in a.lines if not any(l.rstrip().endswith(t) for t in xk)]
    a.lines = dotrace(resolve(a.lines))
    a.lines, n = hazard.fix(a.lines, verbose=bool(opt('HZV')))
    print("hazard pads", n, "lines", len(a.lines))
    head = "; generated by dev/fused.py\n" + "\n".join(Ls) + "\n" + '.amdgcn_target "amdgcn-amd-amdhsa--gfx950"\n'
    return head + a.text() + "".join(D)

if __name__ == "__main__":
    ex = None
    if os.environ.get("PROBE"):
        import probe
        pr = [int(x) for x in os.environ["PROBE"].split(",")]
        ex = lambda a: probe.probe2(a, "pr_kernel", *pr)
    open(sys.argv[1], "w").write(build(aslist=bool(opt("LIST")) or ex is not None, extra=ex))
```
